```python
import torch

def _softmax(x, axis=-1):
    return torch.softmax(x, dim=axis)
def _gelu(x):
    return torch.nn.functional.gelu(x, approximate="tanh")
def _silu(x):
    return torch.nn.functional.silu(x)
def _sigmoid(x):
    return torch.sigmoid(x)
def _layernorm(x, axis=-1, eps=1e-5):
    m = x.mean(dim=axis, keepdim=True)
    v = x.var(dim=axis, keepdim=True, unbiased=False)
    return (x - m) / torch.sqrt(v + eps)
def _scatter_add(tgt, idx, src, axis=0):
    return tgt.clone().index_add_(axis, idx, src)
def _segment_sum(src, seg, n):
    out = torch.zeros((n,) + src.shape[1:], dtype=src.dtype)
    return out.index_add_(0, seg, src)
def _pad(x, pw):
    flat = tuple(v for pair in reversed(pw) for v in pair)
    return torch.nn.functional.pad(x, flat)

kernel_name = 'interleave_layers__linear_kernel_hedgehog__geglu_ffn__prompt'

def setup_inputs():

    _w = (lambda a: (lambda t: t.to(torch.bfloat16) if t.is_floating_point() else t)(torch.as_tensor(a)))
    def _A_setup():
        B, S, D, H = 1, 2048, 512, 32
        Dh = D // H
        return {
            "x": _w((lambda *s: torch.randn(*s, dtype=torch.bfloat16) * 0.05)(B, S, D)),
            "wqkv": _w((lambda *s: torch.randn(*s, dtype=torch.bfloat16) * 0.2)(D, 3 * D)),
            "w_phi": _w((lambda *s: torch.randn(*s, dtype=torch.bfloat16) * 0.2)(H, Dh, Dh) * (Dh ** -0.5)),
            "wo": _w((lambda *s: torch.randn(*s, dtype=torch.bfloat16) * 0.05)(D, D)),
        }
    _A_in = _A_setup()

    def _B_setup():
        B, S, D, F = 1, 2048, 512, 1792
        return {
            "x": _w((lambda *s: torch.randn(*s, dtype=torch.bfloat16) * 0.05)(B, S, D)),
            "w_gate": _w((lambda *s: torch.randn(*s, dtype=torch.bfloat16) * 0.05)(D, F)),
            "w_up": _w((lambda *s: torch.randn(*s, dtype=torch.bfloat16) * 0.05)(D, F)),
            "w_down": _w((lambda *s: torch.randn(*s, dtype=torch.bfloat16) * 0.05)(F, D)),
        }
    _B_in = _B_setup()

    return {
        "A_x": _A_in["x"],
        "A_wqkv": _A_in["wqkv"],
        "A_w_phi": _A_in["w_phi"],
        "A_wo": _A_in["wo"],
        "B_x": _B_in["x"],
        "B_w_gate": _B_in["w_gate"],
        "B_w_up": _B_in["w_up"],
        "B_w_down": _B_in["w_down"],
    }

def reference(A_x, A_wqkv, A_w_phi, A_wo, B_x, B_w_gate, B_w_up, B_w_down):
    def _A_ref(x, wqkv, w_phi, wo):
        B, S, D = x.shape
        H = 32; Dh = D // H
        qkv = (lambda x, *d: x.permute(*d))((x @ wqkv).reshape(B, S, 3, H, Dh), 2, 0, 3, 1, 4)
        q, k, v = qkv[0], qkv[1], qkv[2]
        pq = torch.einsum("bhsd,hdf->bhsf", q, w_phi)
        pk = torch.einsum("bhsd,hdf->bhsf", k, w_phi)
        phi_q = torch.concatenate([_softmax(pq, axis=-1), _softmax(-pq, axis=-1)], axis=-1)
        phi_k = torch.concatenate([_softmax(pk, axis=-1), _softmax(-pk, axis=-1)], axis=-1)
        kv = torch.einsum("bhsf,bhsd->bhfd", phi_k, v)
        z  = torch.einsum("bhsf->bhf", phi_k)
        num = torch.einsum("bhqf,bhfd->bhqd", phi_q, kv)
        den = torch.einsum("bhqf,bhf->bhq", phi_q, z)[..., None] + 1e-6
        o = num / den
        return (lambda x, *d: x.permute(*d))(o, 0, 2, 1, 3).reshape(B, S, D) @ wo

    def _B_ref(x, w_gate, w_up, w_down):
        return (_gelu(x @ w_gate) * (x @ w_up)) @ w_down

    x = A_x
    x = x + _A_ref(_layernorm(x, axis=-1), A_wqkv, A_w_phi, A_wo)
    x = x + _B_ref(_layernorm(x, axis=-1), B_w_gate, B_w_up, B_w_down)
    x = x + _A_ref(_layernorm(x, axis=-1), A_wqkv, A_w_phi, A_wo)
    x = x + _B_ref(_layernorm(x, axis=-1), B_w_gate, B_w_up, B_w_down)
    return x
```

```python
import re

TRANS = ("v_exp_f32", "v_log_f32", "v_rcp_f32", "v_rsq_f32", "v_sqrt_f32", "v_sin_f32", "v_cos_f32")
_reg1 = re.compile(r"^-?(?:abs\()?([vas])(\d+)\)?$")
_regN = re.compile(r"^-?([vas])\[(\d+):(\d+)\]$")


def regs_of(tok):
    tok = tok.strip()
    m = _reg1.match(tok)
    if m:
        return [m.group(1) + m.group(2)]
    m = _regN.match(tok)
    if m:
        return [m.group(1) + str(i) for i in range(int(m.group(2)), int(m.group(3)) + 1)]
    if tok == "vcc":
        return ["vcc"]
    if tok == "exec":
        return ["exec"]
    if tok == "m0":
        return ["m0"]
    return []


def R(kind, lo, n=1):
    return f"{kind}{lo}" if n == 1 else f"{kind}[{lo}:{lo + n - 1}]"


def V(lo, n=1): return R("v", lo, n)
def A(lo, n=1): return R("a", lo, n)
def S(lo, n=1): return R("s", lo, n)


class Reg:
    def __init__(self, f, lo):
        self.f = f; self.lo = lo
    def __call__(self, off=0, n=1):
        return R(self.f, self.lo + off, n)


class Inst:
    __slots__ = ("text", "kind", "reads", "writes", "ops", "mn", "wtag", "rtags", "tok", "passes", "states", "slow")

    def __init__(self, text, kind, reads=(), writes=(), ops=(), mn=""):
        self.text = text; self.kind = kind
        self.reads = set(reads); self.writes = set(writes)
        self.ops = ops; self.mn = mn
        self.wtag = None; self.rtags = None; self.tok = None
        self.passes = 0; self.states = 1; self.slow = None


class Tok:
    def __init__(self, name=""):
        self.name = name


def parse(text):
    t = text.split(";")[0].strip()
    parts = t.split(None, 1)
    mn = parts[0]
    rest = parts[1] if len(parts) > 1 else ""
    ops = [o.strip() for o in rest.split(",")] if rest else []
    mods = []
    if ops:
        last = ops[-1].split()
        ops[-1] = last[0] if last else ""
        mods = last[1:]
    clean = []
    for o in ops:
        w = o.split()
        clean.append(w[0] if w else "")
        if len(w) > 1:
            mods += w[1:]
    ops = clean
    rd, wr = set(), set()
    allr = lambda xs: set(r for x in xs for r in regs_of(x))
    if mn.startswith("v_mfma"):
        i = Inst(text, "mfma", allr(ops[1:4]), allr(ops[:1]), ops, mn)
        i.passes = 8 if "32x32x16" in mn else 4
        assert "32x32x16" in mn or "16x16x32" in mn, mn
        return i
    if mn.startswith("v_cmp"):
        return Inst(text, "valu", allr(ops[1:]) | {"exec"}, allr(ops[:1]), ops, mn)
    if mn.startswith("v_readfirstlane") or mn.startswith("v_readlane"):
        return Inst(text, "valu", allr(ops[1:]), allr(ops[:1]), ops, mn)
    if mn.startswith("v_permlane"):
        return Inst(text, "valu", allr(ops[:2]), allr(ops[:2]), ops, mn)
    if mn.startswith("v_"):
        rd = allr(ops[1:])
        if mn.startswith(("v_fmac", "v_dot2c", "v_pk_fmac")):
            rd |= allr(ops[:1])
        return Inst(text, "trans" if mn.replace("_e32", "").replace("_e64", "") in TRANS else "valu", rd, allr(ops[:1]), ops, mn)
    if mn.startswith("s_load") or mn in ("s_memtime", "s_memrealtime"):
        return Inst(text, "smem", allr(ops[1:]), allr(ops[:1]), ops, mn)
    if mn == "s_nop":
        i = Inst(text, "nop", ops=ops, mn=mn); i.states = int(ops[0]) + 1
        return i
    if mn == "s_waitcnt":
        return Inst(text, "wait", ops=ops, mn=mn)
    if mn in ("s_barrier", "s_sleep", "s_setprio", "s_endpgm"):
        return Inst(text, "misc", ops=ops, mn=mn)
    if mn.startswith("s_cbranch") or mn == "s_branch":
        rd = {"vcc"} if "vcc" in mn else ({"exec"} if "exec" in mn else ({"scc"} if "scc" in mn else set()))
        return Inst(text, "branch", rd, (), ops, mn)
    if mn.startswith("s_cmp") or mn.startswith("s_bitcmp"):
        return Inst(text, "salu", allr(ops), {"scc"}, ops, mn)
    if mn.startswith("s_"):
        rd = allr(ops[1:]); wr = allr(ops[:1])
        if "saveexec" in mn:
            rd |= {"exec"}; wr |= {"exec"}
        if mn.startswith(("s_addk", "s_mulk")):
            rd |= wr
        if not mn.startswith(("s_mov", "s_getreg", "s_getpc", "s_cselect", "s_mul_i32", "s_mul_hi", "s_movk")):
            wr = wr | {"scc"}
        if mn.startswith(("s_cselect", "s_addc", "s_subb")):
            rd |= {"scc"}
        return Inst(text, "salu", rd, wr, ops, mn)
    if mn.startswith("buffer_load") or mn.startswith("global_load"):
        if "lds" in mods:
            return Inst(text, "dma", allr(ops) | {"m0"}, (), ops, mn)
        return Inst(text, "vload", allr(ops[1:]), allr(ops[:1]), ops, mn)
    if mn.startswith("buffer_store") or mn.startswith("buffer_atomic") or mn.startswith("global_store"):
        return Inst(text, "vstore", allr(ops), (), ops, mn)
    if mn.startswith("ds_read") or mn.startswith("ds_bpermute"):
        return Inst(text, "dsread", allr(ops[1:]), allr(ops[:1]), ops, mn)
    if mn.startswith("ds_write") or mn.startswith("ds_add"):
        return Inst(text, "dswrite", allr(ops), (), ops, mn)
    raise ValueError("cannot classify: " + text)


class Seq(list):
    def __call__(self, text, wtag=None, rtags=None, tok=None):
        for line in text.strip().split("\n"):
            line = line.strip()
            if not line or line.startswith(";"):
                continue
            i = parse(line)
            i.wtag = wtag; i.rtags = rtags; i.tok = tok
            self.append(i)
        return self[-1]

    def label(self, name):
        i = Inst(name + ":", "label"); i.states = 0
        self.append(i)

    def comment(self, text):
        i = Inst("; " + text, "comment"); i.states = 0
        self.append(i)

    def wait_tok(self, *toks):
        i = Inst("", "waittok"); i.tok = list(toks); i.states = 0
        self.append(i)

    def wait_vm0(self):
        i = Inst("", "waitvm0"); i.states = 0
        self.append(i)

    def wait_lgkm0(self):
        i = Inst("", "waitlgkm0"); i.states = 0
        self.append(i)

    def raw(self, lines, drains_vm=False, drains_lgkm=False, writes=()):
        i = Inst(lines, "raw", (), writes)
        i.ops = (drains_vm, drains_lgkm)
        self.append(i)

    def dual_store(self, fast_lines, name):
        i = Inst("", "dualbegin"); i.mn = name; i.states = 2
        self.append(i)
        out = []
        for l in fast_lines:
            out.append(self(l))
        j = Inst("", "dualend"); j.mn = name; j.states = 0
        self.append(j)
        return out


def weave(main, fillers, every=None):
    out = Seq()
    n = len(main); m = len(fillers)
    k = 0
    for i, g in enumerate(main):
        out.extend(g)
        tgt = (m * (i + 1)) // n
        while k < tgt:
            out.extend(fillers[k]); k += 1
    return out


def insert_waits(seq):
    out = Seq()
    vm = []
    lg = []

    def need(q, pred):
        for idx in range(len(q) - 1, -1, -1):
            if pred(q[idx]):
                return len(q) - 1 - idx
        return None

    def emit_wait(nv, nl):
        nonlocal vm, lg
        parts = []
        if nv is not None:
            n = min(nv, 63)
            parts.append(f"vmcnt({n})")
            vm = vm[len(vm) - n:] if n else []
        if nl is not None:
            if any(e[2] for e in lg):
                nl = 0
            n = min(nl, 15)
            parts.append(f"lgkmcnt({n})")
            lg = lg[len(lg) - n:] if n else []
        if parts:
            out("s_waitcnt " + " ".join(parts))

    for i in seq:
        if i.kind == "waittok":
            toks = i.tok
            nv = need(vm, lambda e: e[1] in toks); nl = need(lg, lambda e: e[1] in toks)
            emit_wait(nv, nl); continue
        if i.kind == "waitvm0":
            if vm: emit_wait(0, None)
            continue
        if i.kind == "waitlgkm0":
            if lg: emit_wait(None, 0)
            continue
        if i.kind == "raw":
            touched = i.writes
            nv = need(vm, lambda e: e[0] & touched); nl = need(lg, lambda e: e[0] & touched)
            emit_wait(nv, nl)
            out.append(i)
            if i.ops[0]: vm = []
            if i.ops[1]: lg = []
            continue
        if i.kind == "wait":
            m = re.search(r"vmcnt\((\d+)\)", i.text)
            if m:
                n = int(m.group(1)); vm = vm[max(0, len(vm) - n):] if n else []
            m = re.search(r"lgkmcnt\((\d+)\)", i.text)
            if m:
                n = int(m.group(1)); lg = lg[max(0, len(lg) - n):] if n else []
            out.append(i); continue
        touched = i.reads | i.writes
        nv = need(vm, lambda e: e[0] & touched); nl = need(lg, lambda e: e[0] & touched)
        emit_wait(nv, nl)
        out.append(i)
        if i.kind in ("vload", "dma", "vstore"):
            vm.append((set(i.writes), i.tok))
            if len(vm) > 63: vm = vm[-63:] if False else vm
        elif i.kind in ("dsread", "dswrite"):
            lg.append((set(i.writes), i.tok, False))
        elif i.kind == "smem":
            lg.append((set(i.writes), i.tok, True))
    return out


def _is_valu(i): return i.kind in ("valu", "trans")
def _is_mem(i): return i.kind in ("vload", "dma", "vstore", "dsread", "dswrite")
def _vregs(s): return set(r for r in s if r[0] in "va" and r != "vcc")
def _sregs(s): return set(r for r in s if r[0] == "s" and r != "scc") | (s & {"vcc"})


def required_gap(p, c):
    g = 0
    if p.kind == "mfma":
        D = p.writes
        big = p.passes == 8
        if c.kind == "mfma":
            ca = set(regs_of(c.ops[1])) | set(regs_of(c.ops[2])); cc = set(regs_of(c.ops[3]))
            if D & ca: g = max(g, 12 if big else 8)
            if D & cc and not (cc == D and c.passes == p.passes): g = max(g, 10 if big else 6)
            if D & c.writes and not (D & cc): g = max(g, 12 if big else 8)
        elif _is_valu(c) or _is_mem(c):
            if D & (c.reads | c.writes): g = max(g, 12 if big else 8)
        if _is_valu(c) or c.kind in ("vload", "dsread"):
            pc = set(regs_of(p.ops[3]))
            if pc & c.writes: g = max(g, 7 if big else 3)
        return g
    if _is_valu(p):
        vw = _vregs(p.writes); sw = _sregs(p.writes)
        if c.kind == "mfma" and vw & c.reads: g = max(g, 2)
        if c.kind == "mfma" and "exec" in p.writes: g = max(g, 4)
        if _is_valu(c):
            if c.mn.startswith("v_permlane") and vw & c.reads: g = max(g, 2)
            if c.mn.startswith(("v_readfirstlane", "v_readlane")) and vw & c.reads: g = max(g, 1)
            if "dpp" in c.text or "row_" in c.text or "quad_perm" in c.text:
                if vw & c.reads: g = max(g, 2)
            if p.kind == "trans" and c.kind != "trans" and vw & c.reads: g = max(g, 1)
            if p.kind == "trans" and c.kind == "trans" and vw & c.reads: g = max(g, 1)
            if sw & c.reads: g = max(g, 2)
            if p.mn.startswith("v_dot2") and vw & (c.reads | c.writes):
                same = c.mn == p.mn and not (vw & set(r for o in c.ops[1:3] for r in regs_of(o)))
                if not same: g = max(g, 3)
            if "op_sel" in p.text and not p.mn.startswith("v_pk_") and vw & (c.reads | c.writes): g = max(g, 1)
        if p.mn.startswith("v_dot2") and not _is_valu(c) and vw & (c.reads | c.writes): g = max(g, 3)
        if c.kind in ("vload", "dma", "vstore") and sw & c.reads: g = max(g, 5)
        if c.kind in ("salu", "branch") and sw & c.reads: g = max(g, 1)
        if p.kind == "trans" and _is_mem(c) and vw & c.reads: g = max(g, 1)
        return g
    if p.kind == "salu":
        if "m0" in p.writes and c.kind == "dma": g = max(g, 1)
        if "exec" in p.writes and (c.kind == "mfma"): g = max(g, 1)
        return g
    if p.kind == "vstore" and ("x4" in p.mn or "x3" in p.mn):
        data = set(regs_of(p.ops[0]))
        if data & c.writes: g = max(g, 2)
        return g
    return g


def insert_nops(seq):
    out = Seq()
    for c in seq:
        if c.kind in ("label", "comment", "dualend"):
            out.append(c); continue
        if c.kind in ("raw", "dualbegin"):
            out.append(c); continue
        dist = 0; need = 0
        for p in reversed(out):
            if dist >= 20: break
            if p.kind not in ("label", "comment", "nop", "wait", "misc", "branch", "raw", "dualbegin", "dualend"):
                g = required_gap(p, c)
                if g - dist > need: need = g - dist
            dist += p.states
        while need > 0:
            k = min(need, 16)
            out(f"s_nop {k - 1}"); need -= k
        out.append(c)
    return out


def check_tags(seq):
    tags = {}
    for i in seq:
        if i.rtags:
            for opi, tag in i.rtags.items():
                for k, r in enumerate(regs_of(i.ops[opi])):
                    got = tags.get(r)
                    if got != tag:
                        raise AssertionError(f"tag mismatch at '{i.text}': {r} holds {got}, expected {tag}")
        for r in i.writes:
            tags[r] = i.wtag


def render(seq, s_mode):
    main = []; ool = []
    cur = None
    for i in seq:
        if i.kind == "dualbegin":
            main.append(f"    s_cmp_lg_u32 {s_mode}, 0")
            main.append(f"    s_cbranch_scc1 L_slow_{i.mn}")
            ool.append(f"L_slow_{i.mn}:")
            cur = i.mn
            continue
        if i.kind == "dualend":
            main.append(f"L_ret_{i.mn}:")
            ool.append("    s_nop 1")
            ool.append(f"    s_branch L_ret_{i.mn}")
            cur = None
            continue
        if i.kind == "label":
            main.append(i.text); continue
        if i.kind == "raw":
            main.extend("    " + l.strip() if not l.strip().endswith(":") else l.strip() for l in i.text.strip().split("\n"))
            continue
        main.append("    " + i.text)
        if cur is not None:
            ool.append("    " + i.text + (" sc1" if i.kind == "vstore" else ""))
    return "\n".join(main), "\n".join(ool)


def finalize(seq, s_mode):
    check_tags(seq)
    seq = insert_waits(seq)
    seq = insert_nops(seq)
    return render(seq, s_mode), seq
```

```python
import sys, struct, math
from dsl import *

KNAME = "interleave_layers__linear_kernel_hedgehog__geglu_ffn__prompt_kernel"

CFG = dict(ts=False, force_slow=False)

KV_OFF = 0; KV_HP = 9216
FLG_OFF = 0x24000; FLG_G = 6144
FO, FX1, FH = 0, 512, 1024
FX2, FREG = 4096, 4608
STAT_OFF = 0x40000
O_OFF = 0x100000; X1_OFF = 0x500000; X2_OFF = 0x900000; H_OFF = 0xB00000; H_L = 0x700000
TS_OFF = 0x1900000; WS_SIZE = 0x1A00000

R3, R1, R0, R2 = 0, 32768, 65536, 131072
CS1 = 163840 - 1024
CS3 = 163840 - 512
PH_S = 208
KVB = R2 + 27648
LDS_BYTES = 163840

SX, SQKV, SWO, SWG, SWU, SWD, SOUT, SWS, SWS3, SDBG, SPHI = [S(4 + 4 * i, 4) for i in range(11)]
(sW, sG, sI, sHP, sRB, sCT, sRQ, sMODE, sBUD, sT0, sT1, sT2, sMT1, sMT2, sFLG, sKV, sADD,
 sQKVO, sGUO, sWDO, sWOO, sW2K, sW8K, sLOG2E, sPART, sMT3, sT3) = [S(48 + i) for i in range(27)]
sE0 = S(76, 2)
sTS = S(96, 2)

vL16, vT64, vT128, vTG, vDQ, vD128, vDG, vROW, vLANE = [V(1 + i) for i in range(9)]
vD128b, vDU = V(10), V(11)
TMP0 = 12
vP = V(30); vTS = V(31)
XRES = Reg("v", 32)
WRING = Reg("a", 224)
WPHI = Reg("a", 248)
PARK = Reg("a", 0)

LOG2E = 1.4426950408889634
def f32(x): return "0x%08x" % struct.unpack("<I", struct.pack("<f", x))[0]

_uid = [0]
def uid(p):
    _uid[0] += 1
    return f"{p}{_uid[0]}"


class Gen:
    def __init__(self, cfg):
        self.cfg = cfg
        self.q = Seq()
        self.nts = 0
        self.tsnames = []

    def ts(self, name):
        if not self.cfg["ts"]:
            return
        k = self.nts; self.nts += 1; self.tsnames.append(name)
        assert k < 64
        self.q.raw(f"s_memtime {sTS}\ns_waitcnt lgkmcnt(0)\nv_writelane_b32 {vTS}, s96, {k}", drains_lgkm=True)

    def poll(self, voff, srd, soff, target=None):
        L = uid("L_poll"); D = uid("L_done")
        t = f"{L}:\nbuffer_load_dword {vP}, {voff}, {srd}, {soff} offen sc1\ns_waitcnt vmcnt(0)\n"
        if target is None:
            t += f"v_cmp_eq_u32 vcc, 0, {vP}\n"
        else:
            t += f"v_and_b32 v29, 63, {vP}\nv_cmp_ne_u32 vcc, v29, {target}\n"
        t += f"s_nop 1\ns_cbranch_vccz {D}\ns_sub_u32 {sBUD}, {sBUD}, 1\ns_cbranch_scc0 {L}\ns_mov_b32 {sBUD}, 0\n{D}:\n"
        self.q("s_nop 4")
        self.q.raw(t, drains_vm=True, writes={"v29", "v30"})

    def flag(self, soff_reg, srd):
        q = self.q
        q(f"v_mov_b32 {vP}, 1")
        q.wait_vm0()
        q.dual_store([f"buffer_store_dword {vP}, v28, {srd}, {soff_reg} offen"], uid("f"))

    def barrier(self):
        self.q.wait_lgkm0()
        self.q("s_barrier")

    @staticmethod
    def grp(*lines, **kw):
        s = Seq()
        for l in lines: s(l, **kw)
        return s

    def dma_wkv(self, j, tok):
        s = Seq()
        s(f"s_add_u32 m0, {sW2K}, {R0 + j * 8192}")
        s(f"s_add_u32 {sT0}, {sQKVO}, {j * 4 * 49152 + 1024}")
        s(f"buffer_load_dwordx4 {vDQ}, {SQKV}, {sT0} offen lds")
        s(f"buffer_load_dwordx4 {vDQ}, {SQKV}, {sT0} offen offset:1024 lds", tok=tok)
        return s

    def dma_wq(self, j, tok):
        s = Seq()
        s(f"s_add_u32 m0, {sW8K}, {R1 + j * 1024}")
        s(f"s_add_u32 {sT0}, {sT3}, {j * 49152}")
        s(f"buffer_load_dwordx4 {vDQ}, {SQKV}, {sT0} offen lds", tok=tok)
        return s

    def dma_wo(self, j, tok):
        s = Seq()
        s(f"s_add_u32 m0, {sW2K}, {R0 + j * 8192}")
        s(f"s_add_u32 {sT0}, {sWOO}, {j * 4 * 16384}")
        s(f"buffer_load_dwordx4 {vD128}, {SWO}, {sT0} offen lds")
        s(f"buffer_load_dwordx4 {vD128b}, {SWO}, {sT0} offen offset:1024 lds", tok=tok)
        return s

    def dma_wgu(self, j, tok):
        s = Seq()
        s(f"s_add_u32 m0, {sW2K}, {j * 8192}")
        s(f"s_add_u32 {sT0}, {sGUO}, {j * 4 * 28672}")
        s(f"buffer_load_dwordx4 {vDG}, {SWG}, {sT0} offen lds")
        s(f"buffer_load_dwordx4 {vDU}, {SWU}, {sT0} offen offset:1024 lds", tok=tok)
        return s

    def dma_wd(self, u, slot, tok):
        s = Seq()
        s(f"s_add_u32 m0, {sW8K}, {slot}")
        s(f"s_add_u32 {sT0}, {sWDO}, {u * 16384}")
        s(f"buffer_load_dwordx4 {vD128}, {SWD}, {sT0} offen lds")
        s(f"buffer_load_dwordx4 {vD128b}, {SWD}, {sT0} offen offset:1024 lds", tok=tok)
        return s

    def stats_finish(self, s, s1, tmp):
        a, b = V(s1), V(s1 + 1); t0, t1 = V(tmp), V(tmp + 1)
        s(f"v_mov_b32 {t0}, {a}")
        s(f"v_mov_b32 {t1}, {b}")
        s(f"v_permlane32_swap_b32 {a}, {t0}")
        s(f"v_permlane32_swap_b32 {b}, {t1}")
        s(f"v_add_f32 {a}, {a}, {t0}")
        s(f"v_add_f32 {b}, {b}, {t1}")
        s(f"v_mul_f32 {a}, {f32(-1.0 / 512)}, {a}")
        s(f"v_mul_f32 {b}, {f32(1.0 / 512)}, {b}")
        s(f"v_fma_f32 {t0}, -{a}, {a}, {b}")
        s(f"v_max_f32 {t0}, 0, {t0}")
        s(f"v_add_f32 {t0}, {f32(1e-5)}, {t0}")
        s(f"v_rsq_f32 {b}, {t0}")

    def stats_sum(self, s, base):
        for st in (8, 4, 2):
            for i in range(0, st, 2):
                s(f"v_pk_add_f32 {V(base + i, 2)}, {V(base + i, 2)}, {V(base + i + st, 2)}")

    def ln_tile(self, s, acc, css, mr, out):
        m2 = V(mr, 2)
        for cs in css:
            for i in range(0, 16, 2):
                s(f"v_pk_fma_f32 {V(acc + i, 2)}, {V(cs + i, 2)}, {m2}, {V(acc + i, 2)} op_sel_hi:[1,0,1]")
        for i in range(0, 16, 2):
            s(f"v_pk_mul_f32 {V(acc + i, 2)}, {V(acc + i, 2)}, {m2} op_sel:[0,1] op_sel_hi:[1,1]")
        for i in range(0, 16, 2):
            s(f"v_cvt_pk_bf16_f32 {V(out + i // 2)}, {V(acc + i)}, {V(acc + i + 1)}")

    def softmax16(self, s, p, out, tmp):
        t = V(tmp); t2 = V(tmp, 2)
        s(f"v_max3_f32 {t}, {V(p)}, {V(p + 1)}, {V(p + 2)}")
        u = V(tmp + 1)
        s(f"v_max3_f32 {u}, {V(p + 3)}, {V(p + 4)}, {V(p + 5)}")
        s(f"v_max3_f32 {t}, {t}, {V(p + 6)}, {V(p + 7)}")
        s(f"v_max3_f32 {u}, {u}, {V(p + 8)}, {V(p + 9)}")
        s(f"v_max3_f32 {t}, {t}, {V(p + 10)}, {V(p + 11)}")
        s(f"v_max3_f32 {u}, {u}, {V(p + 12)}, {V(p + 13)}")
        s(f"v_max3_f32 {t}, {t}, {V(p + 14)}, {V(p + 15)}")
        s(f"v_max_f32 {t}, {t}, {u}")
        s(f"v_mul_f32 {u}, {f32(-LOG2E)}, {t}")
        s(f"v_mov_b32 {t}, {sLOG2E}")
        for i in range(0, 16, 2):
            s(f"v_pk_fma_f32 {V(p + i, 2)}, {V(p + i, 2)}, {t2}, {t2} op_sel:[0,0,1] op_sel_hi:[1,0,1]")
        for i in range(16):
            s(f"v_exp_f32 {V(p + i)}, {V(p + i)}")
        for i in range(0, 8, 2):
            s(f"v_pk_add_f32 {V(tmp + 2 + i, 2)}, {V(p + i, 2)}, {V(p + 8 + i, 2)}")
        s(f"v_pk_add_f32 {V(tmp + 2, 2)}, {V(tmp + 2, 2)}, {V(tmp + 6, 2)}")
        s(f"v_pk_add_f32 {V(tmp + 4, 2)}, {V(tmp + 4, 2)}, {V(tmp + 8, 2)}")
        s(f"v_pk_add_f32 {V(tmp + 2, 2)}, {V(tmp + 2, 2)}, {V(tmp + 4, 2)}")
        s(f"v_add_f32 {t}, {V(tmp + 2)}, {V(tmp + 3)}")
        s(f"v_rcp_f32 {t}, {t}")
        for i in range(0, 16, 2):
            s(f"v_pk_mul_f32 {V(p + i, 2)}, {V(p + i, 2)}, {t2} op_sel_hi:[1,0]")
        for i in range(0, 16, 2):
            s(f"v_cvt_pk_bf16_f32 {V(out + i // 2)}, {V(p + i)}, {V(p + i + 1)}")

    def mfma32(self, s, d, a, b, first, rtags=None):
        c = "0" if first else V(d, 16)
        s(f"v_mfma_f32_32x32x16_bf16 {V(d, 16)}, {a}, {b}, {c}", rtags=rtags)

    def tr2(self, s, dst, addr, off, dq, tag):
        s(f"ds_read_b64_tr_b16 {dst(0, 2)}, {addr} offset:{off}", wtag=tag)
        s(f"ds_read_b64_tr_b16 {dst(2, 2)}, {addr} offset:{off + dq}", wtag=tag)

    def cs_write(self, s, acc, addr, off):
        s(f"s_mov_b32 s76, 1")
        s(f"s_mov_b32 s77, 1")
        s(f"s_mov_b64 exec, {sE0}")
        for i in range(4):
            s(f"ds_write_b128 {addr}, {V(acc + 4 * i, 4)} offset:{off + 16 * i}")
        s(f"s_mov_b64 exec, -1")

    def prologue(self):
        q = self.q
        q(f"""
        s_cmp_ge_u32 s2, 256
        s_cbranch_scc1 L_end
        s_load_dwordx16 s[80:95], s[0:1], 0
        s_load_dwordx4 s[96:99], s[0:1], 64
        s_load_dwordx2 s[100:101], s[0:1], 80
        v_lshrrev_b32 v12, 6, v0
        v_and_b32 {vLANE}, 63, v0
        v_readfirstlane_b32 {sW}, v12
        s_and_b32 {sG}, s2, 7
        s_lshr_b32 {sI}, s2, 3
        s_and_b32 {sRB}, {sI}, 1
        s_lshr_b32 {sHP}, {sI}, 1
        s_and_b32 {sRQ}, {sI}, 3
        s_lshr_b32 {sCT}, {sI}, 2
        s_lshl_b32 {sW2K}, {sW}, 11
        s_lshl_b32 {sW8K}, {sW}, 13
        v_lshlrev_b32 {vL16}, 4, {vLANE}
        """)
        q(f"""
        v_lshrrev_b32 v12, 5, {vLANE}
        v_and_b32 v13, 31, {vLANE}
        v_bfe_u32 v14, {vLANE}, 4, 1
        v_bfe_u32 v15, {vLANE}, 2, 2
        v_and_b32 v16, 3, {vLANE}
        v_lshrrev_b32 v17, 1, v16
        v_and_b32 v20, 1, v16
        v_lshl_add_u32 v17, v20, 1, v17
        v_lshrrev_b32 v18, 3, {vLANE}
        v_and_b32 v19, 7, {vLANE}
        """)
        q(f"""
        v_lshrrev_b32 v20, 2, {vLANE}
        v_mul_u32_u24 v20, 3072, v20
        v_lshl_add_u32 {vDQ}, v16, 4, v20
        """)
        q(f"""
        s_lshl_b32 {sT0}, {sHP}, 6
        s_mul_i32 {sT1}, {sW}, 49152
        s_add_u32 {sQKVO}, {sT0}, {sT1}
        s_mul_i32 {sT1}, {sW}, {8 * 49152}
        s_add_u32 {sT3}, {sT0}, {sT1}
        s_lshl_b32 {sMT1}, {sG}, 3
        s_lshl_b32 {sT0}, {sRB}, 2
        s_add_u32 {sMT1}, {sMT1}, {sT0}
        s_add_u32 {sMT1}, {sMT1}, {sW}
        """)
        q.wait_lgkm0()
        def srd(d, p, size, sub=0):
            b = int(d[2:].split(":")[0])
            if sub:
                q(f"s_sub_u32 s{b}, s{p}, {sub}\ns_subb_u32 s{b + 1}, s{p + 1}, 0")
            else:
                q(f"s_mov_b32 s{b}, s{p}\ns_mov_b32 s{b + 1}, s{p + 1}")
            q(f"s_mov_b32 s{b + 2}, {size + sub}\ns_mov_b32 s{b + 3}, 0x20000")
        srd(SX, 80, 2097152); srd(SQKV, 82, 1572864); srd(SWS, 100, WS_SIZE); srd(SDBG, 98, 256)
        self.srd = srd

    def prologue2(self):
        q = self.q; srd = self.srd
        srd(SPHI, 84, 16384); srd(SWO, 86, 524288); srd(SWG, 90, 1835008); srd(SWU, 92, 1835008, sub=1024)
        srd(SWD, 94, 1835008); srd(SOUT, 96, 2097152); srd(SWS3, 100, WS_SIZE)
        q(f"""
        s_cmp_ge_u32 {sI}, 28
        s_cselect_b32 s18, 0, s18
        s_cselect_b32 s22, 0, s22
        s_cselect_b32 s38, 0, s38
        s_mov_b32 {sLOG2E}, {f32(LOG2E)}
        s_mov_b32 {sBUD}, 200000
        s_mov_b32 {sMODE}, 1
        s_mul_i32 {sFLG}, {sG}, {FLG_G}
        s_add_u32 {sFLG}, {sFLG}, {FLG_OFF}
        s_mul_i32 {sKV}, {sHP}, {KV_HP}
        s_and_b32 {sT0}, {sW}, 1
        s_lshl_b32 {sMT2}, {sRQ}, 1
        s_add_u32 {sMT2}, {sMT2}, {sT0}
        s_lshr_b32 {sT0}, {sW}, 1
        s_lshl_b32 {sPART}, {sCT}, 1
        s_add_u32 {sPART}, {sPART}, {sT0}
        s_lshl_b32 {sMT3}, {sW}, 1
        s_lshl_b32 {sT0}, {sI}, 7
        s_mul_i32 {sT1}, {sW}, 28672
        s_add_u32 {sGUO}, {sT0}, {sT1}
        s_lshl_b32 {sT0}, {sCT}, 7
        s_mul_i32 {sT1}, {sW}, {28 * 16384}
        s_add_u32 {sWDO}, {sT0}, {sT1}
        s_lshl_b32 {sT1}, {sW}, 14
        s_add_u32 {sWOO}, {sT0}, {sT1}
        s_getreg_b32 {sT0}, hwreg(HW_REG_XCC_ID)
        s_and_b32 {sT0}, {sT0}, 15
        s_mul_i32 {sT1}, {sT0}, {sT0}
        s_lshl_b32 {sT1}, {sT1}, 15
        s_lshl_b32 {sT0}, {sT0}, 6
        s_add_u32 {sADD}, {sT0}, {sT1}
        s_add_u32 {sADD}, {sADD}, 1
        """)
        q(f"""
        v_lshl_add_u32 v20, v12, 3, v15
        v_lshl_add_u32 v21, v14, 2, v17
        v_lshlrev_b32 v22, 3, v21
        v_lshl_add_u32 {vT64}, v20, 6, v22
        v_lshrrev_b32 v23, 1, v15
        v_lshl_add_u32 v22, v23, 6, v22
        v_lshl_add_u32 {vT128}, v20, 7, v22
        """)
        q(f"""
        v_lshlrev_b32 v20, 11, v12
        v_lshl_add_u32 v20, v14, 10, v20
        v_lshl_add_u32 v20, v15, 7, v20
        v_lshl_add_u32 v21, v14, 1, v23
        v_lshl_add_u32 v20, v21, 5, v20
        v_lshl_add_u32 {vTG}, v17, 3, v20
        """)
        q(f"""
        v_lshlrev_b32 v20, 2, v14
        v_xor_b32 v20, v19, v20
        v_lshlrev_b32 v20, 4, v20
        v_lshl_add_u32 {vD128}, v18, 10, v20
        v_add_u32 {vD128b}, 7168, {vD128}
        v_lshlrev_b32 v20, 1, v14
        v_xor_b32 v20, v19, v20
        v_lshlrev_b32 v20, 4, v20
        v_mul_u32_u24 v21, 3584, v18
        v_add_u32 {vDG}, v20, v21
        v_xor_b32 {vDU}, 64, {vDG}
        v_lshlrev_b32 v20, 4, v12
        v_lshl_add_u32 {vROW}, v13, 10, v20
        """)
        q(f"""
        v_cmp_eq_u32 vcc, 0, {vLANE}
        v_mov_b32 v20, 0x7ff00000
        v_cndmask_b32 v28, v20, 0, vcc
        """.replace("v_cndmask_b32 v28, v20, 0, vcc", "v_cndmask_b32_e64 v28, v20, 0, vcc"))

    def zero_role(self):
        L = uid("L_z")
        t = f"""
        s_cmp_lg_u32 {sW}, 3
        s_cbranch_scc1 {L}_skip
        s_and_b32 {sT0}, {sHP}, 7
        s_cmp_lg_u32 {sT0}, {sG}
        s_cbranch_scc1 {L}_skip
        s_mul_i32 {sT0}, {sHP}, {KV_HP}
        s_mov_b32 {sT1}, 9
        s_lshl_b32 {sT2}, {sHP}, 2
        s_cmp_eq_u32 {sRB}, 0
        s_cbranch_scc1 {L}_go
        s_cmp_ge_u32 {sHP}, 8
        s_cbranch_scc1 {L}_skip
        s_mul_i32 {sT0}, {sG}, {FLG_G}
        s_add_u32 {sT0}, {sT0}, {FLG_OFF}
        s_mov_b32 {sT1}, 6
        s_lshl_b32 {sT2}, {sG}, 2
        s_add_u32 {sT2}, {sT2}, 64
        {L}_go:
        v_mov_b32 v24, 0
        v_mov_b32 v25, 0
        v_mov_b32 v26, 0
        v_mov_b32 v27, 0
        {L}_loop:
        buffer_store_dwordx4 v[24:27], {vL16}, {SWS}, {sT0} offen sc1
        s_add_u32 {sT0}, {sT0}, 1024
        s_sub_u32 {sT1}, {sT1}, 1
        s_cmp_lg_u32 {sT1}, 0
        s_cbranch_scc1 {L}_loop
        v_lshlrev_b32 v25, 20, {vLANE}
        s_waitcnt vmcnt(0)
        v_mov_b32 v24, 1
        buffer_store_dword v24, v25, {SDBG}, {sT2} offen sc1
        s_waitcnt vmcnt(0)
        {L}_skip:
        """
        t = t.replace("v_lshlrev_b32 v25, 20", "s_nop 2\nv_lshlrev_b32 v25, 20")
        self.q.raw(t, writes={"v24", "v25", "v26", "v27"})

    XF = Reg("v", 128)
    def k1_main_groups(self, L, vKV):
        def tr(s_):
            g = Seq()
            for t in range(2):
                slot = (2 * s_ + t) % 6
                self.tr2(g, Reg("a", WRING.lo + 4 * slot), vKV, s_ * 2048 + t * 1024, 256, ("Wkv", L, s_, t))
            return g
        def mm(s_, t):
            g = Seq()
            slot = (2 * s_ + t) % 6
            self.mfma32(g, 48 + 16 * t, WRING(4 * slot, 4), self.XF(4 * s_, 4), s_ == 0,
                        rtags={1: ("Wkv", L, s_, t), 2: ("x", L, s_)})
            return g
        return tr, mm

    def k1_first(self):
        q = self.q; L = 0
        XF = self.XF
        q(f"""
        v_lshrrev_b32 v20, 4, {vLANE}
        v_xor_b32 v20, v19, v20
        v_lshlrev_b32 v20, 4, v20
        v_lshl_add_u32 v48, v18, 10, v20
        v_xor_b32 v49, 64, v48
        v_add_u32 v49, 7168, v49
        v_add_u32 v50, {2 * 7168}, v48
        v_add_u32 v51, {2 * 7168}, v49
        s_lshl_b32 {sT2}, {sMT1}, 15
        """)
        self.zero_role()
        q(f"s_lshl_b32 {sT2}, {sMT1}, 15")
        xt = [Tok() for _ in range(8)]; wt = [Tok() for _ in range(8)]
        slot = lambda cp: (R3 if (cp & 3) < 2 else R1) + (cp & 1) * 4096
        def dma_x(cp):
            s = Seq()
            s(f"s_add_u32 m0, {sW8K}, {slot(cp)}")
            s(f"s_add_u32 {sT0}, {sT2}, {cp * 128}")
            for j in range(4):
                s(f"buffer_load_dwordx4 v{48 + j}, {SX}, {sT0} offen offset:{j * 1024} lds", tok=xt[cp] if j == 3 else None)
            return s
        for cp in range(4):
            q.extend(dma_x(cp)); q.extend(self.dma_wkv(cp, wt[cp]))
        self.prologue2()
        q("v_mov_b32 v24, v48\nv_mov_b32 v25, v49\nv_mov_b32 v26, v50\nv_mov_b32 v27, v51")
        q(f"""
        v_bfe_u32 v20, v13, 1, 3
        v_xor_b32 v20, v12, v20
        v_lshlrev_b32 v20, 4, v20
        v_lshl_add_u32 v20, v13, 7, v20
        v_add_u32 v20, {sW8K}, v20
        v_xor_b32 v21, 32, v20
        v_xor_b32 v22, 64, v20
        v_xor_b32 v23, 96, v20
        """)
        q(f"""
        v_lshl_add_u32 v18, v12, 3, v15
        v_lshrrev_b32 v16, 1, v16
        v_lshl_add_u32 v16, v14, 1, v16
        v_lshlrev_b32 v16, 3, v16
        v_lshl_add_u32 v16, v18, 5, v16
        s_lshl_b32 {sT1}, {sW}, 10
        s_add_u32 {sT1}, {sT1}, {R2}
        v_add_u32 v16, {sT1}, v16
        v_bfe_u32 v17, {vLANE}, 2, 1
        v_mul_u32_u24 v17, 0x8000, v17
        v_lshl_add_u32 v17, v17, 16, v17
        s_mov_b32 m0, {sT1}
        s_lshl_b32 {sT0}, {sHP}, 10
        """)
        tphi = Tok()
        q(f"buffer_load_dwordx4 {vL16}, {SPHI}, {sT0} offen lds", tok=tphi)
        q(f"""
        s_lshl_b32 {sT0}, {sG}, 3
        s_add_u32 {sT0}, {sT0}, {sMT2}
        s_lshl_b32 {sT0}, {sT0}, 15
        s_lshl_b32 {sT1}, {sPART}, 6
        s_add_u32 {sT0}, {sT0}, {sT1}
        buffer_load_dwordx4 v[80:83], {vROW}, {SX}, {sT0} offen
        buffer_load_dwordx4 v[84:87], {vROW}, {SX}, {sT0} offen offset:32
        v_add_u32 v12, {R0}, {vT64}
        v_mov_b32 v88, 0x3f803f80
        v_mov_b32 v89, 0x3f803f80
        v_mov_b32 v90, 0x3f803f80
        v_mov_b32 v91, 0x3f803f80
        v_mov_b32 v92, 0
        v_mov_b32 v93, 0
        """)
        vKV = "v12"
        tr, mm = self.k1_main_groups(L, vKV)
        def dma_x2(cp):
            s = Seq()
            s(f"s_add_u32 m0, {sW8K}, {slot(cp)}")
            s(f"s_add_u32 {sT0}, {sT2}, {cp * 128}")
            for j in range(4):
                s(f"buffer_load_dwordx4 v{24 + j}, {SX}, {sT0} offen offset:{j * 1024} lds", tok=xt[cp] if j == 3 else None)
            return s
        self.ts("start")
        wq = [Tok() for _ in range(8)]
        for cp in range(8):
            q.wait_tok(xt[cp])
            for e in range(4):
                q(f"ds_read_b128 {XF(16 * cp + 4 * e, 4)}, v{20 + e} offset:{slot(cp)}", wtag=("x", L, 4 * cp + e))
            q.wait_tok(wt[cp])
            q.wait_lgkm0()
            q("s_barrier")
            if cp < 4:
                q.extend(dma_x2(cp + 4)); q.extend(self.dma_wkv(cp + 4, wt[cp + 4]))
            elif cp >= 6:
                for j in range(4):
                    q.extend(self.dma_wq(4 * (cp - 6) + j, wq[4 * (cp - 6) + j]))
            q.extend(tr(4 * cp)); q.extend(tr(4 * cp + 1))
            for i in range(16):
                q(f"v_dot2c_f32_bf16 v92, {XF(16 * cp + i)}, v88")
                q(f"v_dot2c_f32_bf16 v93, {XF(16 * cp + i)}, {XF(16 * cp + i)}")
            for e in range(4):
                s_ = 4 * cp + e
                q.extend(mm(s_, 0)); q.extend(mm(s_, 1))
                if e < 2: q.extend(tr(s_ + 2))
            if cp == 3:
                q.wait_tok(tphi)
                for hd in range(2):
                    q(f"ds_read_b64_tr_b16 v[{96 + 4 * hd}:{97 + 4 * hd}], v16 offset:{hd * 512}")
                    q(f"ds_read_b64_tr_b16 v[{98 + 4 * hd}:{99 + 4 * hd}], v16 offset:{hd * 512 + 128}")
                for i in range(8):
                    q(f"v_xor_b32 v{96 + i}, v17, v{96 + i}")
                    q(f"v_accvgpr_write_b32 {WPHI(i)}, v{96 + i}")
                for i in range(8):
                    q(f"v_lshlrev_b32 {XRES(2 * i)}, 16, v{80 + i}")
                    q(f"v_and_b32 {XRES(2 * i + 1)}, 0xffff0000, v{80 + i}")
        q(f"""
        s_and_b32 {sT0}, {sW}, 1
        s_lshl_b32 {sT0}, {sT0}, 10
        s_lshr_b32 {sT1}, {sW}, 1
        s_lshl_b32 {sT1}, {sT1}, 15
        s_add_u32 {sT0}, {sT0}, {sT1}
        v_add_u32 v13, {sT0}, v12
        """)
        def ctr(j):
            g = Seq(); self.tr2(g, Reg("a", WRING.lo + 4 * (j % 6)), "v13", j * 2048, 256, ("cs", j)); return g
        for j in range(4): q.extend(ctr(j))
        for j in range(16):
            self.mfma32(q, 96, WRING(4 * (j % 6), 4), "v[88:91]", j == 0, rtags={1: ("cs", j)})
            if j + 4 < 16: q.extend(ctr(j + 4))
        self.stats_finish(q, 92, 94)
        q(f"""
        s_and_b32 {sT0}, {sW}, 1
        s_lshl_b32 {sT0}, {sT0}, 1
        s_lshr_b32 {sT1}, {sW}, 1
        s_add_u32 {sT0}, {sT0}, {sT1}
        s_lshl_b32 {sT0}, {sT0}, 7
        s_add_u32 {sT0}, {sT0}, {CS1}
        v_lshrrev_b32 v13, 5, {vLANE}
        v_lshlrev_b32 v13, 6, v13
        v_add_u32 v13, {sT0}, v13
        """)
        self.cs_write(q, 96, "v13", 0)
        self.wq_tok = wq

    def k1_second(self):
        q = self.q; L = 1; XF = self.XF
        q(f"""
        v_and_b32 v12, 15, {vLANE}
        v_lshlrev_b32 v12, 2, v12
        s_and_b32 {sT0}, {sMT1}, 7
        s_lshl_b32 {sT0}, {sT0}, 6
        s_add_u32 {sT0}, {sT0}, {sFLG}
        s_add_u32 {sT0}, {sT0}, {FX2}
        """)
        self.poll("v12", SWS, sT0)
        self.ts("fx2")
        q(f"""
        s_lshl_b32 {sT2}, {sMT1}, 15
        s_add_u32 {sT2}, {sT2}, {X2_OFF}
        v_add_u32 v12, {R0}, {vT64}
        """)
        def xl(s_):
            g = Seq()
            if s_ % 4 == 0: g(f"s_add_u32 {sT1}, {sT2}, {s_ * 1024}")
            g(f"buffer_load_dwordx4 {XF(4 * s_, 4)}, {vL16}, {SWS}, {sT1} offen offset:{(s_ % 4) * 1024} sc1", wtag=("x", L, s_))
            return g
        for s_ in range(8): q.extend(xl(s_))
        q("s_barrier")
        tr, mm = self.k1_main_groups(L, "v12")
        q.extend(tr(0)); q.extend(tr(1))
        wq = [Tok() for _ in range(8)]
        for s_ in range(32):
            q.extend(mm(s_, 0))
            if s_ + 8 < 32: q.extend(xl(s_ + 8))
            elif s_ == 24:
                q(f"""
                s_lshl_b32 {sT1}, {sMT1}, 12
                s_add_u32 {sT1}, {sT1}, {STAT_OFF + 2 * 64 * 4096}
                """)
                for i in range(4):
                    q(f"buffer_load_dwordx4 {V(92 + 4 * i, 4)}, {vL16}, {SWS}, {sT1} offen offset:{i * 1024} sc1")
            q.extend(mm(s_, 1))
            if s_ + 2 < 32: q.extend(tr(s_ + 2))
        for j in range(8): q.extend(self.dma_wq(j, wq[j]))
        self.stats_sum(q, 92)
        self.stats_finish(q, 92, 94)
        self.wq_tok = wq

    def k1_rest(self, L):
        q = self.q; XF = self.XF
        self.ts("k1main")
        self.barrier()
        wo_t = [Tok() for _ in range(8)]
        for j in range(8): q.extend(self.dma_wo(j, wo_t[j]))
        q(f"""
        v_lshrrev_b32 v13, 5, {vLANE}
        v_lshlrev_b32 v13, 6, v13
        v_add_u32 v13, {CS1}, v13
        """)
        for i in range(8):
            q(f"ds_read_b128 {V(96 + 4 * i, 4)}, v13 offset:{(i // 4) * 128 + (i % 4) * 16}")
        self.ln_tile(q, 48, [96, 112], 92, 80)
        for i in range(8):
            q(f"ds_read_b128 {V(96 + 4 * i, 4)}, v13 offset:{256 + (i // 4) * 128 + (i % 4) * 16}")
        self.mfma32(q, 48, WPHI(0, 4), V(80, 4), True)
        self.ln_tile(q, 64, [96, 112], 92, 112)
        self.mfma32(q, 96, WPHI(4, 4), V(84, 4), True)
        q(f"""
        v_and_b32 v14, 31, {vLANE}
        s_lshl_b32 {sT0}, {sW}, 5
        v_add_u32 v14, {sT0}, v14
        v_mul_u32_u24 v14, {PH_S}, v14
        v_lshrrev_b32 v16, 5, {vLANE}
        v_add_u32 v14, {R2}, v14
        v_lshl_add_u32 v15, v16, 5, v14
        v_lshl_add_u32 v14, v16, 4, v14
        ds_write_b128 v14, v[112:115]
        ds_write_b128 v14, v[116:119] offset:32
        """)
        self.softmax16(q, 48, 64, 80)
        q("ds_write_b128 v15, v[64:67] offset:64\nds_write_b128 v15, v[68:71] offset:80")
        self.softmax16(q, 96, 72, 80)
        q("ds_write_b128 v15, v[72:75] offset:128\nds_write_b128 v15, v[76:79] offset:144")
        q(f"""
        v_lshrrev_b32 v14, 4, {vLANE}
        v_bfe_u32 v15, {vLANE}, 2, 2
        v_lshl_add_u32 v15, v14, 3, v15
        v_mul_u32_u24 v15, {PH_S}, v15
        v_and_b32 v16, 3, {vLANE}
        v_lshl_add_u32 v15, v16, 3, v15
        s_lshr_b32 {sT0}, {sW}, 1
        s_lshl_b32 {sT1}, {sT0}, 5
        s_add_u32 {sT1}, {sT1}, {R2}
        v_add_u32 v16, {sT1}, v15
        s_lshl_b32 {sT1}, {sW}, 5
        s_add_u32 {sT1}, {sT1}, {R2 + 64}
        v_add_u32 v17, {sT1}, v15
        v_mov_b32 v88, 0x3f803f80
        v_mov_b32 v89, 0x3f803f80
        v_mov_b32 v90, 0x3f803f80
        v_mov_b32 v91, 0x3f803f80
        """)
        q(f"""
        v_and_b32 v19, 15, {vLANE}
        v_lshlrev_b32 v19, 2, v19
        v_lshl_add_u32 v18, v14, 9, v19
        v_lshl_add_u32 v19, v14, 28, v19
        s_mul_i32 {sT0}, {sT0}, 2176
        s_and_b32 {sT1}, {sW}, 1
        s_lshl_b32 {sT1}, {sT1}, 6
        s_add_u32 {sT0}, {sT0}, {sT1}
        s_add_u32 {sT0}, {sT0}, {sKV}
        s_add_u32 {sT2}, {sT0}, {KV_OFF + L * 4352}
        """)
        if L == 0:
            q(f"v_min_u32 v20, 23, {vLANE}\nv_lshlrev_b32 v20, 2, v20")
            self.poll("v20", SDBG, "0")
        q.wait_tok(*self.wq_tok)
        self.barrier()
        for st in range(4):
            self.tr2(q, Reg("v", 48 + 8 * st), "v16", st * 32 * PH_S, 4 * PH_S, None)
            self.tr2(q, Reg("v", 52 + 8 * st), "v17", st * 32 * PH_S, 4 * PH_S, None)
        for st in range(4):
            c0 = "0" if st == 0 else "v[80:83]"; c1 = "0" if st == 0 else "v[84:87]"
            q(f"v_mfma_f32_16x16x32_bf16 v[80:83], {V(48 + 8 * st, 4)}, {V(52 + 8 * st, 4)}, {c0}")
            q(f"v_mfma_f32_16x16x32_bf16 v[84:87], v[88:91], {V(52 + 8 * st, 4)}, {c1}")
        for r in range(4):
            q(f"buffer_atomic_add_f32 v{80 + r}, v18, {SWS}, {sT2} offen offset:{r * 128}")
        q(f"buffer_atomic_add_f32 v84, v19, {SWS}, {sT2} offen offset:2048")
        if L == 0:
            q(f"""
            v_mov_b32 v85, {sADD}
            s_cmp_eq_u32 {sW}, 0
            s_cselect_b32 {sT0}, {sFLG}, 0x7ff00000
            buffer_atomic_add v85, v28, {SWS}, {sT0} offen offset:{FREG - 1024}
            """.replace(f"s_cselect_b32 {sT0}, {sFLG}, 0x7ff00000", f"s_cselect_b32 {sT0}, {sFLG}, 0x7000000\ns_add_u32 {sT0}, {sT0}, 1024"))
        self.ts("atomics")
        self.gu_t = [Tok() for _ in range(16)]
        q(f"v_add_u32 v12, {R1}, {vT64}")
        def tr(s_):
            g = Seq(); self.tr2(g, Reg("a", WRING.lo + 4 * (s_ % 6)), "v12", s_ * 1024, 256, ("Wq", L, s_)); return g
        for s_ in range(4): q.extend(tr(s_))
        for s_ in range(32):
            self.mfma32(q, 48, WRING(4 * (s_ % 6), 4), XF(4 * s_, 4), s_ == 0, rtags={1: ("Wq", L, s_), 2: ("x", L, s_)})
            self.mfma32(q, 64, WRING(4 * (s_ % 6), 4), "v[88:91]", s_ == 0, rtags={1: ("Wq", L, s_)})
            if s_ + 4 < 32: q.extend(tr(s_ + 4))
            if s_ % 8 == 1: q.extend(self.dma_wgu(s_ // 8, self.gu_t[s_ // 8]))
        self.ln_tile(q, 48, [64], 92, 80)
        self.mfma32(q, 48, WPHI(0, 4), V(80, 4), True)
        self.mfma32(q, 64, WPHI(4, 4), V(84, 4), True)
        self.softmax16(q, 48, 96, 80)
        self.softmax16(q, 64, 104, 80)
        self.ts("qpart")
        q.wait_vm0()
        q("s_barrier")
        q(f"""
        v_mov_b32 v80, 1
        s_cmp_eq_u32 {sW}, 0
        s_cselect_b32 {sT0}, {sKV}, 0x7000000
        s_add_u32 {sT0}, {sT0}, {KV_OFF + 8704 + L * 128}
        buffer_atomic_add v80, v28, {SWS}, {sT0} offen
        """)
        q(f"""
        s_lshr_b32 {sT0}, {sW}, 1
        s_lshl_b32 {sT1}, {sT0}, 6
        s_lshl_b32 {sT0}, {sT0}, 15
        s_add_u32 {sT0}, {sT0}, {R0}
        v_add_u32 v12, {sT0}, {vT128}
        v_xor_b32 v12, {sT1}, v12
        v_xor_b32 v13, 64, v12
        """)
        for j in range(16):
            for nt in range(2):
                self.tr2(q, Reg("a", PARK.lo + 8 * j + 4 * nt), f"v{12 + nt}", j * 2048, 512, ("wo", L, j, nt))
        if self.cfg.get("gu1", "prepoll") == "prepoll":
            for j in range(4, 8): q.extend(self.dma_wgu(j, self.gu_t[j]))
        q(f"""
        v_and_b32 v14, 1, {vLANE}
        s_add_u32 {sT0}, {sKV}, {KV_OFF + 8704 + L * 128}
        v_mov_b32 v15, {sT0}
        v_mov_b32 v16, 16
        """)
        if L == 0:
            q(f"""
            s_add_u32 {sT1}, {sFLG}, {FREG}
            v_mov_b32 v17, {sT1}
            v_cmp_eq_u32 vcc, 1, v14
            v_cndmask_b32 v15, v15, v17, vcc
            v_lshlrev_b32 v16, v14, v16
            """)
        self.poll("v15", SWS, "0", target="v16")
        if L == 0 and not self.cfg["force_slow"]:
            q(f"""
            v_readlane_b32 {sT0}, {vP}, 1
            s_lshl_b32 {sT1}, {sADD}, 5
            s_cmp_eq_u32 {sT0}, {sT1}
            s_cselect_b32 {sMODE}, 0, 1
            """)
        self.ts("kvpoll")
        q(f"""
        s_lshl_b32 {sT0}, {sW}, 10
        s_add_u32 {sT0}, {sT0}, {sKV}
        s_add_u32 {sT0}, {sT0}, {KV_OFF + L * 4352}
        buffer_load_dwordx4 v[48:51], {vL16}, {SWS}, {sT0} offen sc1
        s_add_u32 {sT0}, {sKV}, {KV_OFF + L * 4352 + 4096}
        v_and_b32 v14, 15, {vLANE}
        v_lshlrev_b32 v14, 4, v14
        buffer_load_dwordx4 v[52:55], v14, {SWS}, {sT0} offen sc1
        v_lshrrev_b32 v15, 3, v0
        v_mul_u32_u24 v15, 80, v15
        v_and_b32 v16, 7, {vLANE}
        v_lshl_add_u32 v15, v16, 3, v15
        v_add_u32 v15, {KVB}, v15
        v_bfe_u32 v17, {vLANE}, 3, 1
        v_mul_u32_u24 v17, 80, v17
        v_lshl_add_u32 v17, v16, 3, v17
        v_add_u32 v17, {KVB + 32 * 80}, v17
        """)
        q(f"""
        v_and_b32 v18, 3, {vLANE}
        v_bfe_u32 v19, {vLANE}, 2, 1
        v_lshl_add_u32 v18, v19, 3, v18
        v_bfe_u32 v19, {vLANE}, 3, 1
        v_lshl_add_u32 v18, v19, 2, v18
        v_bfe_u32 v19, {vLANE}, 4, 1
        v_lshl_add_u32 v18, v19, 4, v18
        v_min_u32 v18, 16, v18
        v_mul_u32_u24 v18, 80, v18
        v_lshrrev_b32 v19, 5, {vLANE}
        v_lshl_add_u32 v18, v19, 5, v18
        v_add_u32 v18, {KVB}, v18
        v_cvt_pk_bf16_f32 v48, v48, v49
        v_cvt_pk_bf16_f32 v49, v50, v51
        ds_write_b64 v15, v[48:49]
        v_cvt_pk_bf16_f32 v52, v52, v53
        v_cvt_pk_bf16_f32 v53, v54, v55
        ds_write_b64 v17, v[52:53]
        """)
        self.barrier()
        for hd in range(2):
            for s_ in range(2):
                q(f"ds_read_b128 {V(80 + 8 * hd + 4 * s_, 4)}, v18 offset:{hd * 17 * 80 + 16 * s_}")
        for hd in range(2):
            for s_ in range(2):
                self.mfma32(q, 48 + 16 * hd, V(80 + 8 * hd + 4 * s_, 4), V(96 + 8 * hd + 4 * s_, 4), s_ == 0)
        q(f"""
        s_lshl_b32 {sT0}, {sMT1}, 15
        s_lshl_b32 {sT1}, {sHP}, 11
        s_add_u32 {sT0}, {sT0}, {sT1}
        s_add_u32 {sT0}, {sT0}, {O_OFF + L * 0x200000}
        s_and_b32 {sT1}, {sMT1}, 7
        s_lshl_b32 {sT1}, {sT1}, 6
        s_lshl_b32 {sT2}, {sHP}, 2
        s_add_u32 {sT1}, {sT1}, {sT2}
        s_add_u32 {sT1}, {sT1}, {sFLG}
        s_add_u32 {sT1}, {sT1}, {FO + L * 2048}
        """)
        for hd in range(2):
            b = 48 + 16 * hd
            q(f"v_add_f32 v{b + 8}, {f32(1e-6)}, v{b + 8}")
            q(f"v_rcp_f32 v{b + 8}, v{b + 8}")
            for i in range(0, 8, 2):
                q(f"v_pk_mul_f32 {V(b + i, 2)}, {V(b + i, 2)}, {V(b + 8, 2)} op_sel_hi:[1,0]")
            for i in range(0, 8, 2):
                q(f"v_cvt_pk_bf16_f32 v{b + 12 + i // 2}, v{b + i}, v{b + i + 1}")
        q.dual_store([f"buffer_store_dwordx4 v[60:63], {vL16}, {SWS}, {sT0} offen",
                      f"buffer_store_dwordx4 v[76:79], {vL16}, {SWS}, {sT0} offen offset:1024"], uid("o"))
        self.flag(sT1, SWS)
        self.ts("o")

    def x_tail(self, acc, xoff, stat_inst, flag_off, final):
        q = self.q
        for i in range(0, 16, 2):
            q(f"v_pk_add_f32 {XRES(i, 2)}, {XRES(i, 2)}, {V(acc + i, 2)}")
        for i in range(0, 16, 2):
            q(f"v_cvt_pk_bf16_f32 v{acc + i // 2}, {XRES(i)}, {XRES(i + 1)}")
        q(f"""
        s_lshl_b32 {sT2}, {sG}, 3
        s_add_u32 {sT2}, {sT2}, {sMT2}
        s_lshl_b32 {sT0}, {sT2}, 15
        """)
        if final:
            q(f"""
            s_lshl_b32 {sT1}, {sPART}, 6
            s_add_u32 {sT0}, {sT0}, {sT1}
            buffer_store_dwordx4 {V(acc, 4)}, {vROW}, {SOUT}, {sT0} offen
            buffer_store_dwordx4 {V(acc + 4, 4)}, {vROW}, {SOUT}, {sT0} offen offset:32
            """)
            return
        q(f"""
        s_lshl_b32 {sT1}, {sPART}, 11
        s_add_u32 {sT0}, {sT0}, {sT1}
        s_add_u32 {sT0}, {sT0}, {xoff}
        """)
        q.dual_store([f"buffer_store_dwordx4 {V(acc, 4)}, {vL16}, {SWS}, {sT0} offen",
                      f"buffer_store_dwordx4 {V(acc + 4, 4)}, {vL16}, {SWS}, {sT0} offen offset:1024"], uid("x"))
        t = acc + 8
        q(f"v_pk_add_f32 {V(t, 2)}, {XRES(0, 2)}, {XRES(2, 2)}")
        q(f"v_pk_mul_f32 {V(t + 2, 2)}, {XRES(0, 2)}, {XRES(0, 2)}")
        q(f"v_pk_fma_f32 {V(t + 2, 2)}, {XRES(2, 2)}, {XRES(2, 2)}, {V(t + 2, 2)}")
        for i in range(4, 16, 2):
            q(f"v_pk_add_f32 {V(t, 2)}, {V(t, 2)}, {XRES(i, 2)}")
            q(f"v_pk_fma_f32 {V(t + 2, 2)}, {XRES(i, 2)}, {XRES(i, 2)}, {V(t + 2, 2)}")
        q(f"""
        v_add_f32 v{t}, v{t}, v{t + 1}
        v_add_f32 v{t + 1}, v{t + 2}, v{t + 3}
        v_mov_b32 v{t + 2}, v{t}
        v_mov_b32 v{t + 3}, v{t + 1}
        v_permlane32_swap_b32 v{t}, v{t + 2}
        v_permlane32_swap_b32 v{t + 1}, v{t + 3}
        v_pk_add_f32 {V(t, 2)}, {V(t, 2)}, {V(t + 2, 2)}
        """)
        q(f"""
        v_lshrrev_b32 v12, 5, {vLANE}
        v_lshl_add_u32 v12, v12, 28, {vL16}
        s_lshl_b32 {sT0}, {sT2}, 12
        s_bfe_u32 {sT1}, {sPART}, 0x20001
        s_lshl_b32 {sT1}, {sT1}, 10
        s_add_u32 {sT0}, {sT0}, {sT1}
        s_lshr_b32 {sT1}, {sPART}, 3
        s_lshl_b32 {sT1}, {sT1}, 9
        s_add_u32 {sT0}, {sT0}, {sT1}
        s_and_b32 {sT1}, {sPART}, 1
        s_lshl_b32 {sT1}, {sT1}, 3
        s_add_u32 {sT0}, {sT0}, {sT1}
        s_add_u32 {sT0}, {sT0}, {STAT_OFF + stat_inst * 64 * 4096}
        s_lshl_b32 {sT1}, {sMT2}, 6
        s_lshl_b32 {sT2}, {sPART}, 2
        s_add_u32 {sT1}, {sT1}, {sT2}
        s_add_u32 {sT1}, {sT1}, {sFLG}
        s_add_u32 {sT1}, {sT1}, {flag_off}
        """)
        q.dual_store([f"buffer_store_dwordx2 {V(t, 2)}, v12, {SWS}, {sT0} offen"], uid("s"))
        self.flag(sT1, SWS)

    def k2(self, L):
        q = self.q
        if self.cfg.get("gu2", "k3") == "k2start":
            for j in range(8, 16): q.extend(self.dma_wgu(j, self.gu_t[j]))
        q(f"""
        v_and_b32 v12, 7, {vLANE}
        v_lshlrev_b32 v12, 2, v12
        s_lshl_b32 {sT0}, {sMT2}, 6
        s_lshr_b32 {sT1}, {sW}, 1
        s_lshl_b32 {sT2}, {sT1}, 5
        s_add_u32 {sT0}, {sT0}, {sT2}
        s_add_u32 {sT0}, {sT0}, {sFLG}
        s_add_u32 {sT0}, {sT0}, {FO + L * 2048}
        s_lshl_b32 {sT2}, {sG}, 3
        s_add_u32 {sT2}, {sT2}, {sMT2}
        s_lshl_b32 {sT2}, {sT2}, 15
        s_lshl_b32 {sT1}, {sT1}, 14
        s_add_u32 {sT2}, {sT2}, {sT1}
        s_add_u32 {sT2}, {sT2}, {O_OFF + L * 0x200000}
        """)
        self.poll("v12", SWS, sT0)
        self.ts("fo")
        OF = Reg("v", 128)
        def ol(j):
            g = Seq()
            if j % 4 == 0: g(f"s_add_u32 {sT1}, {sT2}, {j * 1024}")
            g(f"buffer_load_dwordx4 {OF(4 * j, 4)}, {vL16}, {SWS}, {sT1} offen offset:{(j % 4) * 1024} sc1", wtag=("o", L, j))
            return g
        for j in range(8): q.extend(ol(j))
        q(f"""
        s_lshl_b32 {sT0}, {sW}, 12
        s_add_u32 {sT0}, {sT0}, {R2}
        v_add_u32 v12, {sT0}, {vL16}
        v_xor_b32 v13, 0x2000, v12
        """)
        for j in range(16):
            for nt in range(2):
                self.mfma32(q, 48 + 16 * nt, PARK(8 * j + 4 * nt, 4), OF(4 * j, 4), j == 0,
                            rtags={1: ("wo", L, j, nt), 2: ("o", L, j)})
                if nt == 0 and j + 8 < 16: q.extend(ol(j + 8))
        for i in range(4):
            q(f"ds_write_b128 v12, {V(64 + 4 * i, 4)} offset:{i * 1024}")
        self.barrier()
        for i in range(4):
            q(f"ds_read_b128 {V(64 + 4 * i, 4)}, v13 offset:{i * 1024}")
        for i in range(0, 16, 2):
            q(f"v_pk_add_f32 {V(48 + i, 2)}, {V(48 + i, 2)}, {V(64 + i, 2)}")
        self.x_tail(48, X1_OFF + L * 0x200000, L, FX1 + L * 2048, False)
        self.ts("k2")

    def k3(self, L):
        q = self.q
        ACC = 48; XR = 176; NXR = 6
        q(f"""
        v_and_b32 v12, 31, {vLANE}
        v_lshlrev_b32 v12, 2, v12
        s_lshl_b32 {sT0}, {sMT3}, 6
        s_add_u32 {sT0}, {sT0}, {sFLG}
        s_add_u32 {sT0}, {sT0}, {FX1 + L * 2048}
        s_lshl_b32 {sT2}, {sG}, 3
        s_add_u32 {sT2}, {sT2}, {sMT3}
        s_lshl_b32 s78, {sT2}, 12
        s_add_u32 s78, s78, {STAT_OFF + L * 64 * 4096}
        s_mul_i32 s79, {sT2}, {112 * 1024}
        s_lshl_b32 {sT1}, {sI}, 12
        s_add_u32 s79, s79, {sT1}
        s_add_u32 s79, s79, {H_OFF + L * H_L}
        s_lshl_b32 {sT2}, {sT2}, 15
        s_add_u32 {sT2}, {sT2}, {X1_OFF + L * 0x200000}
        v_add_u32 v17, 0x8000, {vL16}
        v_mov_b32 v13, {vTG}
        v_xor_b32 v14, 32, {vTG}
        v_xor_b32 v15, 64, {vTG}
        v_xor_b32 v16, 96, {vTG}
        s_lshr_b32 {sT1}, {sW}, 1
        s_lshl_b32 {sT1}, {sT1}, 6
        v_add_u32 v18, {sW8K}, {vT128}
        v_xor_b32 v18, {sT1}, v18
        v_xor_b32 v19, 64, v18
        v_add_u32 v20, {R2}, v18
        v_add_u32 v21, {R2}, v19
        """)
        self.poll("v12", SWS, sT0)
        self.ts("fx1")
        def xl(s_):
            g = Seq()
            if s_ % 4 == 0: g(f"s_add_u32 {sT1}, {sT2}, {s_ * 1024}")
            for mt in range(2):
                g(f"buffer_load_dwordx4 {V(XR + 8 * (s_ % NXR) + 4 * mt, 4)}, {vL16 if mt == 0 else 'v17'}, {SWS3}, {sT1} offen offset:{(s_ % 4) * 1024} sc1",
                  wtag=("x1", L, s_, mt))
            return g
        for s_ in range(NXR - 1): q.extend(xl(s_))
        q("s_barrier")
        def tr(f):
            s_, t = divmod(f, 4)
            g = Seq()
            if f == 64:
                for i in range(4): g(f"v_add_u32 v{13 + i}, 0x10000, v{13 + i}")
            self.tr2(g, Reg("a", WRING.lo + 4 * (f % 6)), f"v{13 + t}", (s_ % 16) * 4096, 512, ("Wgu", L, f))
            return g
        wd_t = [Tok() for _ in range(28)]
        NS = 3
        def wd_issue(u): return self.dma_wd(u, R2 + (u % NS) * 2048, wd_t[u])
        def wd_park(u):
            g = Seq()
            g.wait_tok(wd_t[u])
            for nt in range(2):
                self.tr2(g, Reg("a", PARK.lo + 8 * u + 4 * nt), f"v{20 + nt}", (u % NS) * 2048, 512, ("wd", L, u, nt))
            g[-1].tok = Tok()
            return g
        for f in range(4): q.extend(tr(f))
        if L == 0:
            q("v_mov_b32 v224, 0x3f803f80\nv_mov_b32 v225, 0x3f803f80\nv_mov_b32 v226, 0x3f803f80\nv_mov_b32 v227, 0x3f803f80")
        issued = 0; parked = 0; last_park = {}
        gu_in_k3 = self.cfg.get('gu2', 'k3') == 'k3'
        def pump(s_):
            nonlocal issued, parked
            g = Seq()
            if issued - parked >= NS or (issued == 28 and parked < 28):
                p = wd_park(parked); last_park[parked % NS] = p[-1].tok; g.extend(p); parked += 1
            return g
        def pump_issue():
            nonlocal issued
            g = Seq()
            if issued < 28 and issued - parked < NS:
                if issued % NS in last_park: g.wait_tok(last_park[issued % NS])
                g.extend(wd_issue(issued)); issued += 1
            return g
        for s_ in range(32):
            for t in range(4):
                f = 4 * s_ + t
                for mt in range(2):
                    self.mfma32(q, ACC + 16 * (2 * t + mt) , WRING(4 * (f % 6), 4), V(XR + 8 * (s_ % NXR) + 4 * mt, 4), s_ == 0,
                                rtags={1: ("Wgu", L, f), 2: ("x1", L, s_, mt)})
                    if mt == 0 and t == 0 and s_ + NXR - 1 < 32: q.extend(xl(s_ + NXR - 1))
                    if mt == 0 and t == 1: q.extend(pump(s_))
                    if mt == 0 and t == 3: q.extend(pump_issue())
                    if mt == 0 and t == 2 and gu_in_k3 and s_ < 8: q.extend(self.dma_wgu(8 + s_, self.gu_t[8 + s_]))
                if gu_in_k3 and f + 4 in (64, 96):
                    c = (f + 4) // 32
                    q.wait_tok(*self.gu_t[4 * c:4 * c + 4]); q("s_barrier")
                if f + 4 < 128: q.extend(tr(f + 4))
        while parked < 28:
            q.extend(pump(99)); q.extend(pump_issue())
        self.ts("k3main")
        for mt in range(2):
            if mt == 1: q(f"s_add_u32 s78, s78, 4096")
            for i in range(4):
                q(f"buffer_load_dwordx4 {V(XR + 16 * mt + 4 * i, 4)}, {vL16}, {SWS3}, s78 offen offset:{i * 1024} sc1")
        if L == 0:
            q(f"""
            s_lshl_b32 {sT0}, {sW}, 5
            v_xor_b32 v13, {sT0}, {vTG}
            v_add_u32 v14, 0x10000, v13
            """)
            def ctr(j):
                g = Seq(); self.tr2(g, Reg("a", WRING.lo + 4 * (j % 6)), "v13" if j < 16 else "v14", (j % 16) * 4096, 512, ("cs3", j)); return g
            for j in range(4): q.extend(ctr(j))
            for j in range(32):
                self.mfma32(q, 240, WRING(4 * (j % 6), 4), "v[224:227]", j == 0, rtags={1: ("cs3", j)})
                if j + 4 < 32: q.extend(ctr(j + 4))
            q(f"""
            s_lshl_b32 {sT0}, {sW}, 7
            s_add_u32 {sT0}, {sT0}, {CS3}
            v_lshrrev_b32 v13, 5, {vLANE}
            v_lshlrev_b32 v13, 6, v13
            v_add_u32 v13, {sT0}, v13
            """)
            self.cs_write(q, 240, "v13", 0)
        self.barrier()
        q(f"""
        v_lshrrev_b32 v13, 5, {vLANE}
        v_lshlrev_b32 v13, 6, v13
        v_add_u32 v13, {CS3}, v13
        """)
        C1 = -2.0 * math.sqrt(2.0 / math.pi) * LOG2E
        C2 = C1 * 0.044715
        for mt in range(2):
            b = XR + 16 * mt
            self.stats_sum(q, b)
            self.stats_finish(q, b, b + 2)
            q(f"""
            v_mul_f32 v{b + 5}, v{b + 1}, v{b + 1}
            v_mul_f32 v{b + 4}, {f32(C1)}, v{b + 1}
            v_mul_f32 v{b + 5}, v{b + 5}, v{b + 1}
            v_mul_f32 v{b + 5}, {f32(C2)}, v{b + 5}
            """)
        for mt in range(2):
            b = XR + 16 * mt
            for t in range(4):
                a = ACC + 16 * (2 * t + mt)
                cs = 208 + 16 * (t % 2)
                for i in range(4):
                    q(f"ds_read_b128 {V(cs + 4 * i, 4)}, v13 offset:{t * 128 + i * 16}")
                for i in range(0, 16, 2):
                    q(f"v_pk_fma_f32 {V(a + i, 2)}, {V(cs + i, 2)}, {V(b, 2)}, {V(a + i, 2)} op_sel_hi:[1,0,1]")
                T = 240
                for i in range(0, 8, 2):
                    q(f"v_pk_mul_f32 {V(T + i, 2)}, {V(a + i, 2)}, {V(a + i, 2)}")
                for i in range(0, 8, 2):
                    q(f"v_pk_fma_f32 {V(T + i, 2)}, {V(T + i, 2)}, {V(b + 4, 2)}, {V(b + 4, 2)} op_sel:[0,1,0] op_sel_hi:[1,1,0]")
                for i in range(0, 8, 2):
                    q(f"v_pk_mul_f32 {V(T + i, 2)}, {V(T + i, 2)}, {V(a + i, 2)}")
                for i in range(8):
                    q(f"v_exp_f32 v{T + i}, v{T + i}")
                for i in range(0, 8, 2):
                    q(f"v_pk_mul_f32 {V(a + i, 2)}, {V(a + i, 2)}, {V(a + 8 + i, 2)}")
                for i in range(0, 8, 2):
                    q(f"v_pk_fma_f32 {V(T + i, 2)}, {V(T + i, 2)}, {V(b + 2, 2)}, {V(b + 2, 2)} op_sel_hi:[1,0,0]")
                for i in range(8):
                    q(f"v_rcp_f32 v{T + i}, v{T + i}")
                for i in range(0, 8, 2):
                    q(f"v_pk_mul_f32 {V(a + i, 2)}, {V(a + i, 2)}, {V(T + i, 2)}")
                for i in range(0, 8, 2):
                    q(f"v_cvt_pk_bf16_f32 v{a + 8 + i // 2}, v{a + i}, v{a + i + 1}")
                q.dual_store([f"buffer_store_dwordx4 {V(a + 8, 4)}, {vL16}, {SWS3}, s79 offen offset:{t * 1024}"], uid("h"))
            q(f"""
            s_add_u32 s79, s79, {112 * 1024}
            s_add_u32 {sT1}, {sMT3}, {mt}
            s_lshl_b32 {sT1}, {sT1}, 7
            s_lshl_b32 {sT0}, {sI}, 2
            s_add_u32 {sT1}, {sT1}, {sT0}
            s_add_u32 {sT1}, {sT1}, {sFLG}
            s_add_u32 {sT1}, {sT1}, {FH + L * 2048}
            """)
            self.flag(sT1, SWS3)
        self.ts("k3")

    def k4(self, L):
        q = self.q
        ACC = 48; HR = 112; NH = 36
        q(f"""
        v_and_b32 v12, 31, {vLANE}
        v_min_u32 v12, 6, v12
        v_lshlrev_b32 v12, 2, v12
        v_lshrrev_b32 v13, 5, {vLANE}
        v_lshl_add_u32 v12, v13, 7, v12
        s_lshl_b32 {sT0}, {sRQ}, 8
        s_mul_i32 {sT1}, {sW}, 28
        s_add_u32 {sT0}, {sT0}, {sT1}
        s_add_u32 {sT0}, {sT0}, {sFLG}
        s_add_u32 {sT0}, {sT0}, {FH + L * 2048}
        s_lshl_b32 {sT2}, {sG}, 2
        s_add_u32 {sT2}, {sT2}, {sRQ}
        s_mul_i32 {sT2}, {sT2}, {2 * 112 * 1024}
        s_lshl_b32 {sT1}, {sT1}, 10
        s_add_u32 {sT2}, {sT2}, {sT1}
        s_add_u32 {sT2}, {sT2}, {H_OFF + L * H_L}
        s_and_b32 {sT1}, {sW}, 1
        s_mul_i32 {sT1}, {sT1}, {112 * 1024}
        s_add_u32 s78, {sT2}, {sT1}
        s_sub_u32 s79, {sT2}, {sT1}
        s_add_u32 s79, s79, {112 * 1024}
        """)
        self.poll("v12", SWS, sT0)
        self.ts("fh")
        order = [(mt, u) for mt in range(2) for u in range(28)]
        def hl(n):
            mt, u = order[n]
            g = Seq()
            if u % 4 == 0: g(f"s_add_u32 {sT1}, s{78 + mt}, {u * 1024}")
            g(f"buffer_load_dwordx4 {V(HR + 4 * (n % NH), 4)}, {vL16}, {SWS}, {sT1} offen offset:{(u % 4) * 1024} sc1", wtag=("h", L, n))
            return g
        PRE = 10
        for n in range(PRE): q.extend(hl(n))
        wk = [Tok() for _ in range(8)]
        nk = 0
        for n in range(56):
            mt, u = order[n]
            for nt in range(2):
                self.mfma32(q, ACC + 16 * (2 * nt + mt), PARK(8 * u + 4 * nt, 4), V(HR + 4 * (n % NH), 4), u == 0,
                            rtags={1: ("wd", L, u, nt), 2: ("h", L, n)})
                if nt == 0:
                    if n + PRE < 56: q.extend(hl(n + PRE))
                    elif L == 0 and nk < 8:
                        q.extend(self.dma_wkv(nk, wk[nk])); nk += 1
        self.ts("k4main")
        q(f"""
        s_lshl_b32 {sT0}, {sW}, 14
        v_add_u32 v12, {sT0}, {vL16}
        v_xor_b32 v13, 0x4000, v12
        v_xor_b32 v14, 0x8000, v12
        v_xor_b32 v15, 0xc000, v12
        """)
        for d in range(1, 4):
            for i in range(4):
                q(f"ds_write_b128 v{12 + d}, {V(48 + 16 * d + 4 * i, 4)} offset:{d * 4096 + i * 1024}")
        self.barrier()
        for d in range(1, 4):
            for i in range(4):
                q(f"ds_read_b128 {V(48 + 16 * d + 4 * i, 4)}, v12 offset:{d * 4096 + i * 1024}")
        for d in range(1, 4):
            for i in range(0, 16, 2):
                q(f"v_pk_add_f32 {V(48 + i, 2)}, {V(48 + i, 2)}, {V(48 + 16 * d + i, 2)}")
        self.x_tail(48, X2_OFF, 2, FX2, L == 1)
        self.ts("k4")

    def build(self):
        q = self.q
        self.prologue()
        self.k1_first(); self.k1_rest(0); self.k2(0); self.k3(0); self.k4(0)
        self.k1_second(); self.k1_rest(1); self.k2(1); self.k3(1); self.k4(1)
        if self.cfg["ts"]:
            q(f"""
            s_lshl_b32 {sT0}, s2, 2
            s_add_u32 {sT0}, {sT0}, {sW}
            s_lshl_b32 {sT0}, {sT0}, 8
            s_add_u32 {sT0}, {sT0}, {TS_OFF}
            v_writelane_b32 {vTS}, {sMODE}, 62
            v_writelane_b32 {vTS}, {sBUD}, 63
            v_lshlrev_b32 v12, 2, {vLANE}
            buffer_store_dword {vTS}, v12, {SWS}, {sT0} offen
            """)
        (main, ool), seq = finalize(q, sMODE)
        hdr = open("interleave_layers__linear_kernel_hedgehog__geglu_ffn__prompt.s.ref").read().split("; Override")[0]
        out = [hdr.rstrip(), f"; @launch grid=(256,1,1) block=(256,1,1) lds={LDS_BYTES}",
               '.amdgcn_target "amdgcn-amd-amdhsa--gfx950"', ".text", f".globl {KNAME}", ".p2align 8",
               f".type {KNAME},@function", f"{KNAME}:", main, "L_end:", "    s_endpgm", ool, "    s_endpgm",
               '.section .rodata,"a"', ".p2align 6", f".amdhsa_kernel {KNAME}",
               "  .amdhsa_next_free_vgpr 512", "  .amdhsa_next_free_sgpr 102", "  .amdhsa_accum_offset 256",
               "  .amdhsa_group_segment_fixed_size 0", "  .amdhsa_kernarg_size 88", "  .amdhsa_user_sgpr_count 2",
               "  .amdhsa_user_sgpr_kernarg_segment_ptr 1", "  .amdhsa_system_sgpr_workgroup_id_x 1",
               "  .amdhsa_float_denorm_mode_32 3", "  .amdhsa_float_denorm_mode_16_64 3",
               ".end_amdhsa_kernel", ""]
        return "\n".join(out)


if __name__ == "__main__":
    cfg = dict(CFG)
    out = sys.argv[1]
    for a in sys.argv[2:]:
        k, v = a.split("=")
        cfg[k] = {"0": False, "1": True}.get(v, v)
    g = Gen(cfg)
    txt = g.build()
    open(out, "w").write(txt)
    if cfg["ts"]:
        open(out + ".tsnames", "w").write("\n".join(g.tsnames))
```

```python
import re

TRANS = ("v_exp_f32", "v_log_f32", "v_rcp_f32", "v_rsq_f32", "v_sqrt_f32", "v_sin_f32", "v_cos_f32")
_reg1 = re.compile(r"^-?(?:abs\()?([vas])(\d+)\)?$")
_regN = re.compile(r"^-?([vas])\[(\d+):(\d+)\]$")


def regs_of(tok):
    tok = tok.strip()
    m = _reg1.match(tok)
    if m:
        return [m.group(1) + m.group(2)]
    m = _regN.match(tok)
    if m:
        return [m.group(1) + str(i) for i in range(int(m.group(2)), int(m.group(3)) + 1)]
    if tok in ("vcc", "vcc_lo", "vcc_hi"):
        return ["vcc"]
    if tok == "exec":
        return ["exec"]
    if tok == "m0":
        return ["m0"]
    return []


def R(kind, lo, n=1):
    return f"{kind}{lo}" if n == 1 else f"{kind}[{lo}:{lo + n - 1}]"


def V(lo, n=1): return R("v", lo, n)
def A(lo, n=1): return R("a", lo, n)
def S(lo, n=1): return R("s", lo, n)


class Reg:
    def __init__(self, f, lo):
        self.f = f; self.lo = lo
    def __call__(self, off=0, n=1):
        return R(self.f, self.lo + off, n)


class Inst:
    __slots__ = ("text", "kind", "reads", "writes", "ops", "mn", "wtag", "rtags", "tok", "passes", "states", "slow")

    def __init__(self, text, kind, reads=(), writes=(), ops=(), mn=""):
        self.text = text; self.kind = kind
        self.reads = set(reads); self.writes = set(writes)
        self.ops = ops; self.mn = mn
        self.wtag = None; self.rtags = None; self.tok = None
        self.passes = 0; self.states = 1; self.slow = None


class Tok:
    def __init__(self, name=""):
        self.name = name


def parse(text):
    t = text.split(";")[0].strip()
    parts = t.split(None, 1)
    mn = parts[0]
    rest = parts[1] if len(parts) > 1 else ""
    ops = [o.strip() for o in rest.split(",")] if rest else []
    mods = []
    if ops:
        last = ops[-1].split()
        ops[-1] = last[0] if last else ""
        mods = last[1:]
    clean = []
    for o in ops:
        w = o.split()
        clean.append(w[0] if w else "")
        if len(w) > 1:
            mods += w[1:]
    ops = clean
    rd, wr = set(), set()
    allr = lambda xs: set(r for x in xs for r in regs_of(x))
    if mn.startswith("v_mfma"):
        i = Inst(text, "mfma", allr(ops[1:4]), allr(ops[:1]), ops, mn)
        i.passes = 8 if "32x32x16" in mn else 4
        assert "32x32x16" in mn or "16x16x32" in mn, mn
        return i
    if mn.startswith("v_cmp"):
        return Inst(text, "valu", allr(ops[1:]) | {"exec"}, allr(ops[:1]), ops, mn)
    if mn.startswith("v_readfirstlane") or mn.startswith("v_readlane"):
        return Inst(text, "valu", allr(ops[1:]), allr(ops[:1]), ops, mn)
    if mn.startswith("v_permlane"):
        return Inst(text, "valu", allr(ops[:2]), allr(ops[:2]), ops, mn)
    if mn.startswith("v_"):
        rd = allr(ops[1:])
        if mn.startswith(("v_fmac", "v_dot2c", "v_pk_fmac")):
            rd |= allr(ops[:1])
        return Inst(text, "trans" if mn.replace("_e32", "").replace("_e64", "") in TRANS else "valu", rd, allr(ops[:1]), ops, mn)
    if mn.startswith("s_load") or mn in ("s_memtime", "s_memrealtime"):
        return Inst(text, "smem", allr(ops[1:]), allr(ops[:1]), ops, mn)
    if mn == "s_nop":
        i = Inst(text, "nop", ops=ops, mn=mn); i.states = int(ops[0]) + 1
        return i
    if mn == "s_waitcnt":
        return Inst(text, "wait", ops=ops, mn=mn)
    if mn in ("s_barrier", "s_sleep", "s_setprio", "s_endpgm"):
        return Inst(text, "misc", ops=ops, mn=mn)
    if mn.startswith("s_cbranch") or mn == "s_branch":
        rd = {"vcc"} if "vcc" in mn else ({"exec"} if "exec" in mn else ({"scc"} if "scc" in mn else set()))
        return Inst(text, "branch", rd, (), ops, mn)
    if mn.startswith("s_cmp") or mn.startswith("s_bitcmp"):
        return Inst(text, "salu", allr(ops), {"scc"}, ops, mn)
    if mn.startswith("s_"):
        rd = allr(ops[1:]); wr = allr(ops[:1])
        if "saveexec" in mn:
            rd |= {"exec"}; wr |= {"exec"}
        if mn.startswith(("s_addk", "s_mulk")):
            rd |= wr
        if not mn.startswith(("s_mov", "s_getreg", "s_getpc", "s_cselect", "s_mul_i32", "s_mul_hi", "s_movk")):
            wr = wr | {"scc"}
        if mn.startswith(("s_cselect", "s_addc", "s_subb")):
            rd |= {"scc"}
        return Inst(text, "salu", rd, wr, ops, mn)
    if mn.startswith("buffer_load") or mn.startswith("global_load"):
        if "lds" in mods:
            return Inst(text, "dma", allr(ops) | {"m0"}, (), ops, mn)
        return Inst(text, "vload", allr(ops[1:]), allr(ops[:1]), ops, mn)
    if mn.startswith("buffer_store") or mn.startswith("buffer_atomic") or mn.startswith("global_store"):
        return Inst(text, "vstore", allr(ops), (), ops, mn)
    if mn.startswith("ds_read") or mn.startswith("ds_bpermute"):
        return Inst(text, "dsread", allr(ops[1:]), allr(ops[:1]), ops, mn)
    if mn.startswith("ds_write") or mn.startswith("ds_add"):
        return Inst(text, "dswrite", allr(ops), (), ops, mn)
    raise ValueError("cannot classify: " + text)


class Seq(list):
    def __call__(self, text, wtag=None, rtags=None, tok=None):
        for line in text.strip().split("\n"):
            line = line.strip()
            if not line or line.startswith(";"):
                continue
            i = parse(line)
            i.wtag = wtag; i.rtags = rtags; i.tok = tok
            self.append(i)
        return self[-1]

    def label(self, name):
        i = Inst(name + ":", "label"); i.states = 0
        self.append(i)

    def comment(self, text):
        i = Inst("; " + text, "comment"); i.states = 0
        self.append(i)

    def wait_tok(self, *toks):
        i = Inst("", "waittok"); i.tok = list(toks); i.states = 0
        self.append(i)

    def wait_vm0(self):
        i = Inst("", "waitvm0"); i.states = 0
        self.append(i)

    def wait_lgkm0(self):
        i = Inst("", "waitlgkm0"); i.states = 0
        self.append(i)

    def raw(self, lines, drains_vm=False, drains_lgkm=False, writes=()):
        i = Inst(lines, "raw", (), writes)
        i.ops = (drains_vm, drains_lgkm)
        self.append(i)

    def alt(self, cond, lines_a, lines_b, name):
        i = Inst("", "dualbegin"); i.mn = name; i.states = 2; i.text = cond
        self.append(i)
        for la, lb in zip(lines_a, lines_b):
            a = self(la); b = parse(lb)
            assert a.kind == b.kind or "nop" in (a.kind, b.kind) or {a.kind, b.kind} <= {"valu", "dswrite"}, (la, lb)
            a.reads |= b.reads; a.writes |= b.writes; a.slow = lb
        j = Inst("", "dualend"); j.mn = name; j.states = 0
        self.append(j)

    def dual_store(self, fast_lines, name, tok=None):
        i = Inst("", "dualbegin"); i.mn = name; i.states = 2
        self.append(i)
        out = []
        for l in fast_lines:
            out.append(self(l, tok=tok))
            out[-1].slow = l + " sc1"
        j = Inst("", "dualend"); j.mn = name; j.states = 0
        self.append(j)
        return out


def cost(i):
    if i.kind in ("label", "comment", "waittok", "waitvm0", "waitlgkm0", "dualend"): return 0
    if i.kind == "mfma": return 4 * i.passes
    if i.kind == "trans" or i.mn.startswith("v_permlane"): return 8
    return 4


def spread(base, items, lo=0.0, hi=1.0):
    items = [g for g in items if len(g)]
    tot = sum(cost(i) for i in base)
    out = Seq(); t = 0; k = 0; n = len(items); inside = False
    for i in base:
        while not inside and k < n and t >= tot * (lo + (hi - lo) * (k / n if n > 1 else 0)):
            out.extend(items[k]); k += 1
        if i.kind == "dualbegin": inside = True
        if i.kind == "dualend": inside = False
        out.append(i); t += cost(i)
    while k < n:
        out.extend(items[k]); k += 1
    return out


def singles(groups):
    out = []
    for g in groups:
        cur = Seq()
        for i in g:
            cur.append(i)
            if i.kind in ("dma", "vload", "vstore"):
                out.append(cur); cur = Seq()
        if len(cur):
            if out: out[-1].extend(cur)
            else: out.append(cur)
    return out


def weave(main, fillers, every=None):
    out = Seq()
    n = len(main); m = len(fillers)
    k = 0
    for i, g in enumerate(main):
        out.extend(g)
        tgt = (m * (i + 1)) // n
        while k < tgt:
            out.extend(fillers[k]); k += 1
    return out


def insert_waits(seq):
    out = Seq()
    vm = []
    lg = []

    def need(q, pred):
        for idx in range(len(q) - 1, -1, -1):
            if pred(q[idx]):
                return len(q) - 1 - idx
        return None

    def emit_wait(nv, nl):
        nonlocal vm, lg
        parts = []
        if nv is not None:
            n = min(nv, 63)
            parts.append(f"vmcnt({n})")
            vm = vm[len(vm) - n:] if n else []
        if nl is not None:
            if any(e[2] for e in lg):
                nl = 0
            n = min(nl, 15)
            parts.append(f"lgkmcnt({n})")
            lg = lg[len(lg) - n:] if n else []
        if parts:
            out("s_waitcnt " + " ".join(parts))

    for i in seq:
        if i.kind == "waittok":
            toks = i.tok
            nv = need(vm, lambda e: e[1] in toks); nl = need(lg, lambda e: e[1] in toks)
            emit_wait(nv, nl); continue
        if i.kind == "waitvm0":
            if vm: emit_wait(0, None)
            continue
        if i.kind == "waitlgkm0":
            if lg: emit_wait(None, 0)
            continue
        if i.kind == "raw":
            touched = i.writes
            nv = need(vm, lambda e: e[0] & touched); nl = need(lg, lambda e: e[0] & touched)
            emit_wait(nv, nl)
            out.append(i)
            if i.ops[0]: vm = []
            if i.ops[1]: lg = []
            continue
        if i.kind == "wait":
            m = re.search(r"vmcnt\((\d+)\)", i.text)
            if m:
                n = int(m.group(1)); vm = vm[max(0, len(vm) - n):] if n else []
            m = re.search(r"lgkmcnt\((\d+)\)", i.text)
            if m:
                n = int(m.group(1)); lg = lg[max(0, len(lg) - n):] if n else []
            out.append(i); continue
        touched = i.reads | i.writes
        nv = need(vm, lambda e: e[0] & touched); nl = need(lg, lambda e: e[0] & touched)
        emit_wait(nv, nl)
        out.append(i)
        if i.kind in ("vload", "dma", "vstore"):
            vm.append((set(i.writes), i.tok))
            if len(vm) > 63: vm = vm[-63:] if False else vm
        elif i.kind in ("dsread", "dswrite"):
            lg.append((set(i.writes), i.tok, False))
        elif i.kind == "smem":
            lg.append((set(i.writes), i.tok, True))
    return out


def _is_valu(i): return i.kind in ("valu", "trans")
def _is_mem(i): return i.kind in ("vload", "dma", "vstore", "dsread", "dswrite")
def _vregs(s): return set(r for r in s if r[0] in "va" and r != "vcc")
def _sregs(s): return set(r for r in s if r[0] == "s" and r != "scc") | (s & {"vcc"})


def required_gap(p, c):
    g = 0
    if p.kind == "mfma":
        D = p.writes
        big = p.passes == 8
        if c.kind == "mfma":
            ca = set(regs_of(c.ops[1])) | set(regs_of(c.ops[2])); cc = set(regs_of(c.ops[3]))
            if D & ca: g = max(g, 12 if big else 8)
            if D & cc and not (cc == D and c.passes == p.passes): g = max(g, 10 if big else 6)
            if D & c.writes and not (D & cc): g = max(g, 12 if big else 8)
        elif _is_valu(c) or _is_mem(c):
            if D & (c.reads | c.writes): g = max(g, 12 if big else 8)
        if _is_valu(c) or c.kind in ("vload", "dsread"):
            pc = set(regs_of(p.ops[3]))
            if pc & c.writes: g = max(g, 7 if big else 3)
        return g
    if _is_valu(p):
        vw = _vregs(p.writes); sw = _sregs(p.writes)
        if c.kind == "mfma" and vw & c.reads: g = max(g, 2)
        if c.kind == "mfma" and "exec" in p.writes: g = max(g, 4)
        if _is_valu(c):
            if c.mn.startswith("v_permlane") and vw & c.reads: g = max(g, 2)
            if c.mn.startswith(("v_readfirstlane", "v_readlane")) and vw & c.reads: g = max(g, 1)
            if "dpp" in c.text or "row_" in c.text or "quad_perm" in c.text:
                if vw & c.reads: g = max(g, 2)
            if p.kind == "trans" and c.kind != "trans" and vw & c.reads: g = max(g, 1)
            if p.kind == "trans" and c.kind == "trans" and vw & c.reads: g = max(g, 1)
            if sw & c.reads: g = max(g, 2)
            if p.mn.startswith("v_dot2") and vw & (c.reads | c.writes):
                same = c.mn == p.mn and not (vw & set(r for o in c.ops[1:3] for r in regs_of(o)))
                if not same: g = max(g, 3)
            if "op_sel" in p.text and not p.mn.startswith("v_pk_") and vw & (c.reads | c.writes): g = max(g, 1)
        if p.mn.startswith("v_dot2") and not _is_valu(c) and vw & (c.reads | c.writes): g = max(g, 3)
        if c.kind in ("vload", "dma", "vstore") and sw & c.reads: g = max(g, 5)
        if c.kind in ("salu", "branch") and sw & c.reads: g = max(g, 1)
        if p.kind == "trans" and _is_mem(c) and vw & c.reads: g = max(g, 1)
        return g
    if p.kind == "salu":
        if "m0" in p.writes and c.kind == "dma": g = max(g, 1)
        if "exec" in p.writes and (c.kind == "mfma"): g = max(g, 1)
        return g
    if p.kind == "vstore" and ("x4" in p.mn or "x3" in p.mn):
        data = set(regs_of(p.ops[0]))
        if data & c.writes: g = max(g, 2)
        return g
    return g


def insert_nops(seq):
    out = Seq()
    for c in seq:
        if c.kind in ("label", "comment", "dualend"):
            out.append(c); continue
        if c.kind in ("raw", "dualbegin"):
            out.append(c); continue
        dist = 0; need = 0
        for p in reversed(out):
            if dist >= 20: break
            if p.kind not in ("label", "comment", "nop", "wait", "misc", "branch", "raw", "dualbegin", "dualend"):
                g = required_gap(p, c)
                if g - dist > need: need = g - dist
            dist += p.states
        while need > 0:
            k = min(need, 16)
            out(f"s_nop {k - 1}"); need -= k
        out.append(c)
    return out


def check_tags(seq):
    tags = {}
    for i in seq:
        if i.rtags:
            for opi, tag in i.rtags.items():
                for k, r in enumerate(regs_of(i.ops[opi])):
                    got = tags.get(r)
                    if got != tag:
                        raise AssertionError(f"tag mismatch at '{i.text}': {r} holds {got}, expected {tag}")
        for r in i.writes:
            tags[r] = i.wtag


def render(seq, s_mode):
    main = []; ool = []
    cur = None
    for i in seq:
        if i.kind == "dualbegin":
            main.append("    " + (i.text or f"s_cmp_lg_u32 {s_mode}, 0"))
            main.append(f"    s_cbranch_scc1 L_slow_{i.mn}")
            inline = bool(i.text)
            side = [] if inline else ool
            side.append(f"L_slow_{i.mn}:")
            cur = i.mn
            continue
        if i.kind == "dualend":
            if inline:
                main.append(f"    s_branch L_ret_{i.mn}")
                main.extend(side)
                main.append(f"L_ret_{i.mn}:")
            else:
                main.append(f"L_ret_{i.mn}:")
                ool.append("    s_nop 1")
                ool.append(f"    s_branch L_ret_{i.mn}")
            cur = None
            continue
        if i.kind == "label":
            main.append(i.text); continue
        if i.kind == "raw":
            main.extend("    " + l.strip() if not l.strip().endswith(":") else l.strip() for l in i.text.strip().split("\n"))
            continue
        main.append("    " + i.text)
        if cur is not None:
            side.append("    " + (i.slow or i.text))
    return "\n".join(main), "\n".join(ool)


def finalize(seq, s_mode):
    check_tags(seq)
    seq = insert_waits(seq)
    seq = insert_nops(seq)
    return render(seq, s_mode), seq
```

```python
import sys, struct, math
from dsl import *

KNAME = "interleave_layers__linear_kernel_hedgehog__geglu_ffn__prompt_kernel"
CFG = dict(ts=False, force_slow=False, reuse=True)

KV_OFF = 0; KV_HP = 9216
FLG_OFF = 0x24000; FLG_G = 8192
FO, FX, FH, FREG = 0, 1024, 4096, 6144
STAT_OFF = 0x40000
O_OFF = 0x100000; X1_OFF = 0x500000; X2_OFF = 0x900000; H_OFF = 0xB00000; H_L = 0x700000
HMT = 112 * 1024
TS_OFF = 0x1900000
WQP_OFF = 0x1A00000
WS_SIZE = 0x1C00000
OOB = 0x7000000

R3, R1, R0, R2 = 0, 32768, 65536, 131072
CS1 = 163840 - 2048
CS3 = 163840 - 1024
PH_S = 208
KVB = R2 + 27648
LDS_BYTES = 163840
GU_BASE = [R0, R0 + 32768, R1, R0]

SX, SQKV, SWO, SWG, SWU, SWD, SOUT, SWS, SWS3, SDBG, SPHI = [S(4 + 4 * i, 4) for i in range(11)]
(sW, sG, sI, sHP, sRB, sCT, sRQ, sMODE, sBUD, sT0, sT1, sT2, sMT1, sMT2, sFLG, sKV, sADD,
 sQKVO, sGUO, sWDO, sWOO, sW2K, sW8K, sR4K, sPART, sQO, sWQP) = [S(48 + i) for i in range(27)]
sOUTO = S(75)
sE0 = S(76, 2)
(sO_ST, sFO_ST, sFO_PL, sO_LD, sX_ST, sST_ST, sFX_ST, sFX_PL3, sFX_PL1, sX_LD3, sX_LD1, sST_LD3,
 sST_LD1, sH_ST, sFH_ST, sFH_PL, sH_LD, sAT) = [S(78 + i) for i in range(18)]
sTS = S(96, 2)
sCNT, sKVL = S(98), S(99)
sD, sRH, sRW = S(0), S(1), S(2)

vL16, vT64, vT128, vTG, vDQ, vD128, vDG, vROW, vLANE = [V(1 + i) for i in range(9)]
vD128b, vDU = V(10), V(11)
vONE = V(28)
vP = V(30); vTS = V(31)
XRES = Reg("v", 32)
WRING = Reg("a", 224)
WPHI = Reg("a", 248)
PARK = Reg("a", 0)
(vKVT, vCS, vPW16, vPW32, vKA, vKB, vAT, vAZ, vWQ, vWO0, vWO1, vPOLL, vTGT, vKW1, vKW2, vKR) = [V(12 + i) for i in range(16)]

LOG2E = 1.4426950408889634
def f32(x): return "0x%08x" % struct.unpack("<I", struct.pack("<f", x))[0]

_uid = [0]
def uid(p):
    _uid[0] += 1
    return f"{p}{_uid[0]}"


class Gen:
    def __init__(self, cfg):
        self.cfg = cfg
        self.q = Seq()
        self.nts = 0
        self.tsnames = []
        r = cfg["reuse"]
        self.o_base = (lambda L: H_OFF) if r else (lambda L: O_OFF + L * 0x200000)
        self.o_mt = HMT if r else 32768
        self.x_base = (lambda inst: X1_OFF) if r else (lambda inst: [X1_OFF, X1_OFF + 0x200000, X2_OFF][inst])
        self.h_base = (lambda L: H_OFF) if r else (lambda L: H_OFF + L * H_L)
        self.st_base = (lambda inst: STAT_OFF) if r else (lambda inst: STAT_OFF + inst * 64 * 4096)

    def ts(self, name):
        if not self.cfg["ts"]:
            return
        k = self.nts; self.nts += 1; self.tsnames.append(name)
        assert k < 60
        self.q.raw(f"{'s_memrealtime' if self.cfg.get('rt') else 's_memtime'} {sTS}\ns_waitcnt lgkmcnt(0)\nv_writelane_b32 {vTS}, s96, {k}", drains_lgkm=True)

    def soff(self, s, reg, const, tmp):
        if const == 0: return reg
        s(f"s_add_u32 {tmp}, {reg}, {const}")
        return tmp

    def _cmp(self, reg, target):
        if target is None: return f"v_cmp_eq_u32 vcc, 0, {reg}\n"
        return f"v_and_b32 v29, 63, {reg}\nv_cmp_ne_u32 vcc, v29, {target}\n"

    def _loop(self, ld, reg, target, D):
        L = uid("L_poll")
        return (f"{L}:\n{ld}\ns_waitcnt vmcnt(0)\n" + self._cmp(reg, target) +
                f"s_nop 1\ns_cbranch_vccz {D}\ns_sub_u32 {sBUD}, {sBUD}, 1\ns_cbranch_scc0 {L}\ns_mov_b32 {sBUD}, 0\n")

    def poll(self, voff, srd, soff, off=0, target=None):
        D = uid("L_done")
        ld = f"buffer_load_dword {vP}, {voff}, {srd}, {soff} offen offset:{off} sc1"
        self.q.raw(self._loop(ld, vP, target, D) + f"{D}:\n", drains_vm=True, writes={"v29", "v30"})

    def precheck(self, s, reg, voff, srd, soff, off=0):
        ld = f"buffer_load_dword {reg}, {voff}, {srd}, {soff} offen offset:{off} sc1"
        s(ld)
        return ld

    def confirm(self, s, reg, ld):
        D = uid("L_done")
        s.raw(self._cmp(reg, None) + f"s_nop 1\ns_cbranch_vccz {D}\n" + self._loop(ld, reg, None, D) + f"{D}:\n", writes={reg})

    def flag(self, s, soff_reg, off, srd, toks):
        s(f"v_mov_b32 {vP}, 1")
        s.wait_tok(*toks)
        s.dual_store([f"buffer_store_dword {vP}, {vONE}, {srd}, {soff_reg} offen offset:{off}"], uid("f"))

    def barrier(self):
        self.q.wait_lgkm0()
        self.q("s_barrier")

    def dma_wq(self, j, tok):
        s = Seq()
        if j % 4 == 0:
            s(f"""
            s_lshl_b32 {sQO}, {sW}, 13
            s_add_u32 {sQO}, {sQO}, {sR4K}
            s_add_u32 {sQO}, {sQO}, {(j // 4) * 4096}
            s_and_b32 {sQO}, {sQO}, 0x7000
            s_mul_i32 {sQO}, {sQO}, 48
            s_lshl_b32 {sD}, {sHP}, 6
            s_add_u32 {sQO}, {sQO}, {sD}
            """)
        s(f"s_add_u32 m0, {sW8K}, {R1 + j * 1024}")
        s(f"s_add_u32 {sD}, {sQO}, {(j % 4) * 49152}")
        s(f"buffer_load_dwordx4 {vDQ}, {SQKV}, {sD} offen lds", tok=tok)
        return s

    def dma_packed(self, j, tok):
        s = Seq()
        if j < 8:
            s(f"s_add_u32 {sD}, {sR4K}, {j * 4096}")
            s(f"s_and_b32 {sD}, {sD}, 0x7000")
            s(f"s_add_u32 m0, {sW2K}, {R0 + j * 8192}")
            s(f"s_lshl1_add_u32 {sD}, {sD}, {sWQP}")
        else:
            s(f"s_add_u32 {sD}, {sQKVO}, {(j - 8) * 8192}")
            s(f"s_and_b32 {sD}, {sD}, 0x7fff")
            s(f"s_add_u32 m0, {sW2K}, {R1 + (j - 8) * 8192}")
            s(f"s_add_u32 {sD}, {sD}, {sQO}")
        s(f"buffer_load_dwordx4 {vL16}, {SWS}, {sD} offen sc1 lds")
        s(f"buffer_load_dwordx4 {vL16}, {SWS}, {sD} offen offset:1024 sc1 lds", tok=tok)
        return s

    def dma_wo(self, rnd, jj, tok):
        s = Seq()
        s(f"s_add_u32 m0, {sW8K}, {R3 + jj * 2048}")
        s(f"s_add_u32 {sD}, {sWOO}, {(8 * rnd + jj) * 16384}")
        s(f"buffer_load_dwordx4 {vD128}, {SWO}, {sD} offen lds")
        s(f"buffer_load_dwordx4 {vD128b}, {SWO}, {sD} offen offset:1024 lds", tok=tok)
        return s

    def dma_wgu(self, j):
        s = Seq()
        if self.cfg.get("ab_gu") == "all" or (self.cfg.get("ab_gu") == "c3" and j >= 12): return s
        s(f"s_add_u32 m0, {sW2K}, {GU_BASE[j // 4] + (j % 4) * 8192}")
        s(f"s_add_u32 {sD}, {sGUO}, {j * 4 * 28672}")
        s(f"buffer_load_dwordx4 {vDG}, {SWG}, {sD} offen lds")
        s(f"buffer_load_dwordx4 {vDU}, {SWU}, {sD} offen offset:1024 lds", tok=self.gu_t[j])
        return s

    def dma_wd(self, u, slot, tok):
        s = Seq()
        if self.cfg.get("ab_wd"): return s
        s(f"s_add_u32 m0, {sW8K}, {slot}")
        s(f"s_add_u32 {sD}, {sWDO}, {sRW}")
        s(f"buffer_load_dwordx4 {vD128}, {SWD}, {sD} offen lds")
        s(f"s_add_u32 {sRW}, {sRW}, 16384")
        if u % 4 == 3:
            s(f"s_cmp_eq_u32 {sRW}, {28 * 16384}")
            s(f"s_cselect_b32 {sRW}, 0, {sRW}")
        s(f"buffer_load_dwordx4 {vD128b}, {SWD}, {sD} offen offset:1024 lds", tok=tok)
        return s

    def stats_finish(self, s, s1, tmp, bfrag, dup):
        a, b = V(s1), V(s1 + 1); t0, t1 = V(tmp), V(tmp + 1)
        s(f"v_mov_b32 {t0}, {a}")
        s(f"v_mov_b32 {t1}, {b}")
        s(f"v_permlane32_swap_b32 {a}, {t0}")
        s(f"v_permlane32_swap_b32 {b}, {t1}")
        s(f"v_add_f32 {a}, {a}, {t0}")
        s(f"v_add_f32 {b}, {b}, {t1}")
        s(f"v_mul_f32 {t1}, {f32(1.0 / 512)}, {a}")
        s(f"v_mul_f32 {b}, {f32(1.0 / 512)}, {b}")
        s(f"v_mul_f32 {a}, {f32(-1.0 / 1024)}, {a}")
        s(f"v_fma_f32 {t0}, -{t1}, {t1}, {b}")
        s(f"v_cvt_pk_bf16_f32 {t1}, {a}, {a}")
        s(f"v_max_f32 {t0}, 0, {t0}")
        s(f"v_and_b32 {t1}, 0xffff0000, {t1}")
        s(f"v_add_f32 {t0}, {f32(1e-5)}, {t0}")
        s(f"v_sub_f32 {t1}, {a}, {t1}")
        s(f"v_rsq_f32 {b}, {t0}")
        s(f"v_cvt_pk_bf16_f32 v{bfrag}, {a}, {t1}")
        s(f"v_mov_b32 v{bfrag + 1}, v{bfrag}")
        for i in (2, 3): s(f"v_mov_b32 v{bfrag + i}, {'v%d' % bfrag if dup else '0'}")

    def cs_split(self, s, c, out):
        s(f"v_cvt_pk_bf16_f32 v{out}, {c}, {c}")
        s(f"v_and_b32 v{out + 1}, 0xffff0000, v{out}")
        s(f"v_sub_f32 v{out + 1}, {c}, v{out + 1}")
        s(f"v_cvt_pk_bf16_f32 v{out + 1}, v{out + 1}, v{out + 1}")

    def pack16(self, s, acc, out):
        for i in range(0, 16, 2):
            s(f"v_cvt_pk_bf16_f32 {V(out + i // 2)}, {V(acc + i)}, {V(acc + i + 1)}")

    def stats_sum(self, s, base):
        for st in (8, 4, 2):
            for i in range(0, st, 2):
                s(f"v_pk_add_f32 {V(base + i, 2)}, {V(base + i, 2)}, {V(base + i + st, 2)}")

    def softmax16(self, s, p, out, tmp, c):
        t = V(tmp); u = V(tmp + 1); c2 = V(c, 2)
        s(f"v_max3_f32 {t}, {V(p)}, {V(p + 1)}, {V(p + 2)}")
        s(f"v_max3_f32 {u}, {V(p + 3)}, {V(p + 4)}, {V(p + 5)}")
        s(f"v_max3_f32 {t}, {t}, {V(p + 6)}, {V(p + 7)}")
        s(f"v_max3_f32 {u}, {u}, {V(p + 8)}, {V(p + 9)}")
        s(f"v_max3_f32 {t}, {t}, {V(p + 10)}, {V(p + 11)}")
        s(f"v_max3_f32 {u}, {u}, {V(p + 12)}, {V(p + 13)}")
        s(f"v_max3_f32 {t}, {t}, {V(p + 14)}, {V(p + 15)}")
        s(f"v_max_f32 {t}, {t}, {u}")
        s(f"v_mul_f32 {V(c + 1)}, {V(c)}, {t}")
        for i in range(0, 16, 2):
            s(f"v_pk_fma_f32 {V(p + i, 2)}, {V(p + i, 2)}, {c2}, {c2} op_sel:[0,0,1] op_sel_hi:[1,0,1] neg_lo:[0,0,1] neg_hi:[0,0,1]")
        for i in range(16):
            s(f"v_exp_f32 {V(p + i)}, {V(p + i)}")
        for i in range(0, 8, 2):
            s(f"v_pk_add_f32 {V(tmp + i, 2)}, {V(p + i, 2)}, {V(p + 8 + i, 2)}")
        s(f"v_pk_add_f32 {V(tmp, 2)}, {V(tmp, 2)}, {V(tmp + 4, 2)}")
        s(f"v_pk_add_f32 {V(tmp + 2, 2)}, {V(tmp + 2, 2)}, {V(tmp + 6, 2)}")
        s(f"v_pk_add_f32 {V(tmp, 2)}, {V(tmp, 2)}, {V(tmp + 2, 2)}")
        s(f"v_add_f32 {t}, {t}, {u}")
        s(f"v_rcp_f32 {t}, {t}")
        for i in range(0, 16, 2):
            s(f"v_pk_mul_f32 {V(p + i, 2)}, {V(p + i, 2)}, {V(tmp, 2)} op_sel_hi:[1,0]")
        self.pack16(s, p, out)

    def mfma32(self, s, d, a, b, first, rtags=None):
        c = "0" if first else V(d, 16)
        s(f"v_mfma_f32_32x32x16_bf16 {V(d, 16)}, {a}, {b}, {c}", rtags=rtags)

    def tr2(self, s, dst, addr, off, dq, tag):
        assert off + dq < 65536
        s(f"ds_read_b64_tr_b16 {dst(0, 2)}, {addr} offset:{off}", wtag=tag)
        s(f"ds_read_b64_tr_b16 {dst(2, 2)}, {addr} offset:{off + dq}", wtag=tag)

    def ones(self, s, r):
        for i in range(4): s(f"v_mov_b32 v{r + i}, 0x3f803f80")

    def prologue(self):
        q = self.q
        q("s_cmp_ge_u32 s2, 256\ns_cbranch_scc1 L_end")
        if self.cfg["ts"]: q("s_memtime s[76:77]\ns_memrealtime s[78:79]")
        q(f"""
        s_load_dwordx16 s[80:95], s[0:1], 0
        s_load_dwordx4 s[96:99], s[0:1], 64
        s_load_dwordx2 s[100:101], s[0:1], 80
        v_lshrrev_b32 v100, 6, v0
        v_and_b32 {vLANE}, 63, v0
        v_readfirstlane_b32 {sW}, v100
        s_and_b32 {sG}, s2, 7
        s_lshr_b32 {sI}, s2, 3
        """)
        q.raw(f"""
        s_getpc_b64 s[44:45]
        L_pc:
        s_sub_u32 s44, s44, L_pc-{KNAME}
        s_subb_u32 s45, s45, 0
        s_cmp_lg_u32 {sW}, 3
        s_cbranch_scc1 L_nopf
        s_and_b32 s46, {sI}, 7
        s_lshl_b32 s46, s46, 13
        v_lshl_add_u32 v101, {vLANE}, 7, s46
        v_min_u32 v101, L_last-{KNAME}, v101
        global_load_dword v127, v101, s[44:45]
        L_nopf:
        """, writes={"v101"})
        q(f"""
        s_and_b32 {sRB}, {sI}, 1
        s_lshr_b32 {sHP}, {sI}, 1
        s_and_b32 {sRQ}, {sI}, 3
        s_lshr_b32 {sCT}, {sI}, 2
        s_lshl_b32 {sW2K}, {sW}, 11
        s_lshl_b32 {sW8K}, {sW}, 13
        v_lshlrev_b32 {vL16}, 4, {vLANE}
        """)
        q(f"""
        v_and_b32 v104, 3, {vLANE}
        v_lshrrev_b32 v106, 3, {vLANE}
        v_and_b32 v107, 7, {vLANE}
        v_lshrrev_b32 v108, 4, {vLANE}
        v_lshrrev_b32 v110, 2, {vLANE}
        v_mul_u32_u24 v110, 3072, v110
        v_lshl_add_u32 {vDQ}, v104, 4, v110
        v_xor_b32 v110, v107, v108
        v_lshlrev_b32 v110, 4, v110
        v_lshl_add_u32 v112, v106, 10, v110
        v_xor_b32 v113, 64, v112
        v_add_u32 v113, 7168, v113
        v_add_u32 v114, {2 * 7168}, v112
        v_add_u32 v115, {2 * 7168}, v113
        s_lshl_b32 {sT0}, {sHP}, 6
        s_mul_i32 {sT1}, {sW}, 49152
        s_add_u32 {sQKVO}, {sT0}, {sT1}
        s_add_u32 {sQKVO}, {sQKVO}, 1024
        s_add_u32 {sR4K}, {sCT}, {sG}
        s_and_b32 {sR4K}, {sR4K}, 7
        s_lshl_b32 {sR4K}, {sR4K}, 12
        s_lshl_b32 {sMT1}, {sG}, 3
        s_lshl_b32 {sT0}, {sRB}, 2
        s_add_u32 {sMT1}, {sMT1}, {sT0}
        s_add_u32 {sMT1}, {sMT1}, {sW}
        """)
        q.wait_lgkm0()
        if self.cfg["ts"]:
            q(f"v_writelane_b32 {vTS}, {'s78' if self.cfg.get('rt') else 's76'}, 0\nv_writelane_b32 {vTS}, s78, 60")
            self.nts = 1; self.tsnames.append("entry")
        def srd(d, p, size, sub=0):
            b = int(d[2:].split(":")[0])
            if sub:
                q(f"s_sub_u32 s{b}, s{p}, {sub}\ns_subb_u32 s{b + 1}, s{p + 1}, 0")
            else:
                q(f"s_mov_b64 s[{b}:{b + 1}], s[{p}:{p + 1}]")
            q(f"s_mov_b32 s{b + 2}, {size + sub}\ns_mov_b32 s{b + 3}, 0x20000")
        srd(SX, 80, 2097152); srd(SQKV, 82, 1572864); srd(SWS, 100, WS_SIZE); srd(SDBG, 98, 256)
        if self.cfg.get('ts2'): srd(SOUT, 96, 2097152)
        self.srd = srd

    def prologue2(self):
        q = self.q; srd = self.srd
        srd(SPHI, 84, 16384); srd(SWO, 86, 524288); srd(SWG, 90, 1835008); srd(SWU, 92, 1835008, sub=1024)
        srd(SWD, 94, 1835008); srd(SWS3, 100, WS_SIZE)
        if not self.cfg.get('ts2'): srd(SOUT, 96, 2097152)
        T3 = "s76"; MT2G = "s77"
        q(f"""
        s_lshl1_add_u32 {sT0}, {sRQ}, {sCT}
        s_add_u32 {sT0}, {sT0}, {sG}
        s_cmp_ge_u32 {sT0}, 14
        s_cselect_b32 {sT1}, 14, 0
        s_sub_u32 {sT0}, {sT0}, {sT1}
        s_cmp_ge_u32 {sT0}, 7
        s_cselect_b32 {sT1}, 7, 0
        s_sub_u32 {sT0}, {sT0}, {sT1}
        s_lshl_b32 {sRH}, {sT0}, 12
        s_lshl_b32 {sRW}, {sT0}, 16
        s_mov_b32 {sBUD}, 200000
        s_mov_b32 {sMODE}, 1
        s_mul_i32 {sFLG}, {sG}, {FLG_G}
        s_add_u32 {sFLG}, {sFLG}, {FLG_OFF}
        s_mul_i32 {sKV}, {sHP}, {KV_HP}
        s_and_b32 {sT0}, {sW}, 1
        s_lshl_b32 {sMT2}, {sRQ}, 1
        s_add_u32 {sMT2}, {sMT2}, {sT0}
        s_lshr_b32 {sT1}, {sW}, 1
        s_lshl_b32 {sPART}, {sCT}, 1
        s_add_u32 {sPART}, {sPART}, {sT1}
        s_lshl_b32 {sWOO}, {sT1}, 2
        s_add_u32 {sWOO}, {sWOO}, {sT0}
        s_lshl_b32 {sWOO}, {sWOO}, 16
        s_lshl_b32 {T3}, {sCT}, 7
        s_add_u32 {sWOO}, {sWOO}, {T3}
        s_mul_i32 {sAT}, {sT1}, 2176
        s_lshl_b32 {sT0}, {sT0}, 6
        s_add_u32 {sAT}, {sAT}, {sT0}
        s_add_u32 {sAT}, {sAT}, {sKV}
        s_lshl_b32 {MT2G}, {sG}, 3
        s_add_u32 {MT2G}, {MT2G}, {sMT2}
        s_mul_i32 {sO_LD}, {MT2G}, {self.o_mt}
        s_lshl_b32 {sT0}, {sT1}, 14
        s_add_u32 {sO_LD}, {sO_LD}, {sT0}
        s_add_u32 {sO_LD}, {sO_LD}, {self.o_base(0)}
        s_lshl_b32 {sFO_PL}, {sMT2}, 6
        s_lshl_b32 {sT0}, {sT1}, 5
        s_add_u32 {sFO_PL}, {sFO_PL}, {sT0}
        s_add_u32 {sFO_PL}, {sFO_PL}, {sFLG}
        s_mul_i32 {sT1}, {sW}, {28 * 16384}
        s_add_u32 {sWDO}, {T3}, {sT1}
        s_lshl_b32 {sT0}, {sI}, 7
        s_mul_i32 {sT1}, {sW}, 28672
        s_add_u32 {sGUO}, {sT0}, {sT1}
        s_mul_i32 {sWQP}, {sHP}, 98304
        s_add_u32 {sWQP}, {sWQP}, {sW2K}
        s_add_u32 {sWQP}, {sWQP}, {WQP_OFF}
        s_mul_i32 {sO_ST}, {sMT1}, {self.o_mt}
        s_lshl_b32 {sT0}, {sHP}, 11
        s_add_u32 {sO_ST}, {sO_ST}, {sT0}
        s_add_u32 {sO_ST}, {sO_ST}, {self.o_base(0)}
        s_and_b32 {sT0}, {sMT1}, 7
        s_lshl_b32 {sT0}, {sT0}, 6
        s_add_u32 {sT0}, {sT0}, {sFLG}
        s_add_u32 {sFX_PL1}, {sT0}, {FX}
        s_lshl_b32 {sT1}, {sHP}, 2
        s_add_u32 {sFO_ST}, {sT0}, {sT1}
        s_lshl_b32 {sT0}, {MT2G}, 15
        s_lshl_b32 {sT1}, {sPART}, 6
        s_add_u32 {sOUTO}, {sT0}, {sT1}
        s_lshl_b32 {sT1}, {sPART}, 11
        s_add_u32 {sX_ST}, {sT0}, {sT1}
        s_add_u32 {sX_ST}, {sX_ST}, {self.x_base(0)}
        s_lshl_b32 {sST_ST}, {MT2G}, 12
        s_bfe_u32 {sT1}, {sPART}, 0x20001
        s_lshl_b32 {sT1}, {sT1}, 10
        s_add_u32 {sST_ST}, {sST_ST}, {sT1}
        s_lshr_b32 {sT1}, {sPART}, 3
        s_lshl_b32 {sT1}, {sT1}, 9
        s_add_u32 {sST_ST}, {sST_ST}, {sT1}
        s_and_b32 {sT1}, {sPART}, 1
        s_lshl_b32 {sT1}, {sT1}, 3
        s_add_u32 {sST_ST}, {sST_ST}, {sT1}
        s_add_u32 {sST_ST}, {sST_ST}, {STAT_OFF}
        s_lshl_b32 {sFX_ST}, {sMT2}, 6
        s_lshl_b32 {sT1}, {sPART}, 2
        s_add_u32 {sFX_ST}, {sFX_ST}, {sT1}
        s_add_u32 {sFX_ST}, {sFX_ST}, {sFLG}
        s_add_u32 {sFX_ST}, {sFX_ST}, {FX}
        ; K1 loads
        s_lshl_b32 {sX_LD1}, {sMT1}, 15
        s_add_u32 {sX_LD1}, {sX_LD1}, {self.x_base(2)}
        s_lshl_b32 {sST_LD1}, {sMT1}, 12
        s_add_u32 {sST_LD1}, {sST_LD1}, {self.st_base(2)}
        ; K3: m-tiles 8g+2w, +1
        s_lshl_b32 {sT0}, {sW}, 7
        s_add_u32 {sFX_PL3}, {sT0}, {sFLG}
        s_add_u32 {sFX_PL3}, {sFX_PL3}, {FX}
        s_lshl_b32 {sT0}, {sW}, 8
        s_lshl_b32 {sT1}, {sI}, 2
        s_add_u32 {sFH_ST}, {sT0}, {sT1}
        s_add_u32 {sFH_ST}, {sFH_ST}, {sFLG}
        s_add_u32 {sFH_ST}, {sFH_ST}, {FH}
        s_lshl_b32 {sT0}, {sG}, 2
        s_add_u32 {sT0}, {sT0}, {sW}
        s_lshl_b32 {sX_LD3}, {sT0}, 16
        s_add_u32 {sX_LD3}, {sX_LD3}, {self.x_base(0)}
        s_lshl_b32 {sST_LD3}, {sT0}, 13
        s_add_u32 {sST_LD3}, {sST_LD3}, {STAT_OFF}
        s_mul_i32 {sH_ST}, {sT0}, {2 * HMT}
        s_lshl_b32 {sT1}, {sI}, 12
        s_add_u32 {sH_ST}, {sH_ST}, {sT1}
        s_add_u32 {sH_ST}, {sH_ST}, {H_OFF}
        ; K4
        s_lshl_b32 {sT0}, {sRQ}, 8
        s_mul_i32 {sT1}, {sW}, 28
        s_add_u32 {sFH_PL}, {sT0}, {sT1}
        s_add_u32 {sFH_PL}, {sFH_PL}, {sFLG}
        s_add_u32 {sFH_PL}, {sFH_PL}, {FH}
        s_lshl_b32 {sT0}, {sG}, 2
        s_add_u32 {sT0}, {sT0}, {sRQ}
        s_mul_i32 {sH_LD}, {sT0}, {2 * HMT}
        s_lshl_b32 {sT1}, {sT1}, 10
        s_add_u32 {sH_LD}, {sH_LD}, {sT1}
        s_add_u32 {sH_LD}, {sH_LD}, {H_OFF}
        s_cmp_eq_u32 {sW}, 0
        s_cselect_b32 {sCNT}, {sKV}, {OOB}
        s_add_u32 {sCNT}, {sCNT}, {KV_OFF + 8704}
        s_lshl_b32 {sKVL}, {sW}, 10
        s_add_u32 {sKVL}, {sKVL}, {sKV}
        s_getreg_b32 {sT0}, hwreg(HW_REG_XCC_ID)
        s_and_b32 {sT0}, {sT0}, 15
        s_mul_i32 {sT1}, {sT0}, {sT0}
        s_lshl_b32 {sT1}, {sT1}, 15
        s_lshl_b32 {sT0}, {sT0}, 6
        s_add_u32 {sADD}, {sT0}, {sT1}
        s_add_u32 {sADD}, {sADD}, 1
        """)
        q(f"""
        v_lshrrev_b32 v100, 5, {vLANE}
        v_and_b32 v101, 31, {vLANE}
        v_bfe_u32 v102, {vLANE}, 4, 1
        v_bfe_u32 v103, {vLANE}, 2, 2
        v_lshrrev_b32 v105, 1, v104
        v_and_b32 v110, 1, v104
        v_lshl_add_u32 v105, v110, 1, v105
        v_lshl_add_u32 v110, v100, 3, v103
        v_lshl_add_u32 v111, v102, 2, v105
        v_lshlrev_b32 v111, 3, v111
        v_lshl_add_u32 {vT64}, v110, 6, v111
        v_lshrrev_b32 v109, 1, v103
        v_lshl_add_u32 v111, v109, 6, v111
        v_lshl_add_u32 {vT128}, v110, 7, v111
        s_lshr_b32 {sT0}, {sW}, 1
        s_lshl_b32 {sT0}, {sT0}, 6
        v_xor_b32 {vT128}, {sT0}, {vT128}
        v_lshlrev_b32 v110, 11, v100
        v_lshl_add_u32 v110, v102, 10, v110
        v_lshl_add_u32 v110, v103, 7, v110
        v_lshl_add_u32 v111, v102, 1, v109
        v_lshl_add_u32 v110, v111, 5, v110
        v_lshl_add_u32 {vTG}, v105, 3, v110
        v_lshlrev_b32 v110, 2, v102
        v_xor_b32 v110, v107, v110
        v_lshlrev_b32 v110, 4, v110
        v_lshl_add_u32 {vD128}, v106, 10, v110
        v_add_u32 {vD128b}, 7168, {vD128}
        v_lshlrev_b32 v110, 1, v102
        v_xor_b32 v110, v107, v110
        v_lshlrev_b32 v110, 4, v110
        v_mul_u32_u24 v111, 3584, v106
        v_add_u32 {vDG}, v110, v111
        v_xor_b32 {vDU}, 64, {vDG}
        v_lshlrev_b32 v110, 4, v100
        v_lshl_add_u32 {vROW}, v101, 10, v110
        v_min_u32 v110, 1, {vLANE}
        v_lshlrev_b32 {vONE}, 30, v110
        """)

    def k1_setup(self, L):
        q = self.q
        q(f"""
        v_add_u32 {vKVT}, {R0}, {vT64}
        v_add_u32 {vWQ}, {R1}, {vT64}
        v_lshrrev_b32 v29, 5, {vLANE}
        v_and_b32 v30, 31, {vLANE}
        v_lshlrev_b32 {vCS}, 4, v30
        v_add_u32 {vCS}, {CS1}, {vCS}
        s_lshl_b32 {sT0}, {sW}, 5
        v_add_u32 v30, {sT0}, v30
        v_mul_u32_u24 v30, {PH_S}, v30
        v_add_u32 v30, {R2}, v30
        v_lshl_add_u32 {vPW32}, v29, 5, v30
        v_lshl_add_u32 {vPW16}, v29, 4, v30
        v_and_b32 {vKR}, 3, {vLANE}
        v_bfe_u32 v30, {vLANE}, 2, 1
        v_lshl_add_u32 {vKR}, v30, 3, {vKR}
        v_bfe_u32 v30, {vLANE}, 3, 1
        v_lshl_add_u32 {vKR}, v30, 2, {vKR}
        v_mul_u32_u24 {vKW2}, 80, v30
        v_bfe_u32 v30, {vLANE}, 4, 1
        v_lshl_add_u32 {vKR}, v30, 4, {vKR}
        v_min_u32 {vKR}, 16, {vKR}
        v_mul_u32_u24 {vKR}, 80, {vKR}
        v_lshl_add_u32 {vKR}, v29, 5, {vKR}
        v_add_u32 {vKR}, {KVB}, {vKR}
        v_and_b32 v30, 7, {vLANE}
        v_lshl_add_u32 {vKW2}, v30, 3, {vKW2}
        v_add_u32 {vKW2}, {KVB + 32 * 80}, {vKW2}
        v_lshrrev_b32 {vKW1}, 3, v0
        v_mul_u32_u24 {vKW1}, 80, {vKW1}
        v_lshl_add_u32 {vKW1}, v30, 3, {vKW1}
        v_add_u32 {vKW1}, {KVB}, {vKW1}
        v_lshrrev_b32 v29, 4, {vLANE}
        v_bfe_u32 v30, {vLANE}, 2, 2
        v_lshl_add_u32 v30, v29, 3, v30
        v_mul_u32_u24 v30, {PH_S}, v30
        v_and_b32 {vKA}, 3, {vLANE}
        v_lshl_add_u32 v30, {vKA}, 3, v30
        s_lshr_b32 {sT1}, {sW}, 1
        s_lshl_b32 {sT2}, {sT1}, 5
        s_add_u32 {sT2}, {sT2}, {R2}
        v_add_u32 {vKA}, {sT2}, v30
        s_add_u32 {sT0}, {sT0}, {R2 + 64}
        v_add_u32 {vKB}, {sT0}, v30
        v_and_b32 {vAZ}, 15, {vLANE}
        v_lshlrev_b32 {vAZ}, 2, {vAZ}
        v_lshl_add_u32 {vAT}, v29, 9, {vAZ}
        v_lshl_add_u32 {vAZ}, v29, 28, {vAZ}
        s_lshl_b32 {sT1}, {sT1}, 14
        v_add_u32 {vWO0}, {sT1}, {vT128}
        v_xor_b32 {vWO1}, 64, {vWO0}
        s_add_u32 {sT0}, {sKV}, {KV_OFF + 8704 + L * 128}
        v_mov_b32 {vPOLL}, {sT0}
        v_mov_b32 {vTGT}, 16
        """)
        if L == 0:
            q(f"""
            v_and_b32 v29, 1, {vLANE}
            s_add_u32 {sT1}, {sFLG}, {FREG}
            v_mov_b32 v30, {sT1}
            v_cmp_eq_u32 vcc, 1, v29
            v_lshlrev_b32 {vTGT}, v29, {vTGT}
            v_cndmask_b32 {vPOLL}, {vPOLL}, v30, vcc
            """)

    def zero_role(self):
        L = uid("L_z")
        t = f"""
        s_cmp_lg_u32 {sW}, 3
        s_cbranch_scc1 {L}_skip
        s_and_b32 {sT0}, {sHP}, 7
        s_cmp_lg_u32 {sT0}, {sG}
        s_cbranch_scc1 {L}_skip
        s_mul_i32 {sT0}, {sHP}, {KV_HP}
        s_mov_b32 {sT1}, 9
        s_lshl_b32 {sT2}, {sHP}, 2
        s_cmp_eq_u32 {sRB}, 0
        s_cbranch_scc1 {L}_go
        s_cmp_ge_u32 {sHP}, 8
        s_cbranch_scc1 {L}_skip
        s_mul_i32 {sT0}, {sG}, {FLG_G}
        s_add_u32 {sT0}, {sT0}, {FLG_OFF}
        s_mov_b32 {sT1}, 8
        s_lshl_b32 {sT2}, {sG}, 2
        s_add_u32 {sT2}, {sT2}, 64
        {L}_go:
        v_mov_b32 v24, 0
        v_mov_b32 v25, 0
        v_mov_b32 v26, 0
        v_mov_b32 v27, 0
        v_lshlrev_b32 v23, 20, {vLANE}
        v_mov_b32 v22, 1
        {L}_loop:
        buffer_store_dwordx4 v[24:27], {vL16}, {SWS}, {sT0} offen sc1
        s_add_u32 {sT0}, {sT0}, 1024
        s_sub_u32 {sT1}, {sT1}, 1
        s_cmp_lg_u32 {sT1}, 0
        s_cbranch_scc1 {L}_loop
        s_waitcnt vmcnt(0)
        buffer_store_dword v22, v23, {SDBG}, {sT2} offen sc1
        {L}_skip:
        """
        self.q.raw(t, writes={"v22", "v23", "v24", "v25", "v26", "v27"})

    XF = Reg("v", 128)
    def k1_groups(self, L):
        def tr(s_):
            g = Seq()
            for t in range(2):
                slot = (2 * s_ + t) % 6
                self.tr2(g, Reg("a", WRING.lo + 4 * slot), vKVT, s_ * 2048 + t * 1024, 256, ("Wkv", L, s_, t))
            return g
        def mm(s_, t):
            g = Seq()
            slot = (2 * s_ + t) % 6
            self.mfma32(g, 48 + 16 * t, WRING(4 * slot, 4), self.XF(4 * s_, 4), s_ == 0,
                        rtags={1: ("Wkv", L, s_, t), 2: ("x", L, s_)})
            return g
        return tr, mm

    def k1_first(self):
        q = self.q; L = 0
        XF = self.XF
        self.zero_role()
        XS = "s3"
        q(f"s_lshl_b32 {XS}, {sMT1}, 15")
        xt = [Tok() for _ in range(8)]; wt = [Tok() for _ in range(8)]
        slot = lambda cp: (R3 if (cp & 3) < 2 else R1) + (cp & 1) * 4096
        def dma_xw(cp):
            s = Seq()
            s(f"""
            s_add_u32 {sT0}, {sR4K}, {cp * 4096}
            s_and_b32 {sT0}, {sT0}, 0x7000
            s_lshr_b32 {sD}, {sT0}, 5
            s_add_u32 m0, {sW8K}, {slot(cp)}
            s_add_u32 {sD}, {sD}, {XS}
            """)
            for j in range(4):
                s(f"buffer_load_dwordx4 v{112 + j}, {SX}, {sD} offen offset:{j * 1024} lds", tok=xt[cp] if j == 3 else None)
            s(f"""
            s_mul_i32 {sD}, {sT0}, 48
            s_add_u32 m0, {sW2K}, {R0 + cp * 8192}
            s_add_u32 {sD}, {sD}, {sQKVO}
            buffer_load_dwordx4 {vDQ}, {SQKV}, {sD} offen lds
            """)
            s(f"buffer_load_dwordx4 {vDQ}, {SQKV}, {sD} offen offset:1024 lds", tok=wt[cp])
            return s
        q.extend(dma_xw(0))
        if self.cfg.get("ts2"): self.ts("dma0")
        q.extend(dma_xw(1))
        self.prologue2()
        self.k1_setup(0)
        q(f"""
        v_bfe_u32 v116, v101, 1, 3
        v_xor_b32 v116, v100, v116
        v_lshlrev_b32 v116, 4, v116
        v_lshl_add_u32 v116, v101, 7, v116
        v_add_u32 v116, {sW8K}, v116
        v_xor_b32 v117, 32, v116
        v_xor_b32 v118, 64, v116
        v_xor_b32 v119, 96, v116
        v_lshl_add_u32 v110, v100, 3, v103
        v_lshrrev_b32 v120, 1, v104
        v_lshl_add_u32 v120, v102, 1, v120
        v_lshlrev_b32 v120, 3, v120
        v_lshl_add_u32 v120, v110, 5, v120
        s_lshl_b32 {sT1}, {sW}, 10
        s_add_u32 s76, {sT1}, {R2}
        v_add_u32 v120, s76, v120
        v_bfe_u32 v121, {vLANE}, 2, 1
        v_mul_u32_u24 v121, 0x8000, v121
        v_lshl_add_u32 v121, v121, 16, v121
        v_mov_b32 v92, 0
        v_mov_b32 v93, 0
        v_min_u32 v107, 23, {vLANE}
        v_lshlrev_b32 v107, 2, v107
        s_and_b32 {sT0}, {sW}, 1
        s_lshl_b32 {sT0}, {sT0}, 10
        s_lshr_b32 {sT1}, {sW}, 1
        s_lshl_b32 {sT1}, {sT1}, 12
        s_add_u32 {sT0}, {sT0}, {sT1}
        v_add_u32 v109, {sT0}, {vKVT}
        v_lshlrev_b32 v110, 7, {vLANE}
        v_min_u32 v124, {13 * 128}, v110
        v_min_u32 v125, {3 * 128}, v110
        s_lshl2_add_u32 {sT2}, {sI}, {sW}
        s_lshl_b32 {sT0}, {sG}, 7
        s_add_u32 {sT0}, {sT0}, {sT2}
        s_lshl_b32 {sT1}, {sT0}, 11
        s_add_u32 {sT1}, {sT1}, {self.x_base(0)}
        v_add_u32 v126, {sT1}, v110
        s_lshl_b32 {sT1}, {sT0}, 8
        s_add_u32 {sT1}, {sT1}, {STAT_OFF - 32 * 128}
        v_min_u32 v111, {33 * 128}, v110
        v_add_u32 v111, {sT1}, v111
        v_cmp_lt_u32 vcc, 31, {vLANE}
        s_lshl_b32 {sT1}, {sG}, 3
        s_add_u32 {sT1}, {sT1}, {sCT}
        s_mul_i32 {sT1}, {sT1}, {self.o_mt}
        v_cndmask_b32 v126, v126, v111, vcc
        s_and_b32 {sT2}, {sT2}, 15
        s_lshl_b32 {sT2}, {sT2}, 11
        s_add_u32 {sT1}, {sT1}, {sT2}
        s_add_u32 {sT1}, {sT1}, {self.o_base(0) - 16 * 128}
        v_add_u32 v111, {sT1}, v110
        v_cmp_eq_u32 vcc, 1, v108
        s_mul_i32 s77, {sT0}, 1792
        v_cndmask_b32 v126, v126, v111, vcc
        """)
        self.ones(q, 88)
        q.extend(dma_xw(2)); q.extend(dma_xw(3))
        tphi = Tok()
        q(f"s_mov_b32 m0, s76\ns_lshl_b32 {sD}, {sHP}, 10")
        q(f"buffer_load_dwordx4 {vL16}, {SPHI}, {sD} offen lds", tok=tphi)
        q(f"""
        buffer_load_dwordx4 v[80:83], {vROW}, {SX}, {sOUTO} offen
        buffer_load_dwordx4 v[84:87], {vROW}, {SX}, {sOUTO} offen offset:32
        """)
        tr, mm = self.k1_groups(L)
        self.ts("start")
        wq = [Tok() for _ in range(8)]
        self.wo_t = [Tok() for _ in range(4)]
        for cp in range(8):
            q.wait_tok(xt[cp])
            for e in range(4):
                q(f"ds_read_b128 {XF(16 * cp + 4 * e, 4)}, v{116 + e} offset:{slot(cp)}", wtag=("x", L, 4 * cp + e))
            q.wait_tok(wt[cp])
            q.wait_lgkm0()
            q("s_barrier")
            if self.cfg.get("ts2") and cp in (0, 1, 4): self.ts(f"c{cp}")
            d = []
            if cp < 4: d = [dma_xw(cp + 4)]
            elif cp < 6:
                d = [self.dma_wo(0, 2 * (cp - 4) + j, self.wo_t[2 * (cp - 4) + j]) for j in range(2)]
                if cp == 5:
                    g = Seq(); dbg_ld = self.precheck(g, "v127", "v107", SDBG, "0"); d.append(g)
            else:
                d = [self.dma_wq(4 * (cp - 6) + j, wq[4 * (cp - 6) + j]) for j in range(4)]
            c = Seq()
            c.extend(tr(4 * cp)); c.extend(tr(4 * cp + 1))
            for j in range(2): self.tr2(c, Reg("a", 4 * j), "v109", cp * 8192 + j * 2048, 256, ("cs", cp, j))
            for i in range(16):
                c(f"v_dot2c_f32_bf16 v92, {XF(16 * cp + i)}, v88")
                c(f"v_dot2c_f32_bf16 v93, {XF(16 * cp + i)}, {XF(16 * cp + i)}")
            for e in range(4):
                s_ = 4 * cp + e
                c.extend(mm(s_, 0)); c.extend(mm(s_, 1))
                if e < 2:
                    c.extend(tr(s_ + 2))
                    c(f"v_mfma_f32_32x32x16_bf16 a[16:31], v[88:91], {A(4 * e, 4)}, {'0' if s_ == 0 else 'a[16:31]'}", rtags={2: ("cs", cp, e)})
            q.extend(spread(c, singles(d)))
            if cp == 4:
                q.wait_tok(tphi)
                for hd in range(2):
                    q(f"ds_read_b64_tr_b16 v[{96 + 4 * hd}:{97 + 4 * hd}], v120 offset:{hd * 512}")
                    q(f"ds_read_b64_tr_b16 v[{98 + 4 * hd}:{99 + 4 * hd}], v120 offset:{hd * 512 + 128}")
                for i in range(8):
                    q(f"v_lshlrev_b32 {XRES(2 * i)}, 16, v{80 + i}")
                    q(f"v_and_b32 {XRES(2 * i + 1)}, 0xffff0000, v{80 + i}")
                for i in range(8):
                    q(f"v_xor_b32 v{96 + i}, v121, v{96 + i}")
                    q(f"v_accvgpr_write_b32 {WPHI(i)}, v{96 + i}")
        q(f"""
        s_lshl1_add_u32 {sT0}, {sG}, {sRB}
        s_lshl2_add_u32 {sT0}, {sT0}, {sW}
        s_lshl_b32 s3, {sT0}, 9
        s_sub_u32 {sT1}, s3, {sR4K}
        s_and_b32 {sT1}, {sT1}, 0x7fff
        s_lshl1_add_u32 {sT1}, {sT1}, {R0}
        v_add_u32 v114, {sT1}, {vL16}
        ds_read_b128 v[80:83], v114
        v_accvgpr_read_b32 v112, a16
        s_and_b32 {sT0}, {sW}, 1
        s_lshl_b32 {sT0}, {sT0}, 9
        s_lshr_b32 {sT1}, {sW}, 1
        s_lshl3_add_u32 {sT0}, {sT1}, {sT0}
        v_add_u32 v113, {sT0}, {vCS}
        """)
        self.cs_split(q, "v112", 84)
        q(f"""
        ds_write_b64 v113, v[84:85]
        s_sub_u32 {sT1}, {sWQP}, {sW2K}
        s_lshl1_add_u32 {sT0}, s3, {sT1}
        buffer_store_dwordx4 v[80:83], {vL16}, {SWS}, {sT0} offen sc1
        """)
        self.stats_finish(q, 92, 94, 120, True)
        q(f"v_mul_f32 v94, {f32(LOG2E)}, v93")
        self.confirm(q, "v127", dbg_ld)
        t = [Seq() for _ in range(6)]
        t[0](f"buffer_load_dword {vP}, v126, {SWS}, 0 offen")
        t[1](f"""
        s_lshl2_add_u32 {sD}, {sRQ}, {sW}
        s_lshl_b32 {sD}, {sD}, 9
        s_add_u32 {sD}, {sD}, {sFLG}
        buffer_load_dword v29, v125, {SWS}, {sD} offen sc1
        """)
        t[2](f"buffer_load_dword v127, v124, {SWG}, s77 offen")
        t[3](f"buffer_load_dword v126, v124, {SWU}, s77 offen offset:1024")
        t[4](f"""
        s_lshl2_add_u32 {sD}, {sI}, {sW}
        s_lshl3_add_u32 {sD}, {sD}, {sG}
        s_lshl_b32 {sD}, {sD}, 9
        buffer_load_dword v125, v125, {SWO}, {sD} offen
        """)
        t[5](f"""
        buffer_load_dword v124, v124, {SWD}, s77 offen
        s_cmp_ge_u32 {sI}, 28
        s_cselect_b32 s18, 0, s18
        s_cselect_b32 s22, 0, s22
        s_cselect_b32 s38, 0, s38
        """)
        self.epi_items = t
        self.wq_tok = wq

    def k1_second(self):
        q = self.q; L = 1; XF = self.XF
        self.k1_setup(1)
        q(f"""
        v_and_b32 v126, 15, {vLANE}
        v_lshlrev_b32 v126, 2, v126
        s_add_u32 {sQKVO}, {sW2K}, {sR4K}
        s_sub_u32 {sQO}, {sWQP}, {sW2K}
        s_add_u32 {sQO}, {sQO}, 65536
        s_add_u32 {sT1}, {sX_LD1}, {sR4K}
        ds_read_b128 v[112:115], {vCS}
        ds_read_b128 v[116:119], {vCS} offset:512
        """)
        self.poll("v126", SWS, sFX_PL1, 2 * 512)
        self.ts("fx2")
        def xl(s_):
            g = Seq()
            if s_ % 4 == 0 and s_:
                g(f"s_add_u32 {sT1}, {sR4K}, {s_ * 1024}\ns_and_b32 {sT1}, {sT1}, 0x7fff\ns_add_u32 {sT1}, {sT1}, {sX_LD1}")
            g(f"buffer_load_dwordx4 {XF(4 * s_, 4)}, {vL16}, {SWS}, {sT1} offen offset:{(s_ % 4) * 1024} sc1", wtag=("x", L, s_))
            return g
        PRE = int(self.cfg.get("k1pre", 6))
        for s_ in range(PRE): q.extend(xl(s_))
        q("s_barrier")
        if self.cfg.get("ts2"): self.ts("k1bar")
        tr, mm = self.k1_groups(L)
        q.extend(tr(0)); q.extend(tr(1))
        stw = Seq()
        self.stats_sum(stw, 92)
        self.stats_finish(stw, 92, 94, 120, True)
        stw(f"v_mul_f32 v94, {f32(LOG2E)}, v93")
        stw = list(stw)
        for s_ in range(32):
            q.extend(mm(s_, 0))
            if s_ + PRE < 32: q.extend(xl(s_ + PRE))
            if s_ == 2: ldS = self.precheck(q, "v127", "v126", SWS, sFX_PL1, 2 * 512 + 1536)
            if s_ == 10: self.confirm(q, "v127", ldS)
            if 10 <= s_ < 14:
                i = s_ - 10
                q(f"buffer_load_dwordx4 {V(92 + 4 * i, 4)}, {vL16}, {SWS}, {sST_LD1} offen offset:{i * 1024} sc1")
            if s_ >= 22:
                for _ in range(4):
                    if stw: q.append(stw.pop(0))
            q.extend(mm(s_, 1))
            if s_ + 2 < 32: q.extend(tr(s_ + 2))
            if s_ == 30:
                assert not stw
                for t in range(2): self.mfma32(q, 48 + 16 * t, V(112 + 4 * t, 4), "v[120:123]", False)
        wq = [Tok() for _ in range(4)]
        self.wo_t = [Tok() for _ in range(4)]
        self.epi_items = singles([self.dma_packed(8 + j, wq[j]) for j in range(4)] +
                                 [self.dma_wo(0, j, self.wo_t[j]) for j in range(4)])
        self.wq_tok = wq

    def k1_rest(self, L):
        q = self.q; XF = self.XF
        self.gu_t = [Tok() for _ in range(16)]
        self.ts("k1main")
        if L == 0:
            self.barrier()
            q(f"ds_read_b128 v[112:115], {vCS}\nds_read_b128 v[116:119], {vCS} offset:512")
            for t in range(2): self.mfma32(q, 48 + 16 * t, V(112 + 4 * t, 4), "v[120:123]", False)
        e = Seq()
        self.pack16(e, 48, 80)
        self.mfma32(e, 48, WPHI(0, 4), V(80, 4), True)
        self.mfma32(e, 96, WPHI(4, 4), V(84, 4), True)
        for i in range(0, 16, 2):
            e(f"v_pk_mul_f32 {V(64 + i, 2)}, {V(64 + i, 2)}, v[92:93] op_sel:[0,1] op_sel_hi:[1,1]")
        self.pack16(e, 64, 112)
        e(f"ds_write_b128 {vPW16}, v[112:115]\nds_write_b128 {vPW16}, v[116:119] offset:32")
        self.softmax16(e, 48, 64, 80, 94)
        e(f"ds_write_b128 {vPW32}, v[64:67] offset:64\nds_write_b128 {vPW32}, v[68:71] offset:80")
        self.softmax16(e, 96, 72, 80, 94)
        e(f"ds_write_b128 {vPW32}, v[72:75] offset:128\nds_write_b128 {vPW32}, v[76:79] offset:144")
        q.extend(spread(e, self.epi_items, 0.0, 0.95))
        if L == 1: self.ones(q, 88)
        if self.cfg.get("ts2"): self.ts("softk")
        self.barrier()
        for st in range(4):
            self.tr2(q, Reg("v", 52 + 8 * st), vKB, st * 32 * PH_S, 4 * PH_S, None)
            self.tr2(q, Reg("v", 48 + 8 * st), vKA, st * 32 * PH_S, 4 * PH_S, None)
        at = self.soff(q, sAT, KV_OFF + L * 4352, sT2)
        for st in range(4):
            c0 = "0" if st == 0 else "v[80:83]"; c1 = "0" if st == 0 else "v[84:87]"
            q(f"v_mfma_f32_16x16x32_bf16 v[84:87], v[88:91], {V(52 + 8 * st, 4)}, {c1}")
            q(f"v_mfma_f32_16x16x32_bf16 v[80:83], {V(48 + 8 * st, 4)}, {V(52 + 8 * st, 4)}, {c0}")
        ta = Tok()
        q(f"buffer_atomic_add_f32 v84, {vAZ}, {SWS}, {at} offen offset:2048")
        for r in range(4):
            q(f"buffer_atomic_add_f32 v{80 + r}, {vAT}, {SWS}, {at} offen offset:{r * 128}", tok=ta)
        self.ts("atomics")
        if L == 0:
            q(f"""
            v_mov_b32 v85, {sADD}
            s_cmp_eq_u32 {sW}, 0
            s_cselect_b32 {sT0}, {sFLG}, {OOB}
            s_add_u32 {sT0}, {sT0}, {FREG}
            buffer_atomic_add v85, {vONE}, {SWS}, {sT0} offen
            """)
        q.wait_tok(*self.wq_tok, *self.wo_t)
        q("s_barrier")
        if L == 0:
            q(f"""
            s_sub_u32 {sT0}, s3, {sR4K}
            s_and_b32 {sT0}, {sT0}, 0x7fff
            s_add_u32 {sT0}, {sT0}, {R1}
            v_lshlrev_b32 v112, 3, {vLANE}
            v_add_u32 v113, {sT0}, v112
            ds_read_b64 v[114:115], v113
            s_sub_u32 {sT1}, {sWQP}, {sW2K}
            s_add_u32 {sT1}, {sT1}, s3
            s_add_u32 {sT1}, {sT1}, 65536
            """)
        def tr(s_):
            g = Seq(); self.tr2(g, Reg("a", WRING.lo + 4 * (s_ % 6)), vWQ, s_ * 1024, 256, ("Wq", L, s_)); return g
        def park(rnd, k):
            g = Seq(); j, nt = k >> 1, k & 1
            self.tr2(g, Reg("a", PARK.lo + 8 * (8 * rnd + j) + 4 * nt), [vWO0, vWO1][nt], R3 + j * 2048, 512, ("wo", L, 8 * rnd + j, nt))
            return g
        for s_ in range(4): q.extend(tr(s_))
        if L == 0: q(f"buffer_store_dwordx2 v[114:115], v112, {SWS}, {sT1} offen sc1", tok=ta)
        NG1 = int(self.cfg.get("ng1", 5))
        m = Seq()
        for s_ in range(32):
            self.mfma32(m, 48, WRING(4 * (s_ % 6), 4), XF(4 * s_, 4), s_ == 0, rtags={1: ("Wq", L, s_), 2: ("x", L, s_)})
            if s_ % 2 == 0: m.extend(park(0, s_ // 2))
            self.mfma32(m, 64, "v[88:91]", WRING(4 * (s_ % 6), 4), s_ == 0, rtags={2: ("Wq", L, s_)})
            if s_ + 4 < 32: m.extend(tr(s_ + 4))
        q.extend(spread(m, singles([self.dma_wgu(j) for j in range(NG1)])))
        q("v_mov_b32 v112, 1\nv_mov_b32 v82, 0\nv_mov_b32 v83, 0")
        q.wait_tok(ta)
        self.barrier()
        q(f"buffer_atomic_add v112, {vONE}, {SWS}, {sCNT} offen offset:{L * 128}")
        self.ts("qmain")
        wo2 = [Tok() for _ in range(4)]
        e = Seq()
        self.cs_split(e, "v64", 80)
        self.mfma32(e, 48, "v[80:83]", "v[120:123]", False)
        self.pack16(e, 48, 80)
        self.mfma32(e, 48, WPHI(0, 4), V(80, 4), True)
        self.mfma32(e, 64, WPHI(4, 4), V(84, 4), True)
        self.softmax16(e, 48, 96, 80, 94)
        self.softmax16(e, 64, 104, 80, 94)
        q.extend(spread(e, singles([self.dma_wo(1, j, wo2[j]) for j in range(4)]), 0.0, 0.6))
        q(f"v_and_b32 v56, 15, {vLANE}\nv_lshlrev_b32 v56, 4, v56")
        kl = self.soff(q, sKVL, KV_OFF + L * 4352, sT1)
        q(f"s_add_u32 {sT2}, {sKV}, {KV_OFF + L * 4352 + 4096}")
        self.ts("qepi")
        self.poll(vPOLL, SWS, "0", target=vTGT)
        q(f"""
        buffer_load_dwordx4 v[48:51], {vL16}, {SWS}, {kl} offen sc1
        buffer_load_dwordx4 v[52:55], v56, {SWS}, {sT2} offen sc1
        """)
        self.ts("kvpoll")
        gi = NG1
        q.extend(self.dma_wgu(gi)); gi += 1
        if L == 0 and not self.cfg["force_slow"]:
            q(f"""
            v_readlane_b32 {sT0}, {vP}, 1
            s_lshl_b32 {sT1}, {sADD}, 5
            s_cmp_eq_u32 {sT0}, {sT1}
            s_cselect_b32 {sMODE}, 0, 1
            """)
        so = self.soff(q, sO_ST, self.o_base(L) - self.o_base(0), sT1)
        q(f"""
        v_cvt_pk_bf16_f32 v48, v48, v49
        v_cvt_pk_bf16_f32 v49, v50, v51
        ds_write_b64 {vKW1}, v[48:49]
        v_cvt_pk_bf16_f32 v52, v52, v53
        v_cvt_pk_bf16_f32 v53, v54, v55
        ds_write_b64 {vKW2}, v[52:53]
        """)
        self.barrier()
        if self.cfg.get("ts2"): self.ts("B3")
        for hd in range(2):
            for s_ in range(2):
                q(f"ds_read_b128 {V(80 + 8 * hd + 4 * s_, 4)}, {vKR} offset:{hd * 17 * 80 + 16 * s_}")
        for hd in range(2):
            for s_ in range(2):
                self.mfma32(q, 48 + 16 * hd, V(80 + 8 * hd + 4 * s_, 4), V(96 + 8 * hd + 4 * s_, 4), s_ == 0)
        for k in range(2): q.extend(park(1, k))
        to = Tok()
        for hd in range(2):
            b = 48 + 16 * hd
            q(f"v_add_f32 v{b + 8}, {f32(1e-6)}, v{b + 8}")
            q(f"v_rcp_f32 v{b + 8}, v{b + 8}")
            for i in range(0, 8, 2):
                q(f"v_pk_mul_f32 {V(b + i, 2)}, {V(b + i, 2)}, {V(b + 8, 2)} op_sel_hi:[1,0]")
            for i in range(0, 8, 2):
                q(f"v_cvt_pk_bf16_f32 v{b + 12 + i // 2}, v{b + i}, v{b + i + 1}")
        q.dual_store([f"buffer_store_dwordx4 v[60:63], {vL16}, {SWS}, {so} offen",
                      f"buffer_store_dwordx4 v[76:79], {vL16}, {SWS}, {so} offen offset:1024"], uid("o"), tok=to)
        if self.cfg.get("ts2"): self.ts("ost")
        q.extend(self.dma_wgu(gi)); gi += 1
        for k in range(2, 16): q.extend(park(1, k))
        self.flag(q, sFO_ST, FO + L * 512, SWS, [to])
        self.gi = gi
        self.ts("o")

    def x_tail(self, t0, inst, final, extra=None):
        q = self.q
        for i in range(0, 16, 2):
            q(f"v_cvt_pk_bf16_f32 v{t0 + i // 2}, {XRES(i)}, {XRES(i + 1)}")
        if final:
            q(f"""
            buffer_store_dwordx4 {V(t0, 4)}, {vROW}, {SOUT}, {sOUTO} offen
            buffer_store_dwordx4 {V(t0 + 4, 4)}, {vROW}, {SOUT}, {sOUTO} offen offset:32
            """)
            return
        so = self.soff(q, sX_ST, self.x_base(inst) - self.x_base(0), sT1)
        tx = Tok()
        q.dual_store([f"buffer_store_dwordx4 {V(t0, 4)}, {vL16}, {SWS}, {so} offen",
                      f"buffer_store_dwordx4 {V(t0 + 4, 4)}, {vL16}, {SWS}, {so} offen offset:1024"], uid("x"), tok=tx)
        if self.cfg.get("ts2"): self.ts("xst")
        t = t0 + 8
        q(f"v_pk_add_f32 {V(t, 2)}, {XRES(0, 2)}, {XRES(2, 2)}")
        q(f"v_pk_mul_f32 {V(t + 2, 2)}, {XRES(0, 2)}, {XRES(0, 2)}")
        q(f"v_pk_fma_f32 {V(t + 2, 2)}, {XRES(2, 2)}, {XRES(2, 2)}, {V(t + 2, 2)}")
        for i in range(4, 16, 2):
            q(f"v_pk_add_f32 {V(t, 2)}, {V(t, 2)}, {XRES(i, 2)}")
            q(f"v_pk_fma_f32 {V(t + 2, 2)}, {XRES(i, 2)}, {XRES(i, 2)}, {V(t + 2, 2)}")
        q(f"""
        v_add_f32 v{t}, v{t}, v{t + 1}
        v_add_f32 v{t + 1}, v{t + 2}, v{t + 3}
        v_mov_b32 v{t + 2}, v{t}
        v_mov_b32 v{t + 3}, v{t + 1}
        v_lshrrev_b32 v{t + 4}, 5, {vLANE}
        v_lshl_add_u32 v{t + 4}, v{t + 4}, 28, {vL16}
        v_permlane32_swap_b32 v{t}, v{t + 2}
        v_permlane32_swap_b32 v{t + 1}, v{t + 3}
        v_pk_add_f32 {V(t, 2)}, {V(t, 2)}, {V(t + 2, 2)}
        """)
        so = self.soff(q, sST_ST, self.st_base(inst) - STAT_OFF, sT1)
        ts_ = Tok()
        q.dual_store([f"buffer_store_dwordx2 {V(t, 2)}, v{t + 4}, {SWS}, {so} offen"], uid("s"), tok=ts_)
        self.flag(q, sFX_ST, inst * 512, SWS, [tx])
        if extra: q.extend(extra)
        self.flag(q, sFX_ST, inst * 512 + 1536, SWS, [ts_])

    def k2(self, L):
        q = self.q
        q(f"""
        v_and_b32 v14, 7, {vLANE}
        v_lshlrev_b32 v14, 2, v14
        s_lshl_b32 {sT0}, {sW}, 12
        s_add_u32 {sT0}, {sT0}, {R2}
        v_add_u32 v12, {sT0}, {vL16}
        v_xor_b32 v13, 0x2000, v12
        """)
        sb = self.soff(q, sO_LD, self.o_base(L) - self.o_base(0), sT2)
        self.poll("v14", SWS, sFO_PL, FO + L * 512)
        self.ts("fo")
        OF = Reg("v", 128)
        def ol(j):
            g = Seq()
            so = sb if j < 4 else sT1
            if j % 4 == 0 and j: g(f"s_add_u32 {sT1}, {sb}, {j * 1024}")
            g(f"buffer_load_dwordx4 {OF(4 * j, 4)}, {vL16}, {SWS}, {so} offen offset:{(j % 4) * 1024} sc1", wtag=("o", L, j))
            return g
        PRE = int(self.cfg.get("k2pre", 5))
        for j in range(PRE): q.extend(ol(j))
        gi = self.gi
        gs = singles([self.dma_wgu(gi), self.dma_wgu(gi + 1)]); gi += 2
        def mm(j, nt):
            self.mfma32(q, 48 + 16 * nt, PARK(8 * j + 4 * nt, 4), OF(4 * j, 4), j == 0,
                        rtags={1: ("wo", L, j, nt), 2: ("o", L, j)})
        TAIL = 3
        for j in range(16 - TAIL):
            mm(j, 1)
            if j + PRE < 16: q.extend(ol(j + PRE))
            elif gs: q.extend(gs.pop(0))
            mm(j, 0)
        for j in range(16 - TAIL, 16):
            mm(j, 1)
            if gs: q.extend(gs.pop(0))
        for j in range(16 - TAIL, 16): mm(j, 0)
        if self.cfg.get("ts2"): self.ts("k2main")
        for i in range(4):
            q(f"ds_write_b128 v12, {V(64 + 4 * i, 4)} offset:{i * 1024}")
        self.barrier()
        for i in range(4):
            q(f"ds_read_b128 {V(64 + 4 * i, 4)}, v13 offset:{i * 1024}")
        for i in range(0, 16, 2):
            q(f"v_pk_add_f32 {XRES(i, 2)}, {XRES(i, 2)}, {V(48 + i, 2)}")
        for i in range(0, 16, 2):
            q(f"v_pk_add_f32 {XRES(i, 2)}, {XRES(i, 2)}, {V(64 + i, 2)}")
        self.x_tail(48, L, False, extra=self.dma_wgu(gi)); gi += 1
        self.gi = gi
        self.ts("k2")

    def k3(self, L):
        q = self.q
        ACC = 48; XR = 176; NXR = 6
        acc = lambda mt, t: ACC + 64 * mt + 16 * t
        q(f"""
        v_and_b32 v12, 31, {vLANE}
        v_lshlrev_b32 v22, 3, v12
        v_lshlrev_b32 v12, 2, v12
        v_add_u32 v17, 0x8000, {vL16}
        s_lshl_b32 {sT1}, {sW}, 5
        v_xor_b32 v13, {sT1}, {vTG}
        v_add_u32 v13, {R0}, v13
        v_xor_b32 v14, 32, v13
        v_xor_b32 v15, 64, v13
        v_xor_b32 v16, 96, v13
        v_add_u32 v18, {sW8K}, {vT128}
        v_xor_b32 v19, 64, v18
        v_add_u32 v20, {R2}, v18
        v_add_u32 v21, {R2}, v19
        s_lshl_b32 {sT1}, {sW}, 8
        s_add_u32 {sT1}, {sT1}, {CS3}
        v_add_u32 v22, {sT1}, v22
        s_lshl_b32 {sT1}, {sW}, 10
        v_add_u32 v24, {sT1}, {vL16}
        v_xor_b32 v25, 1024, v24
        v_xor_b32 v26, 2048, v24
        v_xor_b32 v27, 3072, v24
        v_and_b32 v23, 7, {vLANE}
        v_min_u32 v23, 6, v23
        v_lshlrev_b32 v23, 2, v23
        """)
        if L == 0:
            q("v_mov_b32 v29, 0x3f803f80")
            for i in range(4): q(f"v_accvgpr_write_b32 a{204 + i}, v29")
        xb = self.soff(q, sX_LD3, self.x_base(L) - self.x_base(0), sT2)
        self.poll("v12", SWS, sFX_PL3, L * 512)
        self.ts("fx1")
        def xl(s_):
            g = Seq()
            so = xb if s_ < 4 else sT1
            if s_ % 4 == 0 and s_: g(f"s_add_u32 {sT1}, {xb}, {s_ * 1024}")
            for mt in range(2):
                g(f"buffer_load_dwordx4 {V(XR + 8 * (s_ % NXR) + 4 * mt, 4)}, {vL16 if mt == 0 else 'v17'}, {SWS3}, {so} offen offset:{(s_ % 4) * 1024} sc1",
                  wtag=("x1", L, s_, mt))
            return g
        for s_ in range(2): q.extend(xl(s_))
        q("s_barrier")
        if self.cfg.get("ts2"): self.ts("k3bar")
        def tr(f):
            s_, t = divmod(f, 4)
            g = Seq()
            if f == 64:
                for i in range(4): g(f"v_subrev_u32 v{13 + i}, {R0 - R1}, v{13 + i}")
            if f == 96:
                for i in range(4): g(f"v_add_u32 v{13 + i}, {R0 - R1}, v{13 + i}")
            c = s_ // 8
            off = (GU_BASE[c] - (R1 if c == 2 else R0)) + (s_ % 8) * 4096
            self.tr2(g, Reg("a", WRING.lo + 4 * (f % 6)), f"v{13 + t}", off, 512, ("Wgu", L, f))
            return g
        wd_t = [Tok() for _ in range(28)]
        NS = 7
        slot = lambda u: (R3 + (u % NS) * 2048) if u % NS < 4 else (R2 + (u % NS - 4) * 2048)
        park_tok = {}
        def wd_issue(u):
            g = Seq()
            if u >= NS: g.wait_tok(park_tok[u - NS])
            g.extend(self.dma_wd(u, slot(u), wd_t[u]))
            return g
        def wd_park(u):
            g = Seq()
            g.wait_tok(wd_t[u])
            lo = u % NS < 4
            for nt in range(2):
                self.tr2(g, Reg("a", PARK.lo + 8 * u + 4 * nt), f"v{(18 if lo else 20) + nt}", slot(u) - (0 if lo else R2), 512, ("wd", L, u, nt))
            g[-1].tok = park_tok[u] = Tok()
            return g
        NMAIN = int(self.cfg.get("wd_main", 18))
        assert NMAIN <= 25
        gu_steps = {}
        st = 3
        for j in range(self.gi, 12): gu_steps[st] = j; st += 2
        for k, j in enumerate(range(12, 16)): gu_steps[10 + 3 * k] = j
        free_steps = [s_ for s_ in range(3, 32) if s_ not in gu_steps and s_ not in (21, 22, 23, 24)]
        issue_at = {}
        for u in range(NMAIN): issue_at[free_steps[(u * len(free_steps)) // NMAIN]] = u
        LAG = int(self.cfg.get("wd_lag", 5))
        issued = 0; parked = 0
        for f in range(4): q.extend(tr(f))
        stw = Seq()
        C1 = -2.0 * math.sqrt(2.0 / math.pi) * LOG2E
        C2 = C1 * 0.044715
        for mt in range(2):
            b = 224 + 16 * mt
            self.stats_sum(stw, b)
            self.stats_finish(stw, b, b + 2, b + 8, False)
            stw(f"""
            v_mul_f32 v{b + 5}, v{b + 1}, v{b + 1}
            v_mul_f32 v{b + 4}, {f32(C1)}, v{b + 1}
            v_mul_f32 v{b + 5}, v{b + 5}, v{b + 1}
            v_mul_f32 v{b + 5}, {f32(C2)}, v{b + 5}
            """)
        stw = list(stw)
        xs = {0: [2, 3], 1: [4, 5], 2: [6, 7]}
        for s_ in range(3, 27): xs[s_] = [s_ + 5]
        for s_ in range(32):
            vm = []
            for k in xs.get(s_, []): vm += singles([xl(k)])
            if s_ in issue_at:
                vm += singles([wd_issue(issued)]); issued += 1
            if s_ in gu_steps: vm += singles([self.dma_wgu(gu_steps[s_])])
            if s_ == 14:
                g = Seq(); ldS = self.precheck(g, "v29", "v12", SWS, sFX_PL3, L * 512 + 1536); vm.append(g)
            if s_ in (21, 22, 23, 24):
                g = Seq(); k = s_ - 21
                if k == 0: self.confirm(g, "v29", ldS)
                so = self.soff(g, sST_LD3, self.st_base(L) - STAT_OFF + (k // 2) * 4096, sT0)
                for i in range(2):
                    g(f"buffer_load_dwordx4 {V(224 + 8 * k + 4 * i, 4)}, {vL16}, {SWS3}, {so} offen offset:{(2 * (k % 2) + i) * 1024} sc1")
                vm += singles([g])
            for t in range(4):
                f = 4 * s_ + t
                for mt in range(2):
                    self.mfma32(q, acc(mt, t), WRING(4 * (f % 6), 4), V(XR + 8 * (s_ % NXR) + 4 * mt, 4), s_ == 0,
                                rtags={1: ("Wgu", L, f), 2: ("x1", L, s_, mt)})
                    if mt == 0:
                        if vm: q.extend(vm.pop(0))
                        if t == 3:
                            while vm: q.extend(vm.pop(0))
                        if s_ >= 28:
                            for _ in range(4):
                                if stw: q.append(stw.pop(0))
                if L == 0 and t == 0:
                    q(f"v_mfma_f32_32x32x16_bf16 a[208:223], a[204:207], {WRING(4 * (f % 6), 4)}, {'0' if s_ == 0 else 'a[208:223]'}", rtags={2: ("Wgu", L, f)})
                if f + 4 == 36: q("s_barrier")
                if f + 4 == 64 and self.gi < 12:
                    q.wait_tok(*self.gu_t[8:12]); q("s_barrier")
                if f + 4 == 96:
                    q.wait_tok(*self.gu_t[12:16]); q("s_barrier")
                if f + 4 < 128: q.extend(tr(f + 4))
                if t == 1 and issued - parked > LAG:
                    q.extend(wd_park(parked)); parked += 1
                if self.cfg.get("ts2") and L == 1 and f in (3, 31, 63, 95): self.ts(f"k3f{f}")
        q.extend(stw)
        self.ts("k3main")
        if L == 0:
            q("v_accvgpr_read_b32 v176, a208")
            self.cs_split(q, "v176", 178)
            q("ds_write_b64 v22, v[178:179]")
            self.barrier()
        for t in range(5):
            if t % 4: q(f"v_xor_b32 v29, {(t % 4) * 256}, v22")
            q(f"ds_read_b64 {V(176 + 2 * t, 2)}, {'v29' if t % 4 else 'v22'}")
        def corr(mt, t):
            g = Seq(); self.mfma32(g, acc(mt, t), V(176 + 2 * t, 4), V(224 + 16 * mt + 8, 4), False); return g
        def pump():
            nonlocal issued, parked
            g = []
            if parked < issued and (issued - parked >= 4 or issued == 28):
                g.append(wd_park(parked)); parked += 1
            if issued < 28:
                g += singles([wd_issue(issued)]); issued += 1
            return g
        hs = self.soff(q, sH_ST, self.h_base(L) - H_OFF, "s76")
        th = [Tok(), Tok()]
        q.extend(corr(0, 0)); q.extend(corr(0, 1))
        for g in pump() + pump(): q.extend(g)
        for n in range(8):
            mt, t = divmod(n, 4)
            b = 224 + 16 * mt
            if n == 4:
                q(f"s_add_u32 s76, {hs}, {HMT}"); hs = "s76"
            a = acc(mt, t); T = 208
            e = Seq()
            for i in range(0, 8, 2):
                e(f"v_pk_mul_f32 {V(T + i, 2)}, {V(a + i, 2)}, {V(a + i, 2)}")
            for i in range(0, 8, 2):
                e(f"v_pk_fma_f32 {V(T + i, 2)}, {V(T + i, 2)}, {V(b + 4, 2)}, {V(b + 4, 2)} op_sel:[0,1,0] op_sel_hi:[1,1,0]")
            for i in range(0, 8, 2):
                e(f"v_pk_mul_f32 {V(T + i, 2)}, {V(T + i, 2)}, {V(a + i, 2)}")
            if n + 2 < 8: e.extend(corr(*divmod(n + 2, 4)))
            for i in range(8):
                e(f"v_exp_f32 v{T + i}, v{T + i}")
            for i in range(0, 8, 2):
                e(f"v_pk_mul_f32 {V(a + i, 2)}, {V(a + i, 2)}, {V(a + 8 + i, 2)}")
            for i in range(0, 8, 2):
                e(f"v_pk_fma_f32 {V(T + i, 2)}, {V(T + i, 2)}, {V(b + 2, 2)}, {V(b + 2, 2)} op_sel_hi:[1,0,0]")
            for i in range(8):
                e(f"v_rcp_f32 v{T + i}, v{T + i}")
            for i in range(0, 8, 2):
                e(f"v_pk_mul_f32 {V(a + i, 2)}, {V(a + i, 2)}, {V(T + i, 2)}")
            for i in range(0, 8, 2):
                e(f"v_cvt_pk_bf16_f32 v{a + 8 + i // 2}, v{a + i}, v{a + i + 1}")
            q.extend(spread(e, pump(), 0.1, 0.9))
            stl = f"buffer_store_dwordx4 {V(a + 8, 4)}, v{24 + t}, {SWS3}, {hs} offen"
            if L == 0 and self.cfg.get("h0wt", "1") == "1": q(stl + " sc1", tok=th[mt])
            else: q.dual_store([stl], uid("h"), tok=th[mt])
            if n == (6 if L == 0 else 5): self.flag(q, sFH_ST, L * 1024, SWS3, [th[0]])
        while parked < 28:
            for g in pump(): q.extend(g)
        self.th_b = th[1]
        self.ts("k3")

    def k4(self, L):
        q = self.q
        ACC = 48; HR = 112; NH = 36
        hb = self.soff(q, sH_LD, self.h_base(L) - H_OFF, sT2)
        q(f"v_add_u32 v18, {HMT}, {vL16}")
        self.flag(q, sFH_ST, L * 1024 + 128, SWS3, [self.th_b])
        self.poll("v23", SWS, sFH_PL, L * 1024)
        self.ts("fh")
        order = [(mt, u) for mt in range(2) for u in range(28)]
        def hl(n):
            mt, u = order[n]
            g = Seq()
            if u % 4 == 0: g(f"s_add_u32 {sT1}, {hb}, {sRH}")
            g(f"buffer_load_dwordx4 {V(HR + 4 * (n % NH), 4)}, {vL16 if mt == 0 else 'v18'}, {SWS}, {sT1} offen offset:{(u % 4) * 1024} sc1", wtag=("h", L, n))
            if u % 4 == 1: g(f"s_add_u32 {sRH}, {sRH}, 4096\ns_cmp_eq_u32 {sRH}, 28672\ns_cselect_b32 {sRH}, 0, {sRH}")
            return g
        PRE = int(self.cfg.get("k4pre", 8))
        for n in range(PRE): q.extend(hl(n))
        self.barrier()
        su = Seq()
        su(f"""
        s_and_b32 {sT0}, {sW}, 2
        s_lshl_b32 {sT0}, {sT0}, 14
        s_and_b32 s76, {sW}, 1
        s_lshl_b32 s76, s76, 12
        s_add_u32 {sT0}, {sT0}, s76
        v_add_u32 v12, {sT0}, {vL16}
        v_xor_b32 v13, 0x5000, v12
        v_xor_b32 v14, 0xa000, v12
        v_xor_b32 v15, 0xf000, v12
        s_lshl_b32 {sT0}, {sW}, 14
        v_add_u32 v16, {sT0}, {vL16}
        """)
        su = list(su)
        wk = [Tok() for _ in range(8)]
        pk = singles([self.dma_packed(j, wk[j]) for j in range(8)]) if L == 0 else []
        def wr(bk): return [f"ds_write_b128 v{12 + bk}, {V(ACC + 16 * bk + 4 * i, 4)} offset:{i * 1024}" for i in range(4)]
        def ad(bk): return [f"v_pk_add_f32 {XRES(i, 2)}, {XRES(i, 2)}, {V(ACC + 16 * bk + i, 2)}" for i in range(0, 16, 2)]
        odd = f"s_bitcmp1_b32 {sW}, 0"
        TAIL = 3
        def mm(n, nt):
            mt, u = order[n]
            self.mfma32(q, ACC + 16 * (2 * nt + mt), PARK(8 * u + 4 * nt, 4), V(HR + 4 * (n % NH), 4), u == 0,
                        rtags={1: ("wd", L, u, nt), 2: ("h", L, n)})
        for n in range(56 - TAIL):
            mm(n, 1)
            if n == 28 - PRE - 6: ldB = self.precheck(q, "v17", "v23", SWS, sFH_PL, L * 1024 + 128)
            if n + PRE == 28: self.confirm(q, "v17", ldB)
            if n + PRE < 56: q.extend(hl(n + PRE))
            elif pk: q.extend(pk.pop(0))
            mm(n, 0)
            if su: q.append(su.pop(0))
            if n in (32, 33, 34, 35): q(wr(2)[n - 32])
            if n == 38: q.alt(odd, ad(0), wr(0) + ["s_nop 0"] * 4, uid("a"))
        for n in range(56 - TAIL, 56):
            mm(n, 1)
            if pk: q.extend(pk.pop(0))
        for n in range(56 - TAIL, 56): mm(n, 0)
        self.ts("k4main")
        for l in wr(3): q(l)
        q.alt(odd, wr(1) + ["s_nop 0"] * 4, ad(1), uid("a"))
        for _ in range(4):
            if pk: q.extend(pk.pop(0))
        q("s_waitcnt lgkmcnt(0)")
        q("s_barrier")
        for d in range(1, 4):
            for i in range(4):
                q(f"ds_read_b128 {V(48 + 16 * d + 4 * i, 4)}, v16 offset:{d * 4096 + i * 1024}")
        for d in range(1, 4):
            for l in ad(d): q(l)
        ex = Seq()
        for g in pk: ex.extend(g)
        self.x_tail(48, 2, L == 1, extra=ex)
        self.ts("k4")

    def build(self):
        q = self.q
        self.prologue()
        self.k1_first(); self.k1_rest(0); self.k2(0); self.k3(0); self.k4(0)
        self.k1_second(); self.k1_rest(1); self.k2(1); self.k3(1); self.k4(1)
        if self.cfg["ts"]:
            q.wait_vm0()
            q(f"""
            s_memrealtime s[76:77]
            s_lshl3_add_u32 {sT0}, {sI}, {sG}
            s_lshl2_add_u32 {sT0}, {sT0}, {sW}
            s_lshl_b32 {sT0}, {sT0}, 8
            s_add_u32 {sT0}, {sT0}, {TS_OFF}
            v_writelane_b32 {vTS}, {sMODE}, 62
            v_writelane_b32 {vTS}, {sBUD}, 63
            v_writelane_b32 {vTS}, s76, 61
            v_lshlrev_b32 v12, 2, {vLANE}
            buffer_store_dword {vTS}, v12, {SWS}, {sT0} offen
            """)
        (main, ool), seq = finalize(q, sMODE)
        hdr = open("interleave_layers__linear_kernel_hedgehog__geglu_ffn__prompt.s.ref").read().split("; Override")[0]
        out = [hdr.rstrip(), f"; @launch grid=(256,1,1) block=(256,1,1) lds={LDS_BYTES}",
               '.amdgcn_target "amdgcn-amd-amdhsa--gfx950"', ".text", f".globl {KNAME}", ".p2align 8",
               f".type {KNAME},@function", f"{KNAME}:", main, "L_end:", "    s_endpgm", ool, "L_last:", "    s_endpgm",
               '.section .rodata,"a"', ".p2align 6", f".amdhsa_kernel {KNAME}",
               "  .amdhsa_next_free_vgpr 512", "  .amdhsa_next_free_sgpr 102", "  .amdhsa_accum_offset 256",
               "  .amdhsa_group_segment_fixed_size 0", "  .amdhsa_kernarg_size 88", "  .amdhsa_user_sgpr_count 2",
               "  .amdhsa_user_sgpr_kernarg_segment_ptr 1", "  .amdhsa_system_sgpr_workgroup_id_x 1",
               "  .amdhsa_float_denorm_mode_32 3", "  .amdhsa_float_denorm_mode_16_64 3",
               ".end_amdhsa_kernel", ""]
        return "\n".join(out)


if __name__ == "__main__":
    cfg = dict(CFG)
    out = sys.argv[1]
    for a in sys.argv[2:]:
        k, v = a.split("=")
        cfg[k] = {"0": False, "1": True}.get(v, v) if k in CFG else v
    g = Gen(cfg)
    txt = g.build()
    open(out, "w").write(txt)
    if cfg["ts"]:
        open(out + ".tsnames", "w").write("\n".join(g.tsnames))
```

```python
import sys, struct, math
from dsl import *

KNAME = "interleave_layers__linear_kernel_hedgehog__geglu_ffn__prompt_kernel"
CFG = dict(ts=False, force_slow=False, reuse=True)

KV_OFF = 0; KV_HP = 9216
FLG_OFF = 0x24000; FLG_G = 8192
FO, FX, FH, FREG = 0, 1024, 4096, 6144
STAT_OFF = 0x40000
O_OFF = 0x100000; X1_OFF = 0x500000; X2_OFF = 0x900000; H_OFF = 0xB00000; H_L = 0x700000
HMT = 112 * 1024
TS_OFF = 0x1900000
WQP_OFF = 0x1A00000
WS_SIZE = 0x1C00000
OOB = 0x7000000

R3, R1, R0, R2 = 0, 32768, 65536, 131072
CS1 = 163840 - 2048
CS3 = 163840 - 1024
PH_S = 208
KVB = R2 + 27648
LDS_BYTES = 163840
GU_BASE = [R0, R0 + 32768, R1, R0]

SX, SQKV, SWO, SWG, SWU, SWD, SOUT, SWS, SWS3, SDBG, SPHI = [S(4 + 4 * i, 4) for i in range(11)]
(sW, sG, sI, sHP, sRB, sCT, sRQ, sMODE, sBUD, sT0, sT1, sT2, sMT1, sMT2, sFLG, sKV, sADD,
 sQKVO, sGUO, sWDO, sWOO, sW2K, sW8K, sR4K, sPART, sQO, sWQP) = [S(48 + i) for i in range(27)]
sOUTO = S(75)
sE0 = S(76, 2)
(sO_ST, sFO_ST, sFO_PL, sO_LD, sX_ST, sST_ST, sFX_ST, sFX_PL3, sFX_PL1, sX_LD3, sX_LD1, sST_LD3,
 sST_LD1, sH_ST, sFH_ST, sFH_PL, sH_LD, sAT) = [S(78 + i) for i in range(18)]
sTS = S(96, 2)
sCNT, sKVL = S(98), S(99)
sRG, sG4K = S(100), S(101)
sD, sRH, sRW = S(0), S(1), S(2)

vL16, vT64, vT128, vTG, vDQ, vD128, vDG, vROW, vLANE = [V(1 + i) for i in range(9)]
vD128b, vDU = V(10), V(11)
vONE = V(28)
vP = V(30); vTS = V(31)
vTCH = V(0)
XRES = Reg("v", 32)
WRING = Reg("a", 224)
WPHI = Reg("a", 248)
PARK = Reg("a", 0)
(vKVT, vCS, vPW16, vPW32, vKA, vKB, vAT, vAZ, vWQ, vWO0, vWO1, vPOLL, vTGT, vKW1, vKW2, vKR) = [V(12 + i) for i in range(16)]

LOG2E = 1.4426950408889634
def f32(x): return "0x%08x" % struct.unpack("<I", struct.pack("<f", x))[0]

_uid = [0]
def uid(p):
    _uid[0] += 1
    return f"{p}{_uid[0]}"


class Gen:
    def __init__(self, cfg):
        self.cfg = cfg
        self.q = Seq()
        self.nts = 0
        self.tsnames = []
        r = cfg["reuse"]
        self.o_base = (lambda L: H_OFF) if r else (lambda L: O_OFF + L * 0x200000)
        self.o_mt = HMT if r else 32768
        self.x_base = (lambda inst: X1_OFF) if r else (lambda inst: [X1_OFF, X1_OFF + 0x200000, X2_OFF][inst])
        self.h_base = (lambda L: H_OFF) if r else (lambda L: H_OFF + L * H_L)
        self.st_base = (lambda inst: STAT_OFF) if r else (lambda inst: STAT_OFF + inst * 64 * 4096)

    def ts(self, name):
        if not self.cfg["ts"]:
            return
        k = self.nts; self.nts += 1; self.tsnames.append(name)
        assert k < 60
        self.q.raw(f"{'s_memrealtime' if self.cfg.get('rt') else 's_memtime'} {sTS}\ns_waitcnt lgkmcnt(0)\nv_writelane_b32 {vTS}, s96, {k}", drains_lgkm=True)

    def soff(self, s, reg, const, tmp):
        if const == 0: return reg
        s(f"s_add_u32 {tmp}, {reg}, {const}")
        return tmp

    def _cmp(self, reg, target):
        if target is None: return f"v_cmp_eq_u32 vcc, 0, {reg}\n"
        return f"v_and_b32 v29, 63, {reg}\nv_cmp_ne_u32 vcc, v29, {target}\n"

    def _loop(self, ld, reg, target, D):
        L = uid("L_poll")
        return (f"{L}:\n{ld}\ns_waitcnt vmcnt(0)\n" + self._cmp(reg, target) +
                f"s_nop 1\ns_cbranch_vccz {D}\ns_sub_u32 {sBUD}, {sBUD}, 1\ns_cbranch_scc0 {L}\ns_mov_b32 {sBUD}, 0\n")

    def poll(self, voff, srd, soff, off=0, target=None):
        D = uid("L_done")
        ld = f"buffer_load_dword {vP}, {voff}, {srd}, {soff} offen offset:{off} sc1"
        self.q.raw(self._loop(ld, vP, target, D) + f"{D}:\n", drains_vm=True, writes={"v29", "v30"})

    def precheck(self, s, reg, voff, srd, soff, off=0):
        ld = f"buffer_load_dword {reg}, {voff}, {srd}, {soff} offen offset:{off} sc1"
        s(ld)
        return ld

    def confirm(self, s, reg, ld):
        D = uid("L_done")
        s.raw(self._cmp(reg, None) + f"s_nop 1\ns_cbranch_vccz {D}\n" + self._loop(ld, reg, None, D) + f"{D}:\n", writes={reg})

    def flag(self, s, soff_reg, off, srd, toks):
        s(f"v_mov_b32 {vP}, 1")
        s.wait_tok(*toks)
        s.dual_store([f"buffer_store_dword {vP}, {vONE}, {srd}, {soff_reg} offen offset:{off}"], uid("f"))

    def barrier(self):
        self.q.wait_lgkm0()
        self.q("s_barrier")

    def dma_wq(self, j, tok):
        s = Seq()
        if j % 4 == 0:
            s(f"""
            s_lshl_b32 {sQO}, {sW}, 13
            s_add_u32 {sQO}, {sQO}, {sR4K}
            s_add_u32 {sQO}, {sQO}, {(j // 4) * 4096}
            s_and_b32 {sQO}, {sQO}, 0x7000
            s_mul_i32 {sQO}, {sQO}, 48
            s_lshl_b32 {sD}, {sHP}, 6
            s_add_u32 {sQO}, {sQO}, {sD}
            """)
        s(f"s_add_u32 m0, {sW8K}, {R1 + j * 1024}")
        s(f"s_add_u32 {sD}, {sQO}, {(j % 4) * 49152}")
        s(f"buffer_load_dwordx4 {vDQ}, {SQKV}, {sD} offen lds", tok=tok)
        return s

    def dma_packed(self, j, tok):
        s = Seq()
        if j < 8:
            s(f"s_add_u32 {sD}, {sR4K}, {j * 4096}")
            s(f"s_and_b32 {sD}, {sD}, 0x7000")
            s(f"s_add_u32 m0, {sW2K}, {R0 + j * 8192}")
            s(f"s_lshl1_add_u32 {sD}, {sD}, {sWQP}")
        else:
            s(f"s_add_u32 {sD}, {sQKVO}, {(j - 8) * 8192}")
            s(f"s_and_b32 {sD}, {sD}, 0x7fff")
            s(f"s_add_u32 m0, {sW2K}, {R1 + (j - 8) * 8192}")
            s(f"s_add_u32 {sD}, {sD}, {sQO}")
        s(f"buffer_load_dwordx4 {vL16}, {SWS}, {sD} offen sc1 lds")
        s(f"buffer_load_dwordx4 {vL16}, {SWS}, {sD} offen offset:1024 sc1 lds", tok=tok)
        return s

    def dma_wo(self, rnd, jj, tok):
        s = Seq()
        s(f"s_add_u32 m0, {sW8K}, {R3 + jj * 2048}")
        s(f"s_add_u32 {sD}, {sWOO}, {(8 * rnd + jj) * 16384}")
        s(f"buffer_load_dwordx4 {vD128}, {SWO}, {sD} offen lds")
        s(f"buffer_load_dwordx4 {vD128b}, {SWO}, {sD} offen offset:1024 lds", tok=tok)
        return s

    def dma_wgu(self, j):
        s = Seq()
        if self.cfg.get("ab_gu") == "all" or (self.cfg.get("ab_gu") == "c3" and j >= 10): return s
        s(f"s_add_u32 m0, {sW2K}, {GU_BASE[j // 4] + (j % 4) * 8192}")
        s(f"s_add_u32 {sD}, {sGUO}, {sRG}")
        s(f"buffer_load_dwordx4 {vDG}, {SWG}, {sD} offen lds")
        s(f"s_add_u32 {sRG}, {sRG}, {4 * 28672}")
        if j % 2 == 1:
            s(f"s_cmp_eq_u32 {sRG}, {64 * 28672}")
            s(f"s_cselect_b32 {sRG}, 0, {sRG}")
        s(f"buffer_load_dwordx4 {vDU}, {SWU}, {sD} offen offset:1024 lds", tok=self.gu_t[j])
        return s

    def dma_wd(self, u, slot, tok):
        s = Seq()
        if self.cfg.get("ab_wd"): return s
        s(f"s_add_u32 m0, {sW8K}, {slot}")
        s(f"s_add_u32 {sD}, {sWDO}, {sRW}")
        s(f"buffer_load_dwordx4 {vD128}, {SWD}, {sD} offen lds")
        s(f"s_add_u32 {sRW}, {sRW}, 16384")
        if u % 4 == 3:
            s(f"s_cmp_eq_u32 {sRW}, {28 * 16384}")
            s(f"s_cselect_b32 {sRW}, 0, {sRW}")
        s(f"buffer_load_dwordx4 {vD128b}, {SWD}, {sD} offen offset:1024 lds", tok=tok)
        return s

    def stats_finish(self, s, s1, tmp, bfrag, dup):
        a, b = V(s1), V(s1 + 1); t0, t1 = V(tmp), V(tmp + 1)
        s(f"v_mov_b32 {t0}, {a}")
        s(f"v_mov_b32 {t1}, {b}")
        s(f"v_permlane32_swap_b32 {a}, {t0}")
        s(f"v_permlane32_swap_b32 {b}, {t1}")
        s(f"v_add_f32 {a}, {a}, {t0}")
        s(f"v_add_f32 {b}, {b}, {t1}")
        s(f"v_mul_f32 {t1}, {f32(1.0 / 512)}, {a}")
        s(f"v_mul_f32 {b}, {f32(1.0 / 512)}, {b}")
        s(f"v_mul_f32 {a}, {f32(-1.0 / 1024)}, {a}")
        s(f"v_fma_f32 {t0}, -{t1}, {t1}, {b}")
        s(f"v_cvt_pk_bf16_f32 {t1}, {a}, {a}")
        s(f"v_max_f32 {t0}, 0, {t0}")
        s(f"v_and_b32 {t1}, 0xffff0000, {t1}")
        s(f"v_add_f32 {t0}, {f32(1e-5)}, {t0}")
        s(f"v_sub_f32 {t1}, {a}, {t1}")
        s(f"v_rsq_f32 {b}, {t0}")
        s(f"v_cvt_pk_bf16_f32 v{bfrag}, {a}, {t1}")
        s(f"v_mov_b32 v{bfrag + 1}, v{bfrag}")
        for i in (2, 3): s(f"v_mov_b32 v{bfrag + i}, {'v%d' % bfrag if dup else '0'}")

    def cs_split(self, s, c, out):
        s(f"v_cvt_pk_bf16_f32 v{out}, {c}, {c}")
        s(f"v_and_b32 v{out + 1}, 0xffff0000, v{out}")
        s(f"v_sub_f32 v{out + 1}, {c}, v{out + 1}")
        s(f"v_cvt_pk_bf16_f32 v{out + 1}, v{out + 1}, v{out + 1}")

    def pack16(self, s, acc, out):
        for i in range(0, 16, 2):
            s(f"v_cvt_pk_bf16_f32 {V(out + i // 2)}, {V(acc + i)}, {V(acc + i + 1)}")

    def stats_sum(self, s, base):
        for st in (8, 4, 2):
            for i in range(0, st, 2):
                s(f"v_pk_add_f32 {V(base + i, 2)}, {V(base + i, 2)}, {V(base + i + st, 2)}")

    def softmax16(self, s, p, out, tmp, c):
        t = V(tmp); u = V(tmp + 1); c2 = V(c, 2)
        s(f"v_max3_f32 {t}, {V(p)}, {V(p + 1)}, {V(p + 2)}")
        s(f"v_max3_f32 {u}, {V(p + 3)}, {V(p + 4)}, {V(p + 5)}")
        s(f"v_max3_f32 {t}, {t}, {V(p + 6)}, {V(p + 7)}")
        s(f"v_max3_f32 {u}, {u}, {V(p + 8)}, {V(p + 9)}")
        s(f"v_max3_f32 {t}, {t}, {V(p + 10)}, {V(p + 11)}")
        s(f"v_max3_f32 {u}, {u}, {V(p + 12)}, {V(p + 13)}")
        s(f"v_max3_f32 {t}, {t}, {V(p + 14)}, {V(p + 15)}")
        s(f"v_max_f32 {t}, {t}, {u}")
        s(f"v_mul_f32 {V(c + 1)}, {V(c)}, {t}")
        for i in range(0, 16, 2):
            s(f"v_pk_fma_f32 {V(p + i, 2)}, {V(p + i, 2)}, {c2}, {c2} op_sel:[0,0,1] op_sel_hi:[1,0,1] neg_lo:[0,0,1] neg_hi:[0,0,1]")
        for i in range(16):
            s(f"v_exp_f32 {V(p + i)}, {V(p + i)}")
        for i in range(0, 8, 2):
            s(f"v_pk_add_f32 {V(tmp + i, 2)}, {V(p + i, 2)}, {V(p + 8 + i, 2)}")
        s(f"v_pk_add_f32 {V(tmp, 2)}, {V(tmp, 2)}, {V(tmp + 4, 2)}")
        s(f"v_pk_add_f32 {V(tmp + 2, 2)}, {V(tmp + 2, 2)}, {V(tmp + 6, 2)}")
        s(f"v_pk_add_f32 {V(tmp, 2)}, {V(tmp, 2)}, {V(tmp + 2, 2)}")
        s(f"v_add_f32 {t}, {t}, {u}")
        s(f"v_rcp_f32 {t}, {t}")
        for i in range(0, 16, 2):
            s(f"v_pk_mul_f32 {V(p + i, 2)}, {V(p + i, 2)}, {V(tmp, 2)} op_sel_hi:[1,0]")
        self.pack16(s, p, out)

    def mfma32(self, s, d, a, b, first, rtags=None):
        c = "0" if first else V(d, 16)
        s(f"v_mfma_f32_32x32x16_bf16 {V(d, 16)}, {a}, {b}, {c}", rtags=rtags)

    def tr2(self, s, dst, addr, off, dq, tag):
        assert off + dq < 65536
        s(f"ds_read_b64_tr_b16 {dst(0, 2)}, {addr} offset:{off}", wtag=tag)
        s(f"ds_read_b64_tr_b16 {dst(2, 2)}, {addr} offset:{off + dq}", wtag=tag)

    def ones(self, s, r):
        for i in range(4): s(f"v_mov_b32 v{r + i}, 0x3f803f80")

    def prologue(self):
        q = self.q
        q("s_cmp_ge_u32 s2, 256\ns_cbranch_scc1 L_end")
        if self.cfg["ts"]: q("s_memtime s[76:77]\ns_memrealtime s[78:79]")
        q(f"""
        s_load_dwordx16 s[80:95], s[0:1], 0
        s_load_dwordx4 s[96:99], s[0:1], 64
        s_load_dwordx2 s[100:101], s[0:1], 80
        v_lshrrev_b32 v100, 6, v0
        v_and_b32 {vLANE}, 63, v0
        v_readfirstlane_b32 {sW}, v100
        s_and_b32 {sG}, s2, 7
        s_lshr_b32 {sI}, s2, 3
        """)
        q.raw(f"""
        s_getpc_b64 s[44:45]
        L_pc:
        s_sub_u32 s44, s44, L_pc-{KNAME}
        s_subb_u32 s45, s45, 0
        s_cmp_lg_u32 {sW}, 3
        s_cbranch_scc1 L_nopf
        s_and_b32 s46, {sI}, 7
        s_lshl_b32 s46, s46, 13
        v_lshl_add_u32 v101, {vLANE}, 7, s46
        v_min_u32 v101, L_last-{KNAME}, v101
        global_load_dword v127, v101, s[44:45]
        L_nopf:
        """, writes={"v101"})
        q(f"""
        s_and_b32 {sRB}, {sI}, 1
        s_lshr_b32 {sHP}, {sI}, 1
        s_and_b32 {sRQ}, {sI}, 3
        s_lshr_b32 {sCT}, {sI}, 2
        s_xor_b32 {sCT}, {sCT}, 4
        s_lshl_b32 {sW2K}, {sW}, 11
        s_lshl_b32 {sW8K}, {sW}, 13
        v_lshlrev_b32 {vL16}, 4, {vLANE}
        """)
        q(f"""
        v_and_b32 v104, 3, {vLANE}
        v_lshrrev_b32 v106, 3, {vLANE}
        v_and_b32 v107, 7, {vLANE}
        v_lshrrev_b32 v108, 4, {vLANE}
        v_lshrrev_b32 v110, 2, {vLANE}
        v_mul_u32_u24 v110, 3072, v110
        v_lshl_add_u32 {vDQ}, v104, 4, v110
        v_xor_b32 v110, v107, v108
        v_lshlrev_b32 v110, 4, v110
        v_lshl_add_u32 v112, v106, 10, v110
        v_xor_b32 v113, 64, v112
        v_add_u32 v113, 7168, v113
        v_add_u32 v114, {2 * 7168}, v112
        v_add_u32 v115, {2 * 7168}, v113
        s_lshl_b32 {sT0}, {sHP}, 6
        s_mul_i32 {sT1}, {sW}, 49152
        s_add_u32 {sQKVO}, {sT0}, {sT1}
        s_add_u32 {sQKVO}, {sQKVO}, 1024
        s_add_u32 {sR4K}, {sCT}, {sG}
        s_and_b32 {sR4K}, {sR4K}, 7
        s_lshl_b32 {sR4K}, {sR4K}, 12
        s_lshl_b32 {sMT1}, {sG}, 3
        s_lshl_b32 {sT0}, {sRB}, 2
        s_add_u32 {sMT1}, {sMT1}, {sT0}
        s_add_u32 {sMT1}, {sMT1}, {sW}
        """)
        q.wait_lgkm0()
        if self.cfg["ts"]:
            q(f"v_writelane_b32 {vTS}, {'s78' if self.cfg.get('rt') else 's76'}, 0\nv_writelane_b32 {vTS}, s78, 60")
            self.nts = 1; self.tsnames.append("entry")
        def srd(d, p, size, sub=0):
            b = int(d[2:].split(":")[0])
            if sub:
                q(f"s_sub_u32 s{b}, s{p}, {sub}\ns_subb_u32 s{b + 1}, s{p + 1}, 0")
            else:
                q(f"s_mov_b64 s[{b}:{b + 1}], s[{p}:{p + 1}]")
            q(f"s_mov_b32 s{b + 2}, {size + sub}\ns_mov_b32 s{b + 3}, 0x20000")
        srd(SX, 80, 2097152); srd(SQKV, 82, 1572864); srd(SWS, 100, WS_SIZE); srd(SDBG, 98, 256)
        if self.cfg.get('ts2'): srd(SOUT, 96, 2097152)
        self.srd = srd

    def prologue2(self):
        q = self.q; srd = self.srd
        srd(SPHI, 84, 16384); srd(SWO, 86, 524288); srd(SWG, 90, 1835008); srd(SWU, 92, 1835008, sub=1024)
        srd(SWD, 94, 1835008); srd(SWS3, 100, WS_SIZE)
        if not self.cfg.get('ts2'): srd(SOUT, 96, 2097152)
        T3 = "s76"; MT2G = "s77"
        q(f"""
        s_add_u32 {sT0}, {sCT}, {sG}
        s_mul_i32 {sRG}, {sG}, {8 * 28672}
        s_lshl_b32 {sG4K}, {sG}, 12
        s_cmp_ge_u32 {sI}, 28
        s_cselect_b32 s18, 0, s18
        s_cselect_b32 s22, 0, s22
        s_cselect_b32 s38, 0, s38
        s_cmp_ge_u32 {sT0}, 14
        s_cselect_b32 {sT1}, 14, 0
        s_sub_u32 {sT0}, {sT0}, {sT1}
        s_cmp_ge_u32 {sT0}, 7
        s_cselect_b32 {sT1}, 7, 0
        s_sub_u32 {sT0}, {sT0}, {sT1}
        s_lshl_b32 {sRH}, {sT0}, 12
        s_lshl_b32 {sRW}, {sT0}, 16
        s_mov_b32 {sBUD}, 200000
        s_mov_b32 {sMODE}, 1
        s_mul_i32 {sFLG}, {sG}, {FLG_G}
        s_add_u32 {sFLG}, {sFLG}, {FLG_OFF}
        s_mul_i32 {sKV}, {sHP}, {KV_HP}
        s_and_b32 {sT0}, {sW}, 1
        s_lshl_b32 {sMT2}, {sRQ}, 1
        s_add_u32 {sMT2}, {sMT2}, {sT0}
        s_lshr_b32 {sT1}, {sW}, 1
        s_lshl_b32 {sPART}, {sCT}, 1
        s_add_u32 {sPART}, {sPART}, {sT1}
        s_lshl_b32 {sWOO}, {sT1}, 2
        s_add_u32 {sWOO}, {sWOO}, {sT0}
        s_lshl_b32 {sWOO}, {sWOO}, 16
        s_lshl_b32 {T3}, {sCT}, 7
        s_add_u32 {sWOO}, {sWOO}, {T3}
        s_mul_i32 {sAT}, {sT1}, 2176
        s_lshl_b32 {sT0}, {sT0}, 6
        s_add_u32 {sAT}, {sAT}, {sT0}
        s_add_u32 {sAT}, {sAT}, {sKV}
        s_lshl_b32 {MT2G}, {sG}, 3
        s_add_u32 {MT2G}, {MT2G}, {sMT2}
        s_mul_i32 {sO_LD}, {MT2G}, {self.o_mt}
        s_lshl_b32 {sT0}, {sT1}, 14
        s_add_u32 {sO_LD}, {sO_LD}, {sT0}
        s_add_u32 {sO_LD}, {sO_LD}, {self.o_base(0)}
        s_lshl_b32 {sFO_PL}, {sMT2}, 6
        s_lshl_b32 {sT0}, {sT1}, 5
        s_add_u32 {sFO_PL}, {sFO_PL}, {sT0}
        s_add_u32 {sFO_PL}, {sFO_PL}, {sFLG}
        s_mul_i32 {sT1}, {sW}, {28 * 16384}
        s_add_u32 {sWDO}, {T3}, {sT1}
        s_lshl_b32 {sT0}, {sI}, 7
        s_mul_i32 {sT1}, {sW}, 28672
        s_add_u32 {sGUO}, {sT0}, {sT1}
        s_mul_i32 {sWQP}, {sHP}, 98304
        s_add_u32 {sWQP}, {sWQP}, {sW2K}
        s_add_u32 {sWQP}, {sWQP}, {WQP_OFF}
        s_mul_i32 {sO_ST}, {sMT1}, {self.o_mt}
        s_lshl_b32 {sT0}, {sHP}, 11
        s_add_u32 {sO_ST}, {sO_ST}, {sT0}
        s_add_u32 {sO_ST}, {sO_ST}, {self.o_base(0)}
        s_and_b32 {sT0}, {sMT1}, 7
        s_lshl_b32 {sT0}, {sT0}, 6
        s_add_u32 {sT0}, {sT0}, {sFLG}
        s_add_u32 {sFX_PL1}, {sT0}, {FX}
        s_lshl_b32 {sT1}, {sHP}, 2
        s_add_u32 {sFO_ST}, {sT0}, {sT1}
        s_lshl_b32 {sT0}, {MT2G}, 15
        s_lshl_b32 {sT1}, {sPART}, 6
        s_add_u32 {sOUTO}, {sT0}, {sT1}
        s_lshl_b32 {sT1}, {sPART}, 11
        s_add_u32 {sX_ST}, {sT0}, {sT1}
        s_add_u32 {sX_ST}, {sX_ST}, {self.x_base(0)}
        s_lshl_b32 {sST_ST}, {MT2G}, 12
        s_bfe_u32 {sT1}, {sPART}, 0x20001
        s_lshl_b32 {sT1}, {sT1}, 10
        s_add_u32 {sST_ST}, {sST_ST}, {sT1}
        s_lshr_b32 {sT1}, {sPART}, 3
        s_lshl_b32 {sT1}, {sT1}, 9
        s_add_u32 {sST_ST}, {sST_ST}, {sT1}
        s_and_b32 {sT1}, {sPART}, 1
        s_lshl_b32 {sT1}, {sT1}, 3
        s_add_u32 {sST_ST}, {sST_ST}, {sT1}
        s_add_u32 {sST_ST}, {sST_ST}, {STAT_OFF}
        s_lshl_b32 {sFX_ST}, {sMT2}, 6
        s_lshl_b32 {sT1}, {sPART}, 2
        s_add_u32 {sFX_ST}, {sFX_ST}, {sT1}
        s_add_u32 {sFX_ST}, {sFX_ST}, {sFLG}
        s_add_u32 {sFX_ST}, {sFX_ST}, {FX}
        ; K1 loads
        s_lshl_b32 {sX_LD1}, {sMT1}, 15
        s_add_u32 {sX_LD1}, {sX_LD1}, {self.x_base(2)}
        s_lshl_b32 {sST_LD1}, {sMT1}, 12
        s_add_u32 {sST_LD1}, {sST_LD1}, {self.st_base(2)}
        ; K3: m-tiles 8g+2w, +1
        s_lshl_b32 {sT0}, {sW}, 7
        s_add_u32 {sFX_PL3}, {sT0}, {sFLG}
        s_add_u32 {sFX_PL3}, {sFX_PL3}, {FX}
        s_lshl_b32 {sT0}, {sW}, 8
        s_lshl_b32 {sT1}, {sI}, 2
        s_add_u32 {sFH_ST}, {sT0}, {sT1}
        s_add_u32 {sFH_ST}, {sFH_ST}, {sFLG}
        s_add_u32 {sFH_ST}, {sFH_ST}, {FH}
        s_lshl_b32 {sT0}, {sG}, 2
        s_add_u32 {sT0}, {sT0}, {sW}
        s_lshl_b32 {sX_LD3}, {sT0}, 16
        s_add_u32 {sX_LD3}, {sX_LD3}, {self.x_base(0)}
        s_lshl_b32 {sST_LD3}, {sT0}, 13
        s_add_u32 {sST_LD3}, {sST_LD3}, {STAT_OFF}
        s_mul_i32 {sH_ST}, {sT0}, {2 * HMT}
        s_lshl_b32 {sT1}, {sI}, 12
        s_add_u32 {sH_ST}, {sH_ST}, {sT1}
        s_add_u32 {sH_ST}, {sH_ST}, {H_OFF}
        ; K4
        s_lshl_b32 {sT0}, {sRQ}, 8
        s_mul_i32 {sT1}, {sW}, 28
        s_add_u32 {sFH_PL}, {sT0}, {sT1}
        s_add_u32 {sFH_PL}, {sFH_PL}, {sFLG}
        s_add_u32 {sFH_PL}, {sFH_PL}, {FH}
        s_lshl_b32 {sT0}, {sG}, 2
        s_add_u32 {sT0}, {sT0}, {sRQ}
        s_mul_i32 {sH_LD}, {sT0}, {2 * HMT}
        s_lshl_b32 {sT1}, {sT1}, 10
        s_add_u32 {sH_LD}, {sH_LD}, {sT1}
        s_add_u32 {sH_LD}, {sH_LD}, {H_OFF}
        s_cmp_eq_u32 {sW}, 0
        s_cselect_b32 {sCNT}, {sKV}, {OOB}
        s_add_u32 {sCNT}, {sCNT}, {KV_OFF + 8704}
        s_lshl_b32 {sKVL}, {sW}, 10
        s_add_u32 {sKVL}, {sKVL}, {sKV}
        s_getreg_b32 {sT0}, hwreg(HW_REG_XCC_ID)
        s_and_b32 {sT0}, {sT0}, 15
        s_mul_i32 {sT1}, {sT0}, {sT0}
        s_lshl_b32 {sT1}, {sT1}, 15
        s_lshl_b32 {sT0}, {sT0}, 6
        s_add_u32 {sADD}, {sT0}, {sT1}
        s_add_u32 {sADD}, {sADD}, 1
        """)
        q(f"""
        v_lshrrev_b32 v100, 5, {vLANE}
        v_and_b32 v101, 31, {vLANE}
        v_bfe_u32 v102, {vLANE}, 4, 1
        v_bfe_u32 v103, {vLANE}, 2, 2
        v_lshrrev_b32 v105, 1, v104
        v_and_b32 v110, 1, v104
        v_lshl_add_u32 v105, v110, 1, v105
        v_lshl_add_u32 v110, v100, 3, v103
        v_lshl_add_u32 v111, v102, 2, v105
        v_lshlrev_b32 v111, 3, v111
        v_lshl_add_u32 {vT64}, v110, 6, v111
        v_lshrrev_b32 v109, 1, v103
        v_lshl_add_u32 v111, v109, 6, v111
        v_lshl_add_u32 {vT128}, v110, 7, v111
        s_lshr_b32 {sT0}, {sW}, 1
        s_lshl_b32 {sT0}, {sT0}, 6
        v_xor_b32 {vT128}, {sT0}, {vT128}
        v_lshlrev_b32 v110, 11, v100
        v_lshl_add_u32 v110, v102, 10, v110
        v_lshl_add_u32 v110, v103, 7, v110
        v_lshl_add_u32 v111, v102, 1, v109
        v_lshl_add_u32 v110, v111, 5, v110
        v_lshl_add_u32 {vTG}, v105, 3, v110
        v_lshlrev_b32 v110, 2, v102
        v_xor_b32 v110, v107, v110
        v_lshlrev_b32 v110, 4, v110
        v_lshl_add_u32 {vD128}, v106, 10, v110
        v_add_u32 {vD128b}, 7168, {vD128}
        v_lshlrev_b32 v110, 1, v102
        v_xor_b32 v110, v107, v110
        v_lshlrev_b32 v110, 4, v110
        v_mul_u32_u24 v111, 3584, v106
        v_add_u32 {vDG}, v110, v111
        v_xor_b32 {vDU}, 64, {vDG}
        v_lshlrev_b32 v110, 4, v100
        v_lshl_add_u32 {vROW}, v101, 10, v110
        v_min_u32 v110, 1, {vLANE}
        v_lshlrev_b32 {vONE}, 30, v110
        """)

    def k1_setup(self, L):
        q = self.q
        q(f"""
        v_add_u32 {vKVT}, {R0}, {vT64}
        v_add_u32 {vWQ}, {R1}, {vT64}
        v_lshrrev_b32 v29, 5, {vLANE}
        v_and_b32 v30, 31, {vLANE}
        v_lshlrev_b32 {vCS}, 4, v30
        v_add_u32 {vCS}, {CS1}, {vCS}
        s_lshl_b32 {sT0}, {sW}, 5
        v_add_u32 v30, {sT0}, v30
        v_mul_u32_u24 v30, {PH_S}, v30
        v_add_u32 v30, {R2}, v30
        v_lshl_add_u32 {vPW32}, v29, 5, v30
        v_lshl_add_u32 {vPW16}, v29, 4, v30
        v_and_b32 {vKR}, 3, {vLANE}
        v_bfe_u32 v30, {vLANE}, 2, 1
        v_lshl_add_u32 {vKR}, v30, 3, {vKR}
        v_bfe_u32 v30, {vLANE}, 3, 1
        v_lshl_add_u32 {vKR}, v30, 2, {vKR}
        v_mul_u32_u24 {vKW2}, 80, v30
        v_bfe_u32 v30, {vLANE}, 4, 1
        v_lshl_add_u32 {vKR}, v30, 4, {vKR}
        v_min_u32 {vKR}, 16, {vKR}
        v_mul_u32_u24 {vKR}, 80, {vKR}
        v_lshl_add_u32 {vKR}, v29, 5, {vKR}
        v_add_u32 {vKR}, {KVB}, {vKR}
        v_and_b32 v30, 7, {vLANE}
        v_lshl_add_u32 {vKW2}, v30, 3, {vKW2}
        v_add_u32 {vKW2}, {KVB + 32 * 80}, {vKW2}
        v_lshrrev_b32 {vKW1}, 3, {vLANE}
        v_mul_u32_u24 {vKW1}, 80, {vKW1}
        v_lshl_add_u32 {vKW1}, v30, 3, {vKW1}
        s_mul_i32 {sT1}, {sW}, 640
        s_add_u32 {sT1}, {sT1}, {KVB}
        v_add_u32 {vKW1}, {sT1}, {vKW1}
        v_lshrrev_b32 v29, 4, {vLANE}
        v_bfe_u32 v30, {vLANE}, 2, 2
        v_lshl_add_u32 v30, v29, 3, v30
        v_mul_u32_u24 v30, {PH_S}, v30
        v_and_b32 {vKA}, 3, {vLANE}
        v_lshl_add_u32 v30, {vKA}, 3, v30
        s_lshr_b32 {sT1}, {sW}, 1
        s_lshl_b32 {sT2}, {sT1}, 5
        s_add_u32 {sT2}, {sT2}, {R2}
        v_add_u32 {vKA}, {sT2}, v30
        s_add_u32 {sT0}, {sT0}, {R2 + 64}
        v_add_u32 {vKB}, {sT0}, v30
        v_and_b32 {vAZ}, 15, {vLANE}
        v_lshlrev_b32 {vAZ}, 2, {vAZ}
        v_lshl_add_u32 {vAT}, v29, 9, {vAZ}
        v_lshl_add_u32 {vAZ}, v29, 28, {vAZ}
        s_lshl_b32 {sT1}, {sT1}, 14
        v_add_u32 {vWO0}, {sT1}, {vT128}
        v_xor_b32 {vWO1}, 64, {vWO0}
        s_add_u32 {sT0}, {sKV}, {KV_OFF + 8704 + L * 128}
        v_mov_b32 {vPOLL}, {sT0}
        v_mov_b32 {vTGT}, 16
        """)
        if L == 0:
            q(f"""
            v_and_b32 v29, 1, {vLANE}
            s_add_u32 {sT1}, {sFLG}, {FREG}
            v_mov_b32 v30, {sT1}
            v_cmp_eq_u32 vcc, 1, v29
            v_lshlrev_b32 {vTGT}, v29, {vTGT}
            v_cndmask_b32 {vPOLL}, {vPOLL}, v30, vcc
            """)

    def zero_setup(self):
        self.q(f"""
        s_mul_i32 {sT0}, {sW}, 2304
        s_add_u32 s46, {sKV}, {sT0}
        s_lshl_b32 s47, {sHP}, 2
        s_lshl_b32 {sT0}, {sW}, 11
        s_add_u32 {sT0}, {sFLG}, {sT0}
        s_lshl2_add_u32 {sT1}, {sG}, 64
        s_cmp_lt_u32 {sHP}, 8
        s_cselect_b32 {sT0}, {sT0}, {OOB}
        s_cselect_b32 {sT1}, {sT1}, {OOB}
        s_cmp_eq_u32 {sRB}, 0
        s_cselect_b32 s46, s46, {sT0}
        s_cselect_b32 s47, s47, {sT1}
        s_cselect_b32 {sT2}, 0, 1
        s_and_b32 {sT0}, {sHP}, 7
        s_cmp_eq_u32 {sT0}, {sG}
        s_cselect_b32 s46, s46, {OOB}
        s_cselect_b32 s47, s47, {OOB}
        s_cmp_eq_u32 {sW}, 0
        s_cselect_b32 s47, s47, {OOB}
        s_add_u32 s47, s47, {64 if self.cfg.get("dbgts") else 0}
        v_add_u32 v105, s47, {vONE}
        v_add_u32 v106, {sT2}, v108
        v_lshl_add_u32 v106, v106, 28, {vL16}
        v_mov_b32 v96, 0
        v_mov_b32 v97, 0
        v_mov_b32 v98, 0
        v_mov_b32 v99, 0
        """)

    XF = Reg("v", 128)
    def k1_groups(self, L):
        def tr(s_):
            g = Seq()
            for t in range(2):
                slot = (2 * s_ + t) % 6
                self.tr2(g, Reg("a", WRING.lo + 4 * slot), vKVT, s_ * 2048 + t * 1024, 256, ("Wkv", L, s_, t))
            return g
        def mm(s_, t):
            g = Seq()
            slot = (2 * s_ + t) % 6
            self.mfma32(g, 48 + 16 * t, WRING(4 * slot, 4), self.XF(4 * s_, 4), s_ == 0,
                        rtags={1: ("Wkv", L, s_, t), 2: ("x", L, s_)})
            return g
        return tr, mm

    def k1_first(self):
        q = self.q; L = 0
        XF = self.XF
        XS = "s3"
        q(f"s_lshl_b32 {XS}, {sMT1}, 15")
        xt = [Tok() for _ in range(8)]; wt = [Tok() for _ in range(8)]
        slot = lambda cp: (R3 if (cp & 3) < 2 else R1) + (cp & 1) * 4096
        def dma_xw(cp):
            s = Seq()
            s(f"""
            s_add_u32 {sT0}, {sR4K}, {cp * 4096}
            s_and_b32 {sT0}, {sT0}, 0x7000
            s_lshr_b32 {sD}, {sT0}, 5
            s_add_u32 m0, {sW8K}, {slot(cp)}
            s_add_u32 {sD}, {sD}, {XS}
            """)
            for j in range(4):
                s(f"buffer_load_dwordx4 v{112 + j}, {SX}, {sD} offen offset:{j * 1024} lds", tok=xt[cp] if j == 3 else None)
            s(f"""
            s_mul_i32 {sD}, {sT0}, 48
            s_add_u32 m0, {sW2K}, {R0 + cp * 8192}
            s_add_u32 {sD}, {sD}, {sQKVO}
            buffer_load_dwordx4 {vDQ}, {SQKV}, {sD} offen lds
            """)
            s(f"buffer_load_dwordx4 {vDQ}, {SQKV}, {sD} offen offset:1024 lds", tok=wt[cp])
            return s
        q.extend(dma_xw(0))
        if self.cfg.get("ts2"): self.ts("dma0")
        self.prologue2()
        self.k1_setup(0)
        q(f"""
        v_bfe_u32 v116, v101, 1, 3
        v_xor_b32 v116, v100, v116
        v_lshlrev_b32 v116, 4, v116
        v_lshl_add_u32 v116, v101, 7, v116
        v_add_u32 v116, {sW8K}, v116
        v_xor_b32 v117, 32, v116
        v_xor_b32 v118, 64, v116
        v_xor_b32 v119, 96, v116
        v_lshl_add_u32 v110, v100, 3, v103
        v_lshrrev_b32 v120, 1, v104
        v_lshl_add_u32 v120, v102, 1, v120
        v_lshlrev_b32 v120, 3, v120
        v_lshl_add_u32 v120, v110, 5, v120
        s_lshl_b32 {sT1}, {sW}, 10
        s_add_u32 s76, {sT1}, {R2}
        v_add_u32 v120, s76, v120
        v_bfe_u32 v121, {vLANE}, 2, 1
        v_mul_u32_u24 v121, 0x8000, v121
        v_lshl_add_u32 v121, v121, 16, v121
        v_mov_b32 v92, 0
        v_mov_b32 v93, 0
        v_mov_b32 v94, 0
        v_mov_b32 v95, 0
        v_mov_b32 v100, 0
        v_mov_b32 v101, 0
        v_mov_b32 v102, 0
        v_mov_b32 v103, 0
        v_min_u32 v107, 23, {vLANE}
        v_lshlrev_b32 v107, 2, v107
        s_and_b32 {sT0}, {sW}, 1
        s_lshl_b32 {sT0}, {sT0}, 10
        s_lshr_b32 {sT1}, {sW}, 1
        s_lshl_b32 {sT1}, {sT1}, 12
        s_add_u32 {sT0}, {sT0}, {sT1}
        v_add_u32 v109, {sT0}, {vKVT}
        v_lshlrev_b32 v110, 7, {vLANE}
        v_min_u32 v124, {13 * 128}, v110
        v_min_u32 v125, {3 * 128}, v110
        s_lshl2_add_u32 {sT2}, {sI}, {sW}
        s_lshl_b32 {sT0}, {sG}, 7
        s_add_u32 {sT0}, {sT0}, {sT2}
        s_mul_i32 s77, {sT0}, 1792
        v_add_u32 {vTCH}, {sO_ST}, v110
        s_sub_u32 {sT1}, {sX_ST}, {16 * 128}
        v_add_u32 v111, {sT1}, v110
        v_cmp_lt_u32 vcc, 15, {vLANE}
        s_and_b32 {sT2}, {sST_ST}, 0xfffffe00
        s_sub_u32 {sT1}, {sT2}, {32 * 128}
        v_cndmask_b32 {vTCH}, {vTCH}, v111, vcc
        v_min_u32 v111, {35 * 128}, v110
        v_add_u32 v111, {sT1}, v111
        v_cmp_lt_u32 vcc, 31, {vLANE}
        v_lshrrev_b32 v110, 5, {vLANE}
        v_lshl_add_u32 v110, v110, 28, {vL16}
        v_cndmask_b32 {vTCH}, {vTCH}, v111, vcc
        """)
        self.ones(q, 88)
        if self.cfg.get("ts2"): self.ts("setup")
        tphi = Tok()
        q(f"s_mov_b32 m0, s76\ns_lshl_b32 {sD}, {sHP}, 10")
        q(f"buffer_load_dwordx4 {vL16}, {SPHI}, {sD} offen lds", tok=tphi)
        q(f"s_mov_b32 s45, {sT2}")
        self.zero_setup()
        q.extend(dma_xw(1)); q.extend(dma_xw(2))
        q(f"""
        buffer_load_dwordx4 v[80:83], {vROW}, {SX}, {sOUTO} offen
        buffer_load_dwordx4 v[84:87], {vROW}, {SX}, {sOUTO} offen offset:32
        """)
        tz = Tok()
        zs = Seq()
        zs(f"""
        buffer_store_dwordx4 v[96:99], {vL16}, {SWS}, s46 offen sc1
        buffer_store_dwordx4 v[96:99], {vL16}, {SWS}, s46 offen offset:1024 sc1
        buffer_store_dwordx4 v[96:99], v106, {SWS}, s46 offen offset:2048 sc1
        """, tok=tz)
        ws0 = Seq()
        if self.cfg.get("wt0", "1") == "1":
            ws0(f"""
            buffer_store_dwordx4 v[88:91], {vL16}, {SWS}, {sO_ST} offen sc1
            buffer_store_dwordx4 v[88:91], {vL16}, {SWS}, {sO_ST} offen offset:1024 sc1
            buffer_store_dwordx4 v[88:91], {vL16}, {SWS}, {sX_ST} offen sc1
            buffer_store_dwordx4 v[88:91], {vL16}, {SWS}, {sX_ST} offen offset:1024 sc1
            buffer_store_dwordx4 v[88:91], v110, {SWS}, s45 offen sc1
            """)
        tr, mm = self.k1_groups(L)
        self.ts("start")
        wq = [Tok() for _ in range(8)]
        self.wo_t = [Tok() for _ in range(4)]
        def xread(cp):
            g = Seq(); g.wait_tok(xt[cp])
            for e in range(4):
                g(f"ds_read_b128 {XF(16 * cp + 4 * e, 4)}, v{116 + e} offset:{slot(cp)}", wtag=("x", L, 4 * cp + e))
            return g
        def cstr(cp):
            g = Seq()
            for j in range(2): self.tr2(g, Reg("a", 8 * (cp & 1) + 4 * j), "v109", cp * 8192 + j * 2048, 256, ("cs", cp, j))
            return g
        q.extend(xread(0)); q.wait_tok(wt[0]); q("s_barrier")
        if self.cfg.get("ts2"): self.ts("c0")
        q.extend(tr(0)); q.extend(tr(1)); q.extend(cstr(0))
        q.extend(dma_xw(3))
        for cp in range(8):
            d = []
            if cp < 4: d = [dma_xw(cp + 4)] + ([zs] if cp == 3 else [])
            elif cp < 6:
                d = [self.dma_wo(0, 2 * (cp - 4) + j, self.wo_t[2 * (cp - 4) + j]) for j in range(2)]
                if cp == 5: d.append(ws0)
            else:
                d = [self.dma_wq(4 * (cp - 6) + j, wq[4 * (cp - 6) + j]) for j in range(4)]
            for i in range(16):
                k = [92, 94, 100, 102][i % 4]
                q(f"v_dot2c_f32_bf16 v{k}, {XF(16 * cp + i)}, v88")
                q(f"v_dot2c_f32_bf16 v{k + 1}, {XF(16 * cp + i)}, {XF(16 * cp + i)}")
            c = Seq()
            for e in range(4):
                s_ = 4 * cp + e
                c.extend(mm(s_, 0))
                if e == 0 and cp < 7: c.extend(xread(cp + 1))
                c.extend(mm(s_, 1))
                if e == 2 and cp < 7:
                    c.wait_tok(wt[cp + 1], *([tz] if cp == 6 else [])); c("s_barrier")
                    if cp == 6: c(f"buffer_store_dword v88, v105, {SDBG}, 0 offen sc1")
                if s_ + 2 < 32: c.extend(tr(s_ + 2))
                if e < 2:
                    c(f"v_mfma_f32_32x32x16_bf16 a[16:31], v[88:91], {A(8 * (cp & 1) + 4 * e, 4)}, {'0' if s_ == 0 else 'a[16:31]'}", rtags={2: ("cs", cp, e)})
                if e == 3 and cp < 7: c.extend(cstr(cp + 1))
            q.extend(spread(c, singles(d)))
            if self.cfg.get("ts2") and cp in (0, 3): self.ts(f"e{cp}")
            if cp == 4:
                q.wait_tok(tphi)
                for hd in range(2):
                    pass
                for i in range(8):
                    q(f"v_lshlrev_b32 {XRES(2 * i)}, 16, v{80 + i}")
                    q(f"v_and_b32 {XRES(2 * i + 1)}, 0xffff0000, v{80 + i}")
                for hd in range(2):
                    q(f"ds_read_b64_tr_b16 v[{80 + 4 * hd}:{81 + 4 * hd}], v120 offset:{hd * 512}")
                    q(f"ds_read_b64_tr_b16 v[{82 + 4 * hd}:{83 + 4 * hd}], v120 offset:{hd * 512 + 128}")
            if cp == 5:
                for i in range(8):
                    q(f"v_xor_b32 v{80 + i}, v121, v{80 + i}")
                    q(f"v_accvgpr_write_b32 {WPHI(i)}, v{80 + i}")
        q(f"""
        s_lshl1_add_u32 {sT0}, {sG}, {sRB}
        s_lshl2_add_u32 {sT0}, {sT0}, {sW}
        s_lshl_b32 s3, {sT0}, 9
        s_sub_u32 {sT1}, s3, {sR4K}
        s_and_b32 {sT1}, {sT1}, 0x7fff
        s_lshl1_add_u32 {sT1}, {sT1}, {R0}
        v_add_u32 v114, {sT1}, {vL16}
        ds_read_b128 v[80:83], v114
        v_accvgpr_read_b32 v112, a16
        s_and_b32 {sT0}, {sW}, 1
        s_lshl_b32 {sT0}, {sT0}, 9
        s_lshr_b32 {sT1}, {sW}, 1
        s_lshl3_add_u32 {sT0}, {sT1}, {sT0}
        v_add_u32 v113, {sT0}, {vCS}
        """)
        self.cs_split(q, "v112", 84)
        q(f"""
        ds_write_b64 v113, v[84:85]
        s_sub_u32 {sT1}, {sWQP}, {sW2K}
        s_lshl1_add_u32 {sT0}, s3, {sT1}
        buffer_store_dwordx4 v[80:83], {vL16}, {SWS}, {sT0} offen sc1
        """)
        q("""
        v_pk_add_f32 v[92:93], v[92:93], v[94:95]
        v_pk_add_f32 v[100:101], v[100:101], v[102:103]
        v_mov_b32 v126, v107
        v_pk_add_f32 v[92:93], v[92:93], v[100:101]
        """)
        self.stats_finish(q, 92, 94, 120, True)
        q(f"v_mul_f32 v94, {f32(LOG2E)}, v93")
        t = [Seq() for _ in range(3)]
        self.dbg_ld = self.precheck(t[0], "v127", "v126", SDBG, "0", 64 if self.cfg.get("dbgts") else 0)
        t[1](f"""
        s_lshl2_add_u32 {sD}, {sI}, {sW}
        s_lshl3_add_u32 {sD}, {sD}, {sG}
        s_lshl_b32 {sD}, {sD}, 9
        buffer_load_dword v29, v125, {SWO}, {sD} offen
        """)
        t[2](f"buffer_load_dword v124, v124, {SWD}, s77 offen")
        self.epi_items = t
        self.wq_tok = wq

    def k1_second(self):
        q = self.q; L = 1; XF = self.XF
        self.k1_setup(1)
        q(f"""
        v_and_b32 v126, 15, {vLANE}
        v_lshlrev_b32 v126, 2, v126
        s_add_u32 {sQKVO}, {sW2K}, {sR4K}
        s_sub_u32 {sQO}, {sWQP}, {sW2K}
        s_add_u32 {sQO}, {sQO}, 65536
        s_add_u32 {sT1}, {sX_LD1}, {sR4K}
        ds_read_b128 v[112:115], {vCS}
        ds_read_b128 v[116:119], {vCS} offset:512
        """)
        self.poll("v126", SWS, sFX_PL1, 2 * 512)
        self.ts("fx2")
        def xl(s_):
            g = Seq()
            if s_ % 4 == 0 and s_:
                g(f"s_add_u32 {sT1}, {sR4K}, {s_ * 1024}\ns_and_b32 {sT1}, {sT1}, 0x7fff\ns_add_u32 {sT1}, {sT1}, {sX_LD1}")
            g(f"buffer_load_dwordx4 {XF(4 * s_, 4)}, {vL16}, {SWS}, {sT1} offen offset:{(s_ % 4) * 1024} sc1", wtag=("x", L, s_))
            return g
        PRE = int(self.cfg.get("k1pre", 6))
        for s_ in range(PRE): q.extend(xl(s_))
        q("s_barrier")
        if self.cfg.get("ts2"): self.ts("k1bar")
        tr, mm = self.k1_groups(L)
        q.extend(tr(0)); q.extend(tr(1))
        stw = Seq()
        self.stats_sum(stw, 92)
        self.stats_finish(stw, 92, 94, 120, True)
        stw(f"v_mul_f32 v94, {f32(LOG2E)}, v93")
        stw = list(stw)
        for s_ in range(32):
            q.extend(mm(s_, 0))
            if s_ + PRE < 32: q.extend(xl(s_ + PRE))
            if s_ == 2: ldS = self.precheck(q, "v127", "v126", SWS, sFX_PL1, 2 * 512 + 1536)
            if s_ == 10: self.confirm(q, "v127", ldS)
            if 10 <= s_ < 14:
                i = s_ - 10
                q(f"buffer_load_dwordx4 {V(92 + 4 * i, 4)}, {vL16}, {SWS}, {sST_LD1} offen offset:{i * 1024} sc1")
            if s_ >= 22:
                for _ in range(4):
                    if stw: q.append(stw.pop(0))
            q.extend(mm(s_, 1))
            if s_ + 2 < 32: q.extend(tr(s_ + 2))
            if s_ == 30:
                assert not stw
                for t in range(2): self.mfma32(q, 48 + 16 * t, V(112 + 4 * t, 4), "v[120:123]", False)
        wq = [Tok() for _ in range(4)]
        self.wo_t = [Tok() for _ in range(4)]
        self.epi_items = singles([self.dma_packed(8 + j, wq[j]) for j in range(4)] +
                                 [self.dma_wo(0, j, self.wo_t[j]) for j in range(4)])
        self.wq_tok = wq

    def k1_rest(self, L):
        q = self.q; XF = self.XF
        self.gu_t = [Tok() for _ in range(16)]
        self.ts("k1main")
        if L == 0:
            self.barrier()
            q(f"ds_read_b128 v[112:115], {vCS}\nds_read_b128 v[116:119], {vCS} offset:512")
            for t in range(2): self.mfma32(q, 48 + 16 * t, V(112 + 4 * t, 4), "v[120:123]", False)
        e = Seq()
        self.pack16(e, 48, 80)
        self.mfma32(e, 48, WPHI(0, 4), V(80, 4), True)
        self.mfma32(e, 96, WPHI(4, 4), V(84, 4), True)
        for i in range(0, 16, 2):
            e(f"v_pk_mul_f32 {V(64 + i, 2)}, {V(64 + i, 2)}, v[92:93] op_sel:[0,1] op_sel_hi:[1,1]")
        self.pack16(e, 64, 112)
        e(f"ds_write_b128 {vPW16}, v[112:115]\nds_write_b128 {vPW16}, v[116:119] offset:32")
        self.softmax16(e, 48, 64, 80, 94)
        e(f"ds_write_b128 {vPW32}, v[64:67] offset:64\nds_write_b128 {vPW32}, v[68:71] offset:80")
        self.softmax16(e, 96, 72, 80, 94)
        e(f"ds_write_b128 {vPW32}, v[72:75] offset:128\nds_write_b128 {vPW32}, v[76:79] offset:144")
        q.extend(spread(e, self.epi_items, 0.25 if L == 0 else 0.0, 0.95))
        if L == 1: self.ones(q, 88)
        if self.cfg.get("ts2"): self.ts("softk")
        self.barrier()
        for st in range(4):
            self.tr2(q, Reg("v", 52 + 8 * st), vKB, st * 32 * PH_S, 4 * PH_S, None)
            self.tr2(q, Reg("v", 48 + 8 * st), vKA, st * 32 * PH_S, 4 * PH_S, None)
        at = self.soff(q, sAT, KV_OFF + L * 4352, sT2)
        for st in range(4):
            c0 = "0" if st == 0 else "v[80:83]"; c1 = "0" if st == 0 else "v[84:87]"
            q(f"v_mfma_f32_16x16x32_bf16 v[84:87], v[88:91], {V(52 + 8 * st, 4)}, {c1}")
            q(f"v_mfma_f32_16x16x32_bf16 v[80:83], {V(48 + 8 * st, 4)}, {V(52 + 8 * st, 4)}, {c0}")
        ta = Tok()
        if L == 0: self.confirm(q, "v127", self.dbg_ld)
        q(f"buffer_atomic_add_f32 v84, {vAZ}, {SWS}, {at} offen offset:2048")
        for r in range(4):
            q(f"buffer_atomic_add_f32 v{80 + r}, {vAT}, {SWS}, {at} offen offset:{r * 128}", tok=ta)
        self.ts("atomics")
        if L == 0:
            q(f"""
            v_mov_b32 v85, {sADD}
            s_cmp_eq_u32 {sW}, 0
            s_cselect_b32 {sT0}, {sFLG}, {OOB}
            s_add_u32 {sT0}, {sT0}, {FREG}
            buffer_atomic_add v85, {vONE}, {SWS}, {sT0} offen
            s_lshl2_add_u32 {sD}, {sRQ}, {sW}
            s_lshl_b32 {sD}, {sD}, 9
            s_add_u32 {sD}, {sD}, {sFLG}
            buffer_load_dword v125, v125, {SWS}, {sD} offen sc1
            """)
        q.wait_tok(*self.wq_tok, *self.wo_t)
        q("s_barrier")
        if L == 0:
            q(f"""
            s_sub_u32 {sT0}, s3, {sR4K}
            s_and_b32 {sT0}, {sT0}, 0x7fff
            s_add_u32 {sT0}, {sT0}, {R1}
            v_lshlrev_b32 v112, 3, {vLANE}
            v_add_u32 v113, {sT0}, v112
            ds_read_b64 v[114:115], v113
            s_sub_u32 {sT1}, {sWQP}, {sW2K}
            s_add_u32 {sT1}, {sT1}, s3
            s_add_u32 {sT1}, {sT1}, 65536
            """)
        def tr(s_):
            g = Seq(); self.tr2(g, Reg("a", WRING.lo + 4 * (s_ % 6)), vWQ, s_ * 1024, 256, ("Wq", L, s_)); return g
        def park(rnd, k):
            g = Seq(); j, nt = k >> 1, k & 1
            self.tr2(g, Reg("a", PARK.lo + 8 * (8 * rnd + j) + 4 * nt), [vWO0, vWO1][nt], R3 + j * 2048, 512, ("wo", L, 8 * rnd + j, nt))
            return g
        for s_ in range(4): q.extend(tr(s_))
        if L == 0: q(f"buffer_store_dwordx2 v[114:115], v112, {SWS}, {sT1} offen sc1", tok=ta)
        NG1 = int(self.cfg.get("ng1", 6))
        m = Seq()
        for s_ in range(32):
            self.mfma32(m, 48, WRING(4 * (s_ % 6), 4), XF(4 * s_, 4), s_ == 0, rtags={1: ("Wq", L, s_), 2: ("x", L, s_)})
            if s_ % 2 == 0: m.extend(park(0, s_ // 2))
            self.mfma32(m, 64, "v[88:91]", WRING(4 * (s_ % 6), 4), s_ == 0, rtags={2: ("Wq", L, s_)})
            if s_ + 4 < 32: m.extend(tr(s_ + 4))
        tch = Seq(); tch(f"buffer_load_dword {vP}, {vTCH}, {SWS}, 0 offen sc1")
        q.extend(spread(m, [tch] + singles([self.dma_wgu(j) for j in range(NG1)])))
        q("v_mov_b32 v112, 1\nv_mov_b32 v82, 0\nv_mov_b32 v83, 0")
        q.wait_tok(ta)
        self.barrier()
        q(f"buffer_atomic_add v112, {vONE}, {SWS}, {sCNT} offen offset:{L * 128}")
        self.ts("qmain")
        wo2 = [Tok() for _ in range(4)]
        e = Seq()
        self.cs_split(e, "v64", 80)
        self.mfma32(e, 48, "v[80:83]", "v[120:123]", False)
        self.pack16(e, 48, 80)
        self.mfma32(e, 48, WPHI(0, 4), V(80, 4), True)
        self.mfma32(e, 64, WPHI(4, 4), V(84, 4), True)
        self.softmax16(e, 48, 96, 80, 94)
        self.softmax16(e, 64, 104, 80, 94)
        q.extend(spread(e, singles([self.dma_wo(1, j, wo2[j]) for j in range(4)]), 0.0, 0.6))
        q(f"v_and_b32 v56, 15, {vLANE}\nv_lshlrev_b32 v56, 4, v56")
        kl = self.soff(q, sKVL, KV_OFF + L * 4352, sT1)
        q(f"s_add_u32 {sT2}, {sKV}, {KV_OFF + L * 4352 + 4096}")
        self.ts("qepi")
        if L == 1 and self.cfg.get("poll1", "1") == "1":
            D = uid("L_done")
            ld = f"buffer_load_dword {vP}, {vPOLL}, {SWS}, 0 offen sc1"
            q.raw(f"s_cmp_lg_u32 {sW}, 0\ns_cbranch_scc1 {D}\n" + self._loop(ld, vP, vTGT, D) + f"{D}:\ns_waitcnt vmcnt(0)\ns_barrier\n",
                  drains_vm=True, writes={"v29", "v30"})
        else:
            self.poll(vPOLL, SWS, "0", target=vTGT)
        q(f"""
        buffer_load_dwordx4 v[48:51], {vL16}, {SWS}, {kl} offen sc1
        buffer_load_dwordx4 v[52:55], v56, {SWS}, {sT2} offen sc1
        """)
        self.ts("kvpoll")
        gi = NG1
        if L == 0 and not self.cfg["force_slow"]:
            q(f"""
            v_readlane_b32 {sT0}, {vP}, 1
            s_lshl_b32 {sT1}, {sADD}, 5
            s_cmp_eq_u32 {sT0}, {sT1}
            s_cselect_b32 {sMODE}, 0, 1
            """)
        so = self.soff(q, sO_ST, self.o_base(L) - self.o_base(0), sT1)
        q(f"""
        v_cvt_pk_bf16_f32 v48, v48, v49
        v_cvt_pk_bf16_f32 v49, v50, v51
        ds_write_b64 {vKW1}, v[48:49]
        v_cvt_pk_bf16_f32 v52, v52, v53
        v_cvt_pk_bf16_f32 v53, v54, v55
        ds_write_b64 {vKW2}, v[52:53]
        """)
        self.barrier()
        if self.cfg.get("ts2"): self.ts("B3")
        for hd in range(2):
            for s_ in range(2):
                q(f"ds_read_b128 {V(80 + 8 * hd + 4 * s_, 4)}, {vKR} offset:{hd * 17 * 80 + 16 * s_}")
        for hd in range(2):
            for s_ in range(2):
                self.mfma32(q, 48 + 16 * hd, V(80 + 8 * hd + 4 * s_, 4), V(96 + 8 * hd + 4 * s_, 4), s_ == 0)
        for k in range(2): q.extend(park(1, k))
        to = Tok()
        for hd in range(2):
            b = 48 + 16 * hd
            q(f"v_add_f32 v{b + 8}, {f32(1e-6)}, v{b + 8}")
            q(f"v_rcp_f32 v{b + 8}, v{b + 8}")
            for i in range(0, 8, 2):
                q(f"v_pk_mul_f32 {V(b + i, 2)}, {V(b + i, 2)}, {V(b + 8, 2)} op_sel_hi:[1,0]")
            for i in range(0, 8, 2):
                q(f"v_cvt_pk_bf16_f32 v{b + 12 + i // 2}, v{b + i}, v{b + i + 1}")
        q.dual_store([f"buffer_store_dwordx4 v[60:63], {vL16}, {SWS}, {so} offen",
                      f"buffer_store_dwordx4 v[76:79], {vL16}, {SWS}, {so} offen offset:1024"], uid("o"), tok=to)
        if self.cfg.get("ts2"): self.ts("ost")
        q.extend(self.dma_wgu(gi)); gi += 1
        for k in range(2, 16): q.extend(park(1, k))
        self.flag(q, sFO_ST, FO + L * 512, SWS, [to])
        self.gi = gi
        self.ts("o")

    def x_tail(self, t0, inst, final, extra=None):
        q = self.q
        for i in range(0, 16, 2):
            q(f"v_cvt_pk_bf16_f32 v{t0 + i // 2}, {XRES(i)}, {XRES(i + 1)}")
        if final:
            q(f"""
            buffer_store_dwordx4 {V(t0, 4)}, {vROW}, {SOUT}, {sOUTO} offen
            buffer_store_dwordx4 {V(t0 + 4, 4)}, {vROW}, {SOUT}, {sOUTO} offen offset:32
            """)
            return
        so = self.soff(q, sX_ST, self.x_base(inst) - self.x_base(0), sT1)
        tx = Tok()
        q.dual_store([f"buffer_store_dwordx4 {V(t0, 4)}, {vL16}, {SWS}, {so} offen",
                      f"buffer_store_dwordx4 {V(t0 + 4, 4)}, {vL16}, {SWS}, {so} offen offset:1024"], uid("x"), tok=tx)
        if self.cfg.get("ts2"): self.ts("xst")
        t = t0 + 8
        q(f"v_pk_add_f32 {V(t, 2)}, {XRES(0, 2)}, {XRES(2, 2)}")
        q(f"v_pk_mul_f32 {V(t + 2, 2)}, {XRES(0, 2)}, {XRES(0, 2)}")
        q(f"v_pk_fma_f32 {V(t + 2, 2)}, {XRES(2, 2)}, {XRES(2, 2)}, {V(t + 2, 2)}")
        for i in range(4, 16, 2):
            q(f"v_pk_add_f32 {V(t, 2)}, {V(t, 2)}, {XRES(i, 2)}")
            q(f"v_pk_fma_f32 {V(t + 2, 2)}, {XRES(i, 2)}, {XRES(i, 2)}, {V(t + 2, 2)}")
        q(f"""
        v_add_f32 v{t}, v{t}, v{t + 1}
        v_add_f32 v{t + 1}, v{t + 2}, v{t + 3}
        v_mov_b32 v{t + 2}, v{t}
        v_mov_b32 v{t + 3}, v{t + 1}
        v_lshrrev_b32 v{t + 4}, 5, {vLANE}
        v_lshl_add_u32 v{t + 4}, v{t + 4}, 28, {vL16}
        v_permlane32_swap_b32 v{t}, v{t + 2}
        v_permlane32_swap_b32 v{t + 1}, v{t + 3}
        v_pk_add_f32 {V(t, 2)}, {V(t, 2)}, {V(t + 2, 2)}
        """)
        so = self.soff(q, sST_ST, self.st_base(inst) - STAT_OFF, sT1)
        ts_ = Tok()
        q.dual_store([f"buffer_store_dwordx2 {V(t, 2)}, v{t + 4}, {SWS}, {so} offen"], uid("s"), tok=ts_)
        self.flag(q, sFX_ST, inst * 512, SWS, [tx])
        if extra: q.extend(extra)
        self.flag(q, sFX_ST, inst * 512 + 1536, SWS, [ts_])

    def k2(self, L):
        q = self.q
        q(f"""
        v_and_b32 v14, 7, {vLANE}
        v_lshlrev_b32 v14, 2, v14
        s_lshl_b32 {sT0}, {sW}, 12
        s_add_u32 {sT0}, {sT0}, {R2}
        v_add_u32 v12, {sT0}, {vL16}
        v_xor_b32 v13, 0x2000, v12
        """)
        sb = self.soff(q, sO_LD, self.o_base(L) - self.o_base(0), sT2)
        self.poll("v14", SWS, sFO_PL, FO + L * 512)
        self.ts("fo")
        OF = Reg("v", 128)
        def ol(j):
            g = Seq()
            so = sb if j < 4 else sT1
            if j % 4 == 0 and j: g(f"s_add_u32 {sT1}, {sb}, {j * 1024}")
            g(f"buffer_load_dwordx4 {OF(4 * j, 4)}, {vL16}, {SWS}, {so} offen offset:{(j % 4) * 1024} sc1", wtag=("o", L, j))
            return g
        PRE = int(self.cfg.get("k2pre", 5))
        for j in range(PRE): q.extend(ol(j))
        gi = self.gi
        gs = []
        def mm(j, nt):
            self.mfma32(q, 48 + 16 * nt, PARK(8 * j + 4 * nt, 4), OF(4 * j, 4), j == 0,
                        rtags={1: ("wo", L, j, nt), 2: ("o", L, j)})
        TAIL = 3
        for j in range(16 - TAIL):
            mm(j, 1)
            if j + PRE < 16: q.extend(ol(j + PRE))
            elif gs: q.extend(gs.pop(0))
            mm(j, 0)
        for j in range(16 - TAIL, 16):
            mm(j, 1)
            if gs: q.extend(gs.pop(0))
        for j in range(16 - TAIL, 16): mm(j, 0)
        if self.cfg.get("ts2"): self.ts("k2main")
        for i in range(4):
            q(f"ds_write_b128 v12, {V(64 + 4 * i, 4)} offset:{i * 1024}")
        self.barrier()
        for i in range(4):
            q(f"ds_read_b128 {V(64 + 4 * i, 4)}, v13 offset:{i * 1024}")
        for i in range(0, 16, 2):
            q(f"v_pk_add_f32 {XRES(i, 2)}, {XRES(i, 2)}, {V(48 + i, 2)}")
        for i in range(0, 16, 2):
            q(f"v_pk_add_f32 {XRES(i, 2)}, {XRES(i, 2)}, {V(64 + i, 2)}")
        self.x_tail(48, L, False, extra=self.dma_wgu(gi)); gi += 1
        self.gi = gi
        self.ts("k2")

    def k3(self, L):
        q = self.q
        ACC = 48; XR = 176; NXR = 6
        acc = lambda mt, t: ACC + 64 * mt + 16 * t
        q(f"""
        v_and_b32 v12, 31, {vLANE}
        v_lshlrev_b32 v22, 3, v12
        v_lshlrev_b32 v12, 2, v12
        v_add_u32 v17, 0x8000, {vL16}
        s_lshl_b32 {sT1}, {sW}, 5
        v_xor_b32 v13, {sT1}, {vTG}
        v_add_u32 v13, {R0}, v13
        v_xor_b32 v14, 32, v13
        v_xor_b32 v15, 64, v13
        v_xor_b32 v16, 96, v13
        v_add_u32 v18, {sW8K}, {vT128}
        v_xor_b32 v19, 64, v18
        v_add_u32 v20, {R2}, v18
        v_add_u32 v21, {R2}, v19
        s_lshl_b32 {sT1}, {sW}, 8
        s_add_u32 {sT1}, {sT1}, {CS3}
        v_add_u32 v22, {sT1}, v22
        s_lshl_b32 {sT1}, {sW}, 10
        v_add_u32 v24, {sT1}, {vL16}
        v_xor_b32 v25, 1024, v24
        v_xor_b32 v26, 2048, v24
        v_xor_b32 v27, 3072, v24
        v_and_b32 v23, 7, {vLANE}
        v_min_u32 v23, 6, v23
        v_lshlrev_b32 v23, 2, v23
        """)
        if L == 0:
            q("v_mov_b32 v29, 0x3f803f80")
            for i in range(4): q(f"v_accvgpr_write_b32 a{204 + i}, v29")
        xb = self.soff(q, sX_LD3, self.x_base(L) - self.x_base(0), sT2)
        q(f"s_add_u32 {sT1}, {sG4K}, {xb}")
        self.poll("v12", SWS, sFX_PL3, L * 512)
        self.ts("fx1")
        def xl(s_):
            g = Seq()
            so = sT1
            if s_ % 4 == 0 and s_:
                g(f"s_add_u32 {sT1}, {sG4K}, {s_ * 1024}\ns_and_b32 {sT1}, {sT1}, 0x7fff\ns_add_u32 {sT1}, {sT1}, {xb}")
            for mt in range(2):
                g(f"buffer_load_dwordx4 {V(XR + 8 * (s_ % NXR) + 4 * mt, 4)}, {vL16 if mt == 0 else 'v17'}, {SWS3}, {so} offen offset:{(s_ % 4) * 1024} sc1",
                  wtag=("x1", L, s_, mt))
            return g
        for s_ in range(2): q.extend(xl(s_))
        q("s_barrier")
        if self.cfg.get("ts2"): self.ts("k3bar")
        def tr(f):
            s_, t = divmod(f, 4)
            g = Seq()
            if f == 64:
                for i in range(4): g(f"v_subrev_u32 v{13 + i}, {R0 - R1}, v{13 + i}")
            if f == 96:
                for i in range(4): g(f"v_add_u32 v{13 + i}, {R0 - R1}, v{13 + i}")
            c = s_ // 8
            off = (GU_BASE[c] - (R1 if c == 2 else R0)) + (s_ % 8) * 4096
            self.tr2(g, Reg("a", WRING.lo + 4 * (f % 6)), f"v{13 + t}", off, 512, ("Wgu", L, f))
            return g
        wd_t = [Tok() for _ in range(28)]
        NS = 7
        slot = lambda u: (R3 + (u % NS) * 2048) if u % NS < 4 else (R2 + (u % NS - 4) * 2048)
        park_tok = {}
        def wd_issue(u):
            g = Seq()
            if u >= NS: g.wait_tok(park_tok[u - NS])
            g.extend(self.dma_wd(u, slot(u), wd_t[u]))
            return g
        def wd_park(u):
            g = Seq()
            g.wait_tok(wd_t[u])
            lo = u % NS < 4
            if self.cfg.get("ab_park"):
                g = Seq(); g("s_nop 0"); park_tok[u] = Tok(); return g
            for nt in range(2):
                self.tr2(g, Reg("a", PARK.lo + 8 * u + 4 * nt), f"v{(18 if lo else 20) + nt}", slot(u) - (0 if lo else R2), 512, ("wd", L, u, nt))
            g[-1].tok = park_tok[u] = Tok()
            return g
        NMAIN = int(self.cfg.get("wd_main", 16))
        assert NMAIN <= 25
        gu_steps = {}
        st = 3
        for j in range(self.gi, 12): gu_steps[st] = j; st += 2
        for k, j in enumerate(range(12, 16)): gu_steps[max(st, 10) + 2 * k + (k if st <= 8 else 0)] = j
        free_steps = [s_ for s_ in range(3, 32) if s_ not in gu_steps and s_ not in (21, 22, 23, 24)]
        issue_at = {}
        for u in range(NMAIN): issue_at[free_steps[(u * len(free_steps)) // NMAIN]] = u
        LAG = int(self.cfg.get("wd_lag", 5))
        issued = 0; parked = 0
        for f in range(4): q.extend(tr(f))
        stw = Seq()
        C1 = -2.0 * math.sqrt(2.0 / math.pi) * LOG2E
        C2 = C1 * 0.044715
        for mt in range(2):
            b = 224 + 16 * mt
            self.stats_sum(stw, b)
            self.stats_finish(stw, b, b + 2, b + 8, False)
            stw(f"""
            v_mul_f32 v{b + 5}, v{b + 1}, v{b + 1}
            v_mul_f32 v{b + 4}, {f32(C1)}, v{b + 1}
            v_mul_f32 v{b + 5}, v{b + 5}, v{b + 1}
            v_mul_f32 v{b + 5}, {f32(C2)}, v{b + 5}
            """)
        stw = list(stw)
        xs = {0: [2, 3], 1: [4, 5], 2: [6, 7]}
        for s_ in range(3, 27): xs[s_] = [s_ + 5]
        for s_ in range(32):
            vm = []
            for k in xs.get(s_, []): vm += singles([xl(k)])
            if s_ in issue_at:
                vm += singles([wd_issue(issued)]); issued += 1
            if s_ in gu_steps: vm += singles([self.dma_wgu(gu_steps[s_])])
            if s_ == 14:
                g = Seq(); ldS = self.precheck(g, "v29", "v12", SWS, sFX_PL3, L * 512 + 1536); vm.append(g)
            if s_ in (21, 22, 23, 24):
                g = Seq(); k = s_ - 21
                if k == 0: self.confirm(g, "v29", ldS)
                so = self.soff(g, sST_LD3, self.st_base(L) - STAT_OFF + (k // 2) * 4096, sT0)
                for i in range(2):
                    g(f"buffer_load_dwordx4 {V(224 + 8 * k + 4 * i, 4)}, {vL16}, {SWS3}, {so} offen offset:{(2 * (k % 2) + i) * 1024} sc1")
                vm += singles([g])
            for t in range(4):
                f = 4 * s_ + t
                for mt in range(2):
                    self.mfma32(q, acc(mt, t), WRING(4 * (f % 6), 4), V(XR + 8 * (s_ % NXR) + 4 * mt, 4), s_ == 0,
                                rtags={1: ("Wgu", L, f), 2: ("x1", L, s_, mt)})
                    if mt == 0:
                        if vm: q.extend(vm.pop(0))
                        if t == 3:
                            while vm: q.extend(vm.pop(0))
                        if s_ >= 28:
                            for _ in range(4):
                                if stw: q.append(stw.pop(0))
                if L == 0 and t == 0:
                    q(f"v_mfma_f32_32x32x16_bf16 a[208:223], a[204:207], {WRING(4 * (f % 6), 4)}, {'0' if s_ == 0 else 'a[208:223]'}", rtags={2: ("Wgu", L, f)})
                if f + 4 == 36 and not self.cfg.get("ab_bar"): q("s_barrier")
                if f + 4 == 64 and self.gi < 12 and not self.cfg.get("ab_bar"):
                    q.wait_tok(*self.gu_t[8:12]); q("s_barrier")
                if f + 4 == 96 and not self.cfg.get("ab_bar"):
                    q.wait_tok(*self.gu_t[12:16]); q("s_barrier")
                if f + 4 < 128: q.extend(tr(f + 4))
                if t == 1 and issued - parked > LAG:
                    q.extend(wd_park(parked)); parked += 1
                if self.cfg.get("ts2") and L == 1 and f in (3, 31, 63, 95): self.ts(f"k3f{f}")
                if self.cfg.get("ts3") and L == 1 and f % 16 == 15: self.ts(f"f{f}")
        q.extend(stw)
        self.ts("k3main")
        if L == 0:
            q("v_accvgpr_read_b32 v176, a208")
            self.cs_split(q, "v176", 178)
            q("ds_write_b64 v22, v[178:179]")
            self.barrier()
        for t in range(5):
            if t % 4: q(f"v_xor_b32 v29, {(t % 4) * 256}, v22")
            q(f"ds_read_b64 {V(176 + 2 * t, 2)}, {'v29' if t % 4 else 'v22'}")
        def corr(mt, t):
            g = Seq(); self.mfma32(g, acc(mt, t), V(176 + 2 * t, 4), V(224 + 16 * mt + 8, 4), False); return g
        def pump():
            nonlocal issued, parked
            g = []
            if issued < 28 and issued - parked >= NS - 1:
                g.append(wd_park(parked)); parked += 1
            if issued < 28:
                g += singles([wd_issue(issued)]); issued += 1
            return g
        hs = self.soff(q, sH_ST, self.h_base(L) - H_OFF, "s76")
        th = [Tok(), Tok()]
        q.extend(corr(0, 0)); q.extend(corr(0, 1))
        for g in pump() + pump(): q.extend(g)
        for n in range(8):
            mt, t = divmod(n, 4)
            b = 224 + 16 * mt
            if n == 4:
                q(f"s_add_u32 s76, {hs}, {HMT}"); hs = "s76"
            a = acc(mt, t); T = 208
            e = Seq()
            for i in range(0, 8, 2):
                e(f"v_pk_mul_f32 {V(T + i, 2)}, {V(a + i, 2)}, {V(a + i, 2)}")
            for i in range(0, 8, 2):
                e(f"v_pk_fma_f32 {V(T + i, 2)}, {V(T + i, 2)}, {V(b + 4, 2)}, {V(b + 4, 2)} op_sel:[0,1,0] op_sel_hi:[1,1,0]")
            for i in range(0, 8, 2):
                e(f"v_pk_mul_f32 {V(T + i, 2)}, {V(T + i, 2)}, {V(a + i, 2)}")
            if n + 2 < 8: e.extend(corr(*divmod(n + 2, 4)))
            for i in range(8):
                e(f"v_exp_f32 v{T + i}, v{T + i}")
            for i in range(0, 8, 2):
                e(f"v_pk_mul_f32 {V(a + i, 2)}, {V(a + i, 2)}, {V(a + 8 + i, 2)}")
            for i in range(0, 8, 2):
                e(f"v_pk_fma_f32 {V(T + i, 2)}, {V(T + i, 2)}, {V(b + 2, 2)}, {V(b + 2, 2)} op_sel_hi:[1,0,0]")
            for i in range(8):
                e(f"v_rcp_f32 v{T + i}, v{T + i}")
            for i in range(0, 8, 2):
                e(f"v_pk_mul_f32 {V(a + i, 2)}, {V(a + i, 2)}, {V(T + i, 2)}")
            for i in range(0, 8, 2):
                e(f"v_cvt_pk_bf16_f32 v{a + 8 + i // 2}, v{a + i}, v{a + i + 1}")
            its = pump()
            if n < 6 and issued < 28: its += pump()
            if n == 7:
                assert issued == 28
                g = Seq(); self.ldA = self.precheck(g, "v17", "v23", SWS, sFH_PL, L * 1024); its.append(g)
            q.extend(spread(e, its, 0.1, 0.9))
            stl = f"buffer_store_dwordx4 {V(a + 8, 4)}, v{24 + t}, {SWS3}, {hs} offen"
            if L == 0 and self.cfg.get("h0wt", "1") == "1": q(stl + " sc1", tok=th[mt])
            else: q.dual_store([stl], uid("h"), tok=th[mt])
            if n == int(self.cfg.get("fa0" if L == 0 else "fa1", 6 if L == 0 else 4)): self.flag(q, sFH_ST, L * 1024, SWS3, [th[0]])
        self.late_parks = [wd_park(u) for u in range(parked, 28)]
        self.th_b = th[1]
        self.ts("k3")

    def k4(self, L):
        q = self.q
        ACC = 48; HR = 112; NH = 36
        hb = self.soff(q, sH_LD, self.h_base(L) - H_OFF, sT2)
        q(f"v_add_u32 v22, {HMT}, {vL16}")
        self.confirm(q, "v17", self.ldA)
        self.ts("fh")
        order = [(mt, u) for mt in range(2) for u in range(28)]
        def hl(n):
            mt, u = order[n]
            g = Seq()
            if u % 4 == 0: g(f"s_add_u32 {sT1}, {hb}, {sRH}")
            g(f"buffer_load_dwordx4 {V(HR + 4 * (n % NH), 4)}, {vL16 if mt == 0 else 'v22'}, {SWS}, {sT1} offen offset:{(u % 4) * 1024} sc1", wtag=("h", L, n))
            if u % 4 == 1: g(f"s_add_u32 {sRH}, {sRH}, 4096\ns_cmp_eq_u32 {sRH}, 28672\ns_cselect_b32 {sRH}, 0, {sRH}")
            return g
        PRE = int(self.cfg.get("k4pre", 8))
        for n in range(PRE): q.extend(hl(n))
        self.flag(q, sFH_ST, L * 1024 + 128, SWS3, [self.th_b])
        su = Seq()
        su(f"""
        s_and_b32 {sT0}, {sW}, 2
        s_lshl_b32 {sT0}, {sT0}, 14
        s_and_b32 s76, {sW}, 1
        s_lshl_b32 s76, s76, 12
        s_add_u32 {sT0}, {sT0}, s76
        v_add_u32 v12, {sT0}, {vL16}
        v_xor_b32 v13, 0x5000, v12
        v_xor_b32 v14, 0xa000, v12
        v_xor_b32 v15, 0xf000, v12
        s_lshl_b32 {sT0}, {sW}, 14
        v_add_u32 v16, {sT0}, {vL16}
        """)
        su = list(su)
        wk = [Tok() for _ in range(8)]
        pk = singles([self.dma_packed(j, wk[j]) for j in range(8)]) if L == 0 else []
        def wr(bk): return [f"ds_write_b128 v{12 + bk}, {V(ACC + 16 * bk + 4 * i, 4)} offset:{i * 1024}" for i in range(4)]
        def ad(bk): return [f"v_pk_add_f32 {XRES(i, 2)}, {XRES(i, 2)}, {V(ACC + 16 * bk + i, 2)}" for i in range(0, 16, 2)]
        odd = f"s_bitcmp1_b32 {sW}, 0"
        TAIL = 3
        def mm(n, nt):
            mt, u = order[n]
            self.mfma32(q, ACC + 16 * (2 * nt + mt), PARK(8 * u + 4 * nt, 4), V(HR + 4 * (n % NH), 4), u == 0,
                        rtags=None if self.cfg.get("ab_park") else {1: ("wd", L, u, nt), 2: ("h", L, n)})
        for n in range(56 - TAIL):
            mm(n, 1)
            if n == 28 - PRE - 6: ldB = self.precheck(q, "v17", "v23", SWS, sFH_PL, L * 1024 + 128)
            if n + PRE == 28: self.confirm(q, "v17", ldB)
            if n + PRE < 56: q.extend(hl(n + PRE))
            elif pk: q.extend(pk.pop(0))
            mm(n, 0)
            if su: q.append(su.pop(0))
            if n >= 2 and self.late_parks: q.extend(self.late_parks.pop(0))
            if n == 24: self.barrier()
            if n == 30 and L == 0: q(f"buffer_load_dword {vP}, {vTCH}, {SWS}, 0 offen sc1")
            if n in (32, 33, 34, 35): q(wr(2)[n - 32])
            if n == 38: q.alt(odd, ad(0), wr(0) + ["s_nop 0"] * 4, uid("a"))
        for n in range(56 - TAIL, 56):
            mm(n, 1)
            if pk: q.extend(pk.pop(0))
        for n in range(56 - TAIL, 56): mm(n, 0)
        self.ts("k4main")
        for l in wr(3): q(l)
        q.alt(odd, wr(1) + ["s_nop 0"] * 4, ad(1), uid("a"))
        for _ in range(4):
            if pk: q.extend(pk.pop(0))
        q("s_waitcnt lgkmcnt(0)")
        q("s_barrier")
        for d in range(1, 4):
            for i in range(4):
                q(f"ds_read_b128 {V(48 + 16 * d + 4 * i, 4)}, v16 offset:{d * 4096 + i * 1024}")
        for d in range(1, 4):
            for l in ad(d): q(l)
        ex = Seq()
        for g in pk: ex.extend(g)
        self.x_tail(48, 2, L == 1, extra=ex)
        self.ts("k4")

    def build(self):
        q = self.q
        self.prologue()
        self.k1_first(); self.k1_rest(0); self.k2(0); self.k3(0); self.k4(0)
        self.k1_second(); self.k1_rest(1); self.k2(1); self.k3(1); self.k4(1)
        if self.cfg["ts"]:
            q.wait_vm0()
            q(f"""
            s_memrealtime s[76:77]
            s_lshl3_add_u32 {sT0}, {sI}, {sG}
            s_lshl2_add_u32 {sT0}, {sT0}, {sW}
            s_lshl_b32 {sT0}, {sT0}, 8
            s_add_u32 {sT0}, {sT0}, {TS_OFF}
            v_writelane_b32 {vTS}, {sMODE}, 62
            v_writelane_b32 {vTS}, {sBUD}, 63
            v_writelane_b32 {vTS}, s76, 61
            v_lshlrev_b32 v12, 2, {vLANE}
            buffer_store_dword {vTS}, v12, {SWS}, {sT0} offen
            """)
        if self.cfg.get("dbgts"):
            idx = [int(x) for x in self.cfg["dbgts"].split("-")]
            q(f"v_readlane_b32 {sT1}, {vTS}, 0")
            for j, k in enumerate(idx):
                q(f"v_readlane_b32 {sT2}, {vTS}, {k}\ns_sub_u32 {sT2}, {sT2}, {sT1}\nv_writelane_b32 v13, {sT2}, {j}")
            q(f"""
            s_lshl3_add_u32 {sT0}, {sI}, {sG}
            s_lshl2_add_u32 {sT0}, {sT0}, {sW}
            s_cmp_eq_u32 {sT0}, {int(self.cfg.get("dbgw", 0))}
            s_cselect_b32 {sT0}, 0, 0x10000
            v_lshrrev_b32 v14, 4, {vLANE}
            v_lshl_add_u32 v12, v14, 20, v12
            v_add_u32 v12, {sT0}, v12
            buffer_store_dword v13, v12, {SDBG}, 0 offen
            """)
        (main, ool), seq = finalize(q, sMODE)
        hdr = open("interleave_layers__linear_kernel_hedgehog__geglu_ffn__prompt.s.ref").read().split("; Override")[0]
        out = [hdr.rstrip(), f"; @launch grid=(256,1,1) block=(256,1,1) lds={LDS_BYTES}",
               '.amdgcn_target "amdgcn-amd-amdhsa--gfx950"', ".text", f".globl {KNAME}", ".p2align 8",
               f".type {KNAME},@function", f"{KNAME}:", main, "L_end:", "    s_endpgm", ool, "L_last:", "    s_endpgm",
               '.section .rodata,"a"', ".p2align 6", f".amdhsa_kernel {KNAME}",
               "  .amdhsa_next_free_vgpr 512", "  .amdhsa_next_free_sgpr 102", "  .amdhsa_accum_offset 256",
               "  .amdhsa_group_segment_fixed_size 0", "  .amdhsa_kernarg_size 88", "  .amdhsa_user_sgpr_count 2",
               "  .amdhsa_user_sgpr_kernarg_segment_ptr 1", "  .amdhsa_system_sgpr_workgroup_id_x 1",
               "  .amdhsa_float_denorm_mode_32 3", "  .amdhsa_float_denorm_mode_16_64 3",
               ".end_amdhsa_kernel", ""]
        return "\n".join(out)


if __name__ == "__main__":
    cfg = dict(CFG)
    out = sys.argv[1]
    for a in sys.argv[2:]:
        k, v = a.split("=")
        cfg[k] = {"0": False, "1": True}.get(v, v) if k in CFG else v
    g = Gen(cfg)
    txt = g.build()
    open(out, "w").write(txt)
    if cfg["ts"]:
        open(out + ".tsnames", "w").write("\n".join(g.tsnames))
```

```python
import sys, struct, math
from dsl import *

KNAME = "interleave_layers__linear_kernel_hedgehog__geglu_ffn__prompt_kernel"
CFG = dict(ts=False, force_slow=False, reuse=True)

KV_OFF = 0; KV_HP = 11264
KV_L = 5120; KV_CNT = 10240
FLG_OFF = 0x2C000; FLG_G = 8192
FO, FX, FH, FREG = 0, 1024, 4096, 6144
STAT_OFF = 0x40000
O_OFF = 0x100000; X1_OFF = 0x500000; X2_OFF = 0x900000; H_OFF = 0xB00000; H_L = 0x700000
HMT = 112 * 1024
TS_OFF = 0x1900000
WQP_OFF = 0x1A00000
WS_SIZE = 0x1C00000
OOB = 0x7000000

R3, R1, R0, R2 = 0, 32768, 65536, 131072
CS1 = 163840 - 2048
CS3 = 163840 - 1024
PH_S = 208
KVB = R2 + 27648
LDS_BYTES = 163840
GU_BASE = [R0, R1, R0 + 32768, R0]

SX, SQKV, SWO, SWG, SWU, SWD, SOUT, SWS, SWS3, SDBG, SPHI = [S(4 + 4 * i, 4) for i in range(11)]
(sW, sG, sI, sHP, sRB, sCT, sRQ, sMODE, sBUD, sT0, sT1, sT2, sMT1, sMT2, sFLG, sKV, sADD,
 sQKVO, sGUO, sWDO, sWOO, sW2K, sW8K, sR4K, sPART, sQO, sWQP) = [S(48 + i) for i in range(27)]
sOUTO = S(75)
sE0 = S(76, 2)
(sO_ST, sFO_ST, sFO_PL, sO_LD, sX_ST, sST_ST, sFX_ST, sFX_PL3, sFX_PL1, sX_LD3, sX_LD1, sST_LD3,
 sST_LD1, sH_ST, sFH_ST, sFH_PL, sH_LD, sAT) = [S(78 + i) for i in range(18)]
sTS = S(96, 2)
sCNT, sKVL = S(98), S(99)
sRG, sG4K = S(100), S(101)
sD, sRH, sRW = S(0), S(1), S(2)

vL16, vT64, vT128, vTG, vDQ, vD128, vDG, vROW, vLANE = [V(1 + i) for i in range(9)]
vD128b, vDU = V(10), V(11)
vONE = V(28)
vP = V(30); vTS = V(31)
vTCH = V(0)
XRES = Reg("v", 32)
WRING = Reg("a", 224)
WPHI = Reg("a", 248)
PARK = Reg("a", 0)
(vKVT, vCS, vPW16, vPW32, vKA, vKB, vL4, vUN0, vWQ, vWO0, vWO1, vUN1, vUN2, vKW1, vKW2, vKR) = [V(12 + i) for i in range(16)]

LOG2E = 1.4426950408889634
def f32(x): return "0x%08x" % struct.unpack("<I", struct.pack("<f", x))[0]

_uid = [0]
def uid(p):
    _uid[0] += 1
    return f"{p}{_uid[0]}"


class Gen:
    def __init__(self, cfg):
        self.cfg = cfg
        self.q = Seq()
        self.nts = 0
        self.tsnames = []
        r = cfg["reuse"]
        self.o_base = (lambda L: H_OFF) if r else (lambda L: O_OFF + L * 0x200000)
        self.o_mt = HMT if r else 32768
        self.x_base = (lambda inst: X1_OFF) if r else (lambda inst: [X1_OFF, X1_OFF + 0x200000, X2_OFF][inst])
        self.h_base = (lambda L: H_OFF) if r else (lambda L: H_OFF + L * H_L)
        self.st_base = (lambda inst: STAT_OFF) if r else (lambda inst: STAT_OFF + inst * 64 * 4096)

    def ts(self, name):
        if not self.cfg["ts"]:
            return
        k = self.nts; self.nts += 1; self.tsnames.append(name)
        assert k < 60
        self.q.raw(f"{'s_memrealtime' if self.cfg.get('rt') else 's_memtime'} {sTS}\ns_waitcnt lgkmcnt(0)\nv_writelane_b32 {vTS}, s96, {k}", drains_lgkm=True)

    def soff(self, s, reg, const, tmp):
        if const == 0: return reg
        s(f"s_add_u32 {tmp}, {reg}, {const}")
        return tmp

    def _cmp(self, reg, target):
        if target is None: return f"v_cmp_eq_u32 vcc, 0, {reg}\n"
        return f"v_and_b32 v29, 63, {reg}\nv_cmp_ne_u32 vcc, {target}, v29\n"

    def _loop(self, ld, reg, target, D):
        L = uid("L_poll")
        return (f"{L}:\n{ld}\ns_waitcnt vmcnt(0)\n" + self._cmp(reg, target) +
                f"s_nop 1\ns_cbranch_vccz {D}\ns_sub_u32 {sBUD}, {sBUD}, 1\ns_cbranch_scc0 {L}\ns_mov_b32 {sBUD}, 0\n")

    def poll(self, voff, srd, soff, off=0, target=None):
        D = uid("L_done")
        ld = f"buffer_load_dword {vP}, {voff}, {srd}, {soff} offen offset:{off} sc1"
        self.q.raw(self._loop(ld, vP, target, D) + f"{D}:\n", drains_vm=True, writes={"v29", "v30"})

    def precheck(self, s, reg, voff, srd, soff, off=0):
        ld = f"buffer_load_dword {reg}, {voff}, {srd}, {soff} offen offset:{off} sc1"
        s(ld)
        return ld

    def confirm(self, s, reg, ld):
        D = uid("L_done")
        s.raw(self._cmp(reg, None) + f"s_nop 1\ns_cbranch_vccz {D}\n" + self._loop(ld, reg, None, D) + f"{D}:\n", writes={reg})

    def flag(self, s, soff_reg, off, srd, toks):
        s(f"v_mov_b32 {vP}, 1")
        s.wait_tok(*toks)
        s.dual_store([f"buffer_store_dword {vP}, {vONE}, {srd}, {soff_reg} offen offset:{off}"], uid("f"))

    def handoff(self, s, lines, name, tok, wt=False):
        if wt:
            for l in lines: s(l + " sc1", tok=tok)
        else:
            s.dual_store(lines, uid(name), tok=tok)

    def barrier(self):
        self.q.wait_lgkm0()
        self.q("s_barrier")

    def dma_wq(self, j, tok):
        s = Seq()
        if j % 4 == 0:
            s(f"""
            s_lshl_b32 {sQO}, {sW}, 13
            s_add_u32 {sQO}, {sQO}, {sR4K}
            s_add_u32 {sQO}, {sQO}, {(j // 4) * 4096}
            s_and_b32 {sQO}, {sQO}, 0x7000
            s_mul_i32 {sQO}, {sQO}, 48
            s_lshl_b32 {sD}, {sHP}, 6
            s_add_u32 {sQO}, {sQO}, {sD}
            """)
        s(f"s_add_u32 m0, {sW8K}, {R1 + j * 1024}")
        s(f"s_add_u32 {sD}, {sQO}, {(j % 4) * 49152}")
        s(f"buffer_load_dwordx4 {vDQ}, {SQKV}, {sD} offen lds", tok=tok)
        return s

    def dma_packed(self, j, tok):
        s = Seq()
        if j < 8:
            s(f"s_add_u32 {sD}, {sR4K}, {j * 4096}")
            s(f"s_and_b32 {sD}, {sD}, 0x7000")
            s(f"s_add_u32 m0, {sW2K}, {R0 + j * 8192}")
            s(f"s_lshl1_add_u32 {sD}, {sD}, {sWQP}")
        else:
            s(f"s_add_u32 {sD}, {sQKVO}, {(j - 8) * 8192}")
            s(f"s_and_b32 {sD}, {sD}, 0x7fff")
            s(f"s_add_u32 m0, {sW2K}, {R1 + (j - 8) * 8192}")
            s(f"s_add_u32 {sD}, {sD}, {sQO}")
        s(f"buffer_load_dwordx4 {vL16}, {SWS}, {sD} offen sc1 lds")
        s(f"buffer_load_dwordx4 {vL16}, {SWS}, {sD} offen offset:1024 sc1 lds", tok=tok)
        return s

    def dma_wo(self, rnd, jj, tok):
        s = Seq()
        s(f"s_add_u32 m0, {sW8K}, {(R0 + 32768 if rnd else R3) + jj * 2048}")
        s(f"s_add_u32 {sD}, {sWOO}, {(8 * rnd + jj) * 16384}")
        s(f"buffer_load_dwordx4 {vD128}, {SWO}, {sD} offen lds")
        s(f"buffer_load_dwordx4 {vD128b}, {SWO}, {sD} offen offset:1024 lds", tok=tok)
        return s

    def dma_wgu(self, j):
        s = Seq()
        if self.cfg.get("ab_gu") == "all" or (self.cfg.get("ab_gu") == "c3" and j >= 10): return s
        s(f"s_add_u32 m0, {sW2K}, {GU_BASE[j // 4] + (j % 4) * 8192}")
        s(f"s_add_u32 {sD}, {sGUO}, {(j % 2 if self.cfg.get('hit_gu') else j) * 4 * 28672}")
        s(f"buffer_load_dwordx4 {vDG}, {SWG}, {sD} offen lds")
        s(f"buffer_load_dwordx4 {vDU}, {SWU}, {sD} offen offset:1024 lds", tok=self.gu_t[j])
        return s

    def dma_wd(self, u, slot, tok):
        s = Seq()
        if self.cfg.get("ab_wd"): return s
        s(f"s_add_u32 m0, {sW8K}, {slot}")
        s(f"s_add_u32 {sD}, {sWDO}, {(u % 6 if self.cfg.get('hit_wd') else u) * 16384}")
        s(f"buffer_load_dwordx4 {vD128}, {SWD}, {sD} offen lds")
        s(f"buffer_load_dwordx4 {vD128b}, {SWD}, {sD} offen offset:1024 lds", tok=tok)
        return s

    def stats_finish(self, s, s1, tmp, bfrag, dup):
        a, b = V(s1), V(s1 + 1); t0, t1 = V(tmp), V(tmp + 1)
        s(f"v_mov_b32 {t0}, {a}")
        s(f"v_mov_b32 {t1}, {b}")
        s(f"v_permlane32_swap_b32 {a}, {t0}")
        s(f"v_permlane32_swap_b32 {b}, {t1}")
        s(f"v_add_f32 {a}, {a}, {t0}")
        s(f"v_add_f32 {b}, {b}, {t1}")
        s(f"v_mul_f32 {t1}, {f32(1.0 / 512)}, {a}")
        s(f"v_mul_f32 {b}, {f32(1.0 / 512)}, {b}")
        s(f"v_mul_f32 {a}, {f32(-1.0 / 1024)}, {a}")
        s(f"v_fma_f32 {t0}, -{t1}, {t1}, {b}")
        s(f"v_cvt_pk_bf16_f32 {t1}, {a}, {a}")
        s(f"v_max_f32 {t0}, 0, {t0}")
        s(f"v_and_b32 {t1}, 0xffff0000, {t1}")
        s(f"v_add_f32 {t0}, {f32(1e-5)}, {t0}")
        s(f"v_sub_f32 {t1}, {a}, {t1}")
        s(f"v_rsq_f32 {b}, {t0}")
        s(f"v_cvt_pk_bf16_f32 v{bfrag}, {a}, {t1}")
        s(f"v_mov_b32 v{bfrag + 1}, v{bfrag}")
        for i in (2, 3): s(f"v_mov_b32 v{bfrag + i}, {'v%d' % bfrag if dup else '0'}")

    def cs_split(self, s, c, out):
        s(f"v_cvt_pk_bf16_f32 v{out}, {c}, {c}")
        s(f"v_and_b32 v{out + 1}, 0xffff0000, v{out}")
        s(f"v_sub_f32 v{out + 1}, {c}, v{out + 1}")
        s(f"v_cvt_pk_bf16_f32 v{out + 1}, v{out + 1}, v{out + 1}")

    def pack16(self, s, acc, out):
        for i in range(0, 16, 2):
            s(f"v_cvt_pk_bf16_f32 {V(out + i // 2)}, {V(acc + i)}, {V(acc + i + 1)}")

    def stats_sum(self, s, base):
        for st in (8, 4, 2):
            for i in range(0, st, 2):
                s(f"v_pk_add_f32 {V(base + i, 2)}, {V(base + i, 2)}, {V(base + i + st, 2)}")

    def softmax16(self, s, p, out, tmp, c):
        t = V(tmp); u = V(tmp + 1); c2 = V(c, 2)
        s(f"v_max3_f32 {t}, {V(p)}, {V(p + 1)}, {V(p + 2)}")
        s(f"v_max3_f32 {u}, {V(p + 3)}, {V(p + 4)}, {V(p + 5)}")
        s(f"v_max3_f32 {t}, {t}, {V(p + 6)}, {V(p + 7)}")
        s(f"v_max3_f32 {u}, {u}, {V(p + 8)}, {V(p + 9)}")
        s(f"v_max3_f32 {t}, {t}, {V(p + 10)}, {V(p + 11)}")
        s(f"v_max3_f32 {u}, {u}, {V(p + 12)}, {V(p + 13)}")
        s(f"v_max3_f32 {t}, {t}, {V(p + 14)}, {V(p + 15)}")
        s(f"v_max_f32 {t}, {t}, {u}")
        s(f"v_mul_f32 {V(c + 1)}, {V(c)}, {t}")
        for i in range(0, 16, 2):
            s(f"v_pk_fma_f32 {V(p + i, 2)}, {V(p + i, 2)}, {c2}, {c2} op_sel:[0,0,1] op_sel_hi:[1,0,1] neg_lo:[0,0,1] neg_hi:[0,0,1]")
        for i in range(16):
            s(f"v_exp_f32 {V(p + i)}, {V(p + i)}")
        for i in range(0, 8, 2):
            s(f"v_pk_add_f32 {V(tmp + i, 2)}, {V(p + i, 2)}, {V(p + 8 + i, 2)}")
        s(f"v_pk_add_f32 {V(tmp, 2)}, {V(tmp, 2)}, {V(tmp + 4, 2)}")
        s(f"v_pk_add_f32 {V(tmp + 2, 2)}, {V(tmp + 2, 2)}, {V(tmp + 6, 2)}")
        s(f"v_pk_add_f32 {V(tmp, 2)}, {V(tmp, 2)}, {V(tmp + 2, 2)}")
        s(f"v_add_f32 {t}, {t}, {u}")
        s(f"v_rcp_f32 {t}, {t}")
        for i in range(0, 16, 2):
            s(f"v_pk_mul_f32 {V(p + i, 2)}, {V(p + i, 2)}, {V(tmp, 2)} op_sel_hi:[1,0]")
        self.pack16(s, p, out)

    def mfma32(self, s, d, a, b, first, rtags=None):
        c = "0" if first else V(d, 16)
        s(f"v_mfma_f32_32x32x16_bf16 {V(d, 16)}, {a}, {b}, {c}", rtags=rtags)

    def tr2(self, s, dst, addr, off, dq, tag):
        assert off + dq < 65536
        s(f"ds_read_b64_tr_b16 {dst(0, 2)}, {addr} offset:{off}", wtag=tag)
        s(f"ds_read_b64_tr_b16 {dst(2, 2)}, {addr} offset:{off + dq}", wtag=tag)

    def ones(self, s, r):
        for i in range(4): s(f"v_mov_b32 v{r + i}, 0x3f803f80")

    def prologue(self):
        q = self.q
        q("s_cmp_ge_u32 s2, 256\ns_cbranch_scc1 L_end")
        if self.cfg["ts"]: q("s_memtime s[76:77]\ns_memrealtime s[78:79]")
        q(f"""
        s_load_dwordx16 s[80:95], s[0:1], 0
        s_load_dwordx4 s[96:99], s[0:1], 64
        s_load_dwordx2 s[100:101], s[0:1], 80
        v_lshrrev_b32 v100, 6, v0
        v_and_b32 {vLANE}, 63, v0
        v_readfirstlane_b32 {sW}, v100
        s_and_b32 {sG}, s2, 7
        s_lshr_b32 {sI}, s2, 3
        """)
        q.raw(f"""
        s_getpc_b64 s[44:45]
        L_pc:
        s_sub_u32 s44, s44, L_pc-{KNAME}
        s_subb_u32 s45, s45, 0
        s_cmp_lg_u32 {sW}, 3
        s_cbranch_scc1 L_nopf
        s_and_b32 s46, {sI}, 7
        s_lshl_b32 s46, s46, 13
        v_lshl_add_u32 v101, {vLANE}, 7, s46
        v_min_u32 v101, L_last-{KNAME}, v101
        global_load_dword v127, v101, s[44:45]
        L_nopf:
        """, writes={"v101"})
        q(f"""
        s_and_b32 {sRB}, {sI}, 1
        s_lshr_b32 {sHP}, {sI}, 1
        s_and_b32 {sRQ}, {sI}, 3
        s_lshr_b32 {sCT}, {sI}, 2
        s_xor_b32 {sCT}, {sCT}, 4
        s_lshl_b32 {sW2K}, {sW}, 11
        s_lshl_b32 {sW8K}, {sW}, 13
        v_lshlrev_b32 {vL16}, 4, {vLANE}
        """)
        q(f"""
        v_and_b32 v104, 3, {vLANE}
        v_lshrrev_b32 v106, 3, {vLANE}
        v_and_b32 v107, 7, {vLANE}
        v_lshrrev_b32 v108, 4, {vLANE}
        v_lshrrev_b32 v110, 2, {vLANE}
        v_mul_u32_u24 v110, 3072, v110
        v_lshl_add_u32 {vDQ}, v104, 4, v110
        v_xor_b32 v110, v107, v108
        v_lshlrev_b32 v110, 4, v110
        v_lshl_add_u32 v112, v106, 10, v110
        v_xor_b32 v113, 64, v112
        v_add_u32 v113, 7168, v113
        v_add_u32 v114, {2 * 7168}, v112
        v_add_u32 v115, {2 * 7168}, v113
        s_lshl_b32 {sT0}, {sHP}, 6
        s_mul_i32 {sT1}, {sW}, 49152
        s_add_u32 {sQKVO}, {sT0}, {sT1}
        s_add_u32 {sQKVO}, {sQKVO}, 1024
        s_add_u32 {sR4K}, {sCT}, {sG}
        s_and_b32 {sR4K}, {sR4K}, 7
        s_lshl_b32 {sR4K}, {sR4K}, 12
        s_lshl_b32 {sMT1}, {sG}, 3
        s_lshl_b32 {sT0}, {sRB}, 2
        s_add_u32 {sMT1}, {sMT1}, {sT0}
        s_add_u32 {sMT1}, {sMT1}, {sW}
        """)
        q.wait_lgkm0()
        if self.cfg["ts"]:
            q(f"v_writelane_b32 {vTS}, {'s78' if self.cfg.get('rt') else 's76'}, 0\nv_writelane_b32 {vTS}, s78, 60")
            self.nts = 1; self.tsnames.append("entry")
        def srd(d, p, size, sub=0):
            b = int(d[2:].split(":")[0])
            if sub:
                q(f"s_sub_u32 s{b}, s{p}, {sub}\ns_subb_u32 s{b + 1}, s{p + 1}, 0")
            else:
                q(f"s_mov_b64 s[{b}:{b + 1}], s[{p}:{p + 1}]")
            q(f"s_mov_b32 s{b + 2}, {size + sub}\ns_mov_b32 s{b + 3}, 0x20000")
        srd(SX, 80, 2097152); srd(SQKV, 82, 1572864); srd(SWS, 100, WS_SIZE); srd(SDBG, 98, 256)
        if self.cfg.get('ts2'): srd(SOUT, 96, 2097152)
        self.srd = srd

    def prologue2(self):
        q = self.q; srd = self.srd
        srd(SPHI, 84, 16384); srd(SWO, 86, 524288); srd(SWG, 90, 1835008); srd(SWU, 92, 1835008, sub=1024)
        srd(SWD, 94, 1835008); srd(SWS3, 100, WS_SIZE)
        if not self.cfg.get('ts2'): srd(SOUT, 96, 2097152)
        T3 = "s76"; MT2G = "s77"
        q(f"""
        s_mov_b32 {sBUD}, 200000
        s_mov_b32 {sMODE}, 1
        s_mul_i32 {sFLG}, {sG}, {FLG_G}
        s_add_u32 {sFLG}, {sFLG}, {FLG_OFF}
        s_mul_i32 {sKV}, {sHP}, {KV_HP}
        s_and_b32 {sT0}, {sW}, 1
        s_lshl_b32 {sMT2}, {sRQ}, 1
        s_add_u32 {sMT2}, {sMT2}, {sT0}
        s_lshr_b32 {sT1}, {sW}, 1
        s_lshl_b32 {sPART}, {sCT}, 1
        s_add_u32 {sPART}, {sPART}, {sT1}
        s_lshl_b32 {sWOO}, {sT1}, 2
        s_add_u32 {sWOO}, {sWOO}, {sT0}
        s_lshl_b32 {sWOO}, {sWOO}, 16
        s_lshl_b32 {T3}, {sCT}, 7
        s_add_u32 {sWOO}, {sWOO}, {T3}
        s_mul_i32 {sAT}, {sW}, 1280
        s_add_u32 {sAT}, {sAT}, {sKV}
        s_lshl_b32 {MT2G}, {sG}, 3
        s_add_u32 {MT2G}, {MT2G}, {sMT2}
        s_mul_i32 {sO_LD}, {MT2G}, {self.o_mt}
        s_lshl_b32 {sT0}, {sT1}, 14
        s_add_u32 {sO_LD}, {sO_LD}, {sT0}
        s_add_u32 {sO_LD}, {sO_LD}, {self.o_base(0)}
        s_lshl_b32 {sFO_PL}, {sMT2}, 6
        s_lshl_b32 {sT0}, {sT1}, 5
        s_add_u32 {sFO_PL}, {sFO_PL}, {sT0}
        s_add_u32 {sFO_PL}, {sFO_PL}, {sFLG}
        s_mul_i32 {sT1}, {sW}, {28 * 16384}
        s_add_u32 {sWDO}, {T3}, {sT1}
        s_lshl_b32 {sT0}, {sI}, 7
        s_mul_i32 {sT1}, {sW}, 28672
        s_add_u32 {sGUO}, {sT0}, {sT1}
        s_mul_i32 {sWQP}, {sHP}, 98304
        s_add_u32 {sWQP}, {sWQP}, {sW2K}
        s_add_u32 {sWQP}, {sWQP}, {WQP_OFF}
        s_mul_i32 {sO_ST}, {sMT1}, {self.o_mt}
        s_lshl_b32 {sT0}, {sHP}, 11
        s_add_u32 {sO_ST}, {sO_ST}, {sT0}
        s_add_u32 {sO_ST}, {sO_ST}, {self.o_base(0)}
        s_and_b32 {sT0}, {sMT1}, 7
        s_lshl_b32 {sT0}, {sT0}, 6
        s_add_u32 {sT0}, {sT0}, {sFLG}
        s_add_u32 {sFX_PL1}, {sT0}, {FX}
        s_lshl_b32 {sT1}, {sHP}, 2
        s_add_u32 {sFO_ST}, {sT0}, {sT1}
        s_lshl_b32 {sT0}, {MT2G}, 15
        s_lshl_b32 {sT1}, {sPART}, 6
        s_add_u32 {sOUTO}, {sT0}, {sT1}
        s_lshl_b32 {sT1}, {sPART}, 11
        s_add_u32 {sX_ST}, {sT0}, {sT1}
        s_add_u32 {sX_ST}, {sX_ST}, {self.x_base(0)}
        s_lshl_b32 {sST_ST}, {MT2G}, 12
        s_bfe_u32 {sT1}, {sPART}, 0x20001
        s_lshl_b32 {sT1}, {sT1}, 10
        s_add_u32 {sST_ST}, {sST_ST}, {sT1}
        s_lshr_b32 {sT1}, {sPART}, 3
        s_lshl_b32 {sT1}, {sT1}, 9
        s_add_u32 {sST_ST}, {sST_ST}, {sT1}
        s_and_b32 {sT1}, {sPART}, 1
        s_lshl_b32 {sT1}, {sT1}, 3
        s_add_u32 {sST_ST}, {sST_ST}, {sT1}
        s_add_u32 {sST_ST}, {sST_ST}, {STAT_OFF}
        s_lshl_b32 {sFX_ST}, {sMT2}, 6
        s_lshl_b32 {sT1}, {sPART}, 2
        s_add_u32 {sFX_ST}, {sFX_ST}, {sT1}
        s_add_u32 {sFX_ST}, {sFX_ST}, {sFLG}
        s_add_u32 {sFX_ST}, {sFX_ST}, {FX}
        ; K1 loads
        s_lshl_b32 {sX_LD1}, {sMT1}, 15
        s_add_u32 {sX_LD1}, {sX_LD1}, {self.x_base(2)}
        s_lshl_b32 {sST_LD1}, {sMT1}, 12
        s_add_u32 {sST_LD1}, {sST_LD1}, {self.st_base(2)}
        ; K3: m-tiles 8g+2w, +1
        s_lshl_b32 {sT0}, {sW}, 7
        s_add_u32 {sFX_PL3}, {sT0}, {sFLG}
        s_add_u32 {sFX_PL3}, {sFX_PL3}, {FX}
        s_lshl_b32 {sT0}, {sW}, 8
        s_lshl_b32 {sT1}, {sI}, 2
        s_add_u32 {sFH_ST}, {sT0}, {sT1}
        s_add_u32 {sFH_ST}, {sFH_ST}, {sFLG}
        s_add_u32 {sFH_ST}, {sFH_ST}, {FH}
        s_lshl_b32 {sT0}, {sG}, 2
        s_add_u32 {sT0}, {sT0}, {sW}
        s_lshl_b32 {sX_LD3}, {sT0}, 16
        s_add_u32 {sX_LD3}, {sX_LD3}, {self.x_base(0)}
        s_lshl_b32 {sST_LD3}, {sT0}, 13
        s_add_u32 {sST_LD3}, {sST_LD3}, {STAT_OFF}
        s_mul_i32 {sH_ST}, {sT0}, {2 * HMT}
        s_lshl_b32 {sT1}, {sI}, 12
        s_add_u32 {sH_ST}, {sH_ST}, {sT1}
        s_add_u32 {sH_ST}, {sH_ST}, {H_OFF}
        ; K4
        s_lshl_b32 {sT0}, {sRQ}, 8
        s_mul_i32 {sT1}, {sW}, 28
        s_add_u32 {sFH_PL}, {sT0}, {sT1}
        s_add_u32 {sFH_PL}, {sFH_PL}, {sFLG}
        s_add_u32 {sFH_PL}, {sFH_PL}, {FH}
        s_lshl_b32 {sT0}, {sG}, 2
        s_add_u32 {sT0}, {sT0}, {sRQ}
        s_mul_i32 {sH_LD}, {sT0}, {2 * HMT}
        s_lshl_b32 {sT1}, {sT1}, 10
        s_add_u32 {sH_LD}, {sH_LD}, {sT1}
        s_add_u32 {sH_LD}, {sH_LD}, {H_OFF}
        s_cmp_eq_u32 {sW}, 0
        s_cselect_b32 {sCNT}, {sKV}, {OOB}
        s_add_u32 {sCNT}, {sCNT}, {KV_OFF + KV_CNT}
        s_getreg_b32 {sT0}, hwreg(HW_REG_XCC_ID)
        s_and_b32 {sT0}, {sT0}, 15
        s_mul_i32 {sT1}, {sT0}, {sT0}
        s_lshl_b32 {sT1}, {sT1}, 15
        s_lshl_b32 {sT0}, {sT0}, 6
        s_add_u32 {sADD}, {sT0}, {sT1}
        s_add_u32 {sADD}, {sADD}, 1
        """)
        q(f"""
        v_lshrrev_b32 v100, 5, {vLANE}
        v_and_b32 v101, 31, {vLANE}
        v_bfe_u32 v102, {vLANE}, 4, 1
        v_bfe_u32 v103, {vLANE}, 2, 2
        v_lshrrev_b32 v105, 1, v104
        v_and_b32 v110, 1, v104
        v_lshl_add_u32 v105, v110, 1, v105
        v_lshl_add_u32 v110, v100, 3, v103
        v_lshl_add_u32 v111, v102, 2, v105
        v_lshlrev_b32 v111, 3, v111
        v_lshl_add_u32 {vT64}, v110, 6, v111
        v_lshrrev_b32 v109, 1, v103
        v_lshl_add_u32 v111, v109, 6, v111
        v_lshl_add_u32 {vT128}, v110, 7, v111
        s_lshr_b32 {sT0}, {sW}, 1
        s_lshl_b32 {sT0}, {sT0}, 6
        v_xor_b32 {vT128}, {sT0}, {vT128}
        v_lshlrev_b32 v110, 11, v100
        v_lshl_add_u32 v110, v102, 10, v110
        v_lshl_add_u32 v110, v103, 7, v110
        v_lshl_add_u32 v111, v102, 1, v109
        v_lshl_add_u32 v110, v111, 5, v110
        v_lshl_add_u32 {vTG}, v105, 3, v110
        v_lshlrev_b32 v110, 2, v102
        v_xor_b32 v110, v107, v110
        v_lshlrev_b32 v110, 4, v110
        v_lshl_add_u32 {vD128}, v106, 10, v110
        v_add_u32 {vD128b}, 7168, {vD128}
        v_lshlrev_b32 v110, 1, v102
        v_xor_b32 v110, v107, v110
        v_lshlrev_b32 v110, 4, v110
        v_mul_u32_u24 v111, 3584, v106
        v_add_u32 {vDG}, v110, v111
        v_xor_b32 {vDU}, 64, {vDG}
        v_lshlrev_b32 v110, 4, v100
        v_lshl_add_u32 {vROW}, v101, 10, v110
        v_min_u32 v110, 1, {vLANE}
        v_lshlrev_b32 {vONE}, 30, v110
        """)

    def k1_setup(self, L):
        q = self.q
        q(f"""
        v_add_u32 {vKVT}, {R0}, {vT64}
        v_add_u32 {vWQ}, {R1}, {vT64}
        v_lshrrev_b32 v29, 5, {vLANE}
        v_and_b32 v30, 31, {vLANE}
        v_lshlrev_b32 {vCS}, 4, v30
        v_add_u32 {vCS}, {CS1}, {vCS}
        s_lshl_b32 {sT0}, {sW}, 5
        v_add_u32 v30, {sT0}, v30
        v_mul_u32_u24 v30, {PH_S}, v30
        v_add_u32 v30, {R2}, v30
        v_lshl_add_u32 {vPW32}, v29, 5, v30
        v_lshl_add_u32 {vPW16}, v29, 4, v30
        v_bfe_u32 v30, {vLANE}, 2, 2
        v_lshl_add_u32 v30, v29, 4, v30
        v_mul_u32_u24 {vKR}, 40, v30
        v_and_b32 v30, 0x38, {vT64}
        v_min_u32 v30, 32, v30
        v_add_u32 {vKR}, {vKR}, v30
        v_add_u32 {vKR}, {KVB}, {vKR}
        v_bfe_u32 v30, {vLANE}, 2, 2
        v_lshrrev_b32 v29, 4, {vLANE}
        v_lshl_add_u32 {vKW1}, v30, 2, v29
        v_lshl_add_u32 {vKW2}, v29, 2, v30
        v_mul_u32_u24 {vKW1}, 40, {vKW1}
        v_mul_u32_u24 {vKW2}, 40, {vKW2}
        v_and_b32 v30, 3, {vLANE}
        v_lshl_add_u32 {vKW1}, v30, 3, {vKW1}
        v_lshl_add_u32 {vKW2}, v30, 1, {vKW2}
        s_mul_i32 {sT1}, {sW}, 640
        s_add_u32 {sT1}, {sT1}, {KVB}
        v_add_u32 {vKW1}, {sT1}, {vKW1}
        v_add_u32 {vKW2}, {sT1}, {vKW2}
        v_lshrrev_b32 v29, 4, {vLANE}
        v_bfe_u32 v30, {vLANE}, 2, 2
        v_lshl_add_u32 v30, v29, 3, v30
        v_mul_u32_u24 v30, {PH_S}, v30
        v_and_b32 {vKA}, 3, {vLANE}
        v_lshl_add_u32 v30, {vKA}, 3, v30
        s_lshr_b32 {sT1}, {sW}, 1
        s_lshl_b32 {sT2}, {sT1}, 5
        s_add_u32 {sT2}, {sT2}, {R2}
        v_add_u32 {vKA}, {sT2}, v30
        s_add_u32 {sT0}, {sT0}, {R2 + 64}
        v_add_u32 {vKB}, {sT0}, v30
        v_lshlrev_b32 {vL4}, 2, {vLANE}
        s_lshl_b32 {sT1}, {sT1}, 14
        v_add_u32 {vWO0}, {sT1}, {vT128}
        v_xor_b32 {vWO1}, 64, {vWO0}
        v_add_u32 {vUN1}, {R0 + 32768}, {vWO0}
        v_add_u32 {vUN2}, {R0 + 32768}, {vWO1}
        """)

    def zero_setup(self):
        self.q(f"""
        s_mul_i32 {sT0}, {sW}, 2816
        s_add_u32 s46, {sKV}, {sT0}
        s_mov_b32 s47, 0
        s_lshl_b32 {sT0}, {sW}, 11
        s_add_u32 {sT0}, {sFLG}, {sT0}
        s_mov_b32 {sT1}, 0
        s_cmp_lt_u32 {sHP}, 8
        s_cselect_b32 {sT0}, {sT0}, {OOB}
        s_cselect_b32 {sT1}, {sT1}, {OOB}
        s_cmp_eq_u32 {sRB}, 0
        s_cselect_b32 s46, s46, {sT0}
        s_cselect_b32 s47, s47, {sT1}
        s_cselect_b32 {sT2}, 1, 4
        s_and_b32 {sT0}, {sHP}, 7
        s_cmp_eq_u32 {sT0}, {sG}
        s_cselect_b32 s46, s46, {OOB}
        s_cselect_b32 s47, s47, {OOB}
        s_cmp_eq_u32 {sW}, 0
        s_cselect_b32 s47, s47, {OOB}
        s_add_u32 s47, s47, {64 if self.cfg.get("dbgts") else 0}
        v_add_u32 v105, s47, {vONE}
        v_add_u32 v106, {sT2}, v108
        v_lshrrev_b32 v106, 2, v106
        v_lshl_add_u32 v106, v106, 28, {vL16}
        v_mov_b32 v104, 1
        v_mov_b32 v96, 0
        v_mov_b32 v97, 0
        v_mov_b32 v98, 0
        v_mov_b32 v99, 0
        """)

    XF = Reg("v", 128)
    def k1_groups(self, L):
        def tr(s_):
            g = Seq()
            for t in range(2):
                slot = (2 * s_ + t) % 6
                self.tr2(g, Reg("a", WRING.lo + 4 * slot), vKVT, s_ * 2048 + t * 1024, 256, ("Wkv", L, s_, t))
            return g
        def mm(s_, t):
            g = Seq()
            slot = (2 * s_ + t) % 6
            self.mfma32(g, 48 + 16 * t, WRING(4 * slot, 4), self.XF(4 * s_, 4), s_ == 0,
                        rtags={1: ("Wkv", L, s_, t), 2: ("x", L, s_)})
            return g
        return tr, mm

    def k1_first(self):
        q = self.q; L = 0
        XF = self.XF
        XS = "s3"
        q(f"s_lshl_b32 {XS}, {sMT1}, 15")
        xt = [Tok() for _ in range(8)]; wt = [Tok() for _ in range(8)]
        slot = lambda cp: (R1 if (cp & 3) < 2 else R3) + (cp & 1) * 4096
        def dma_xw(cp):
            s = Seq()
            s(f"""
            s_add_u32 {sT0}, {sR4K}, {cp * 4096}
            s_and_b32 {sT0}, {sT0}, 0x7000
            s_lshr_b32 {sD}, {sT0}, 5
            s_add_u32 m0, {sW8K}, {slot(cp)}
            s_add_u32 {sD}, {sD}, {XS}
            """)
            for j in range(4):
                s(f"buffer_load_dwordx4 v{112 + j}, {SX}, {sD} offen offset:{j * 1024} lds", tok=xt[cp] if j == 3 else None)
            s(f"""
            s_mul_i32 {sD}, {sT0}, 48
            s_add_u32 m0, {sW2K}, {R0 + cp * 8192}
            s_add_u32 {sD}, {sD}, {sQKVO}
            buffer_load_dwordx4 {vDQ}, {SQKV}, {sD} offen lds
            """)
            s(f"buffer_load_dwordx4 {vDQ}, {SQKV}, {sD} offen offset:1024 lds", tok=wt[cp])
            return s
        q.extend(dma_xw(0))
        if self.cfg.get("coop", "1") == "1":
            q(f"""
            v_min_u32 v110, 11, {vLANE}
            v_lshlrev_b32 v110, 10, v110
            s_lshl2_add_u32 {sD}, {sI}, {sW}
            s_mul_i32 {sD}, {sD}, 12288
            buffer_load_dword v126, v110, {SQKV}, {sD} offen offset:384
            """)
        if self.cfg.get("ts2"): self.ts("dma0")
        self.prologue2()
        self.k1_setup(0)
        q(f"""
        v_bfe_u32 v116, v101, 1, 3
        v_xor_b32 v116, v100, v116
        v_lshlrev_b32 v116, 4, v116
        v_lshl_add_u32 v116, v101, 7, v116
        v_add_u32 v116, {sW8K}, v116
        v_xor_b32 v117, 32, v116
        v_xor_b32 v118, 64, v116
        v_xor_b32 v119, 96, v116
        v_lshl_add_u32 v110, v100, 3, v103
        v_lshrrev_b32 v120, 1, v104
        v_lshl_add_u32 v120, v102, 1, v120
        v_lshlrev_b32 v120, 3, v120
        v_lshl_add_u32 v120, v110, 5, v120
        s_lshl_b32 {sT1}, {sW}, 10
        s_add_u32 s76, {sT1}, {R2}
        v_add_u32 v120, s76, v120
        v_bfe_u32 v121, {vLANE}, 2, 1
        v_mul_u32_u24 v121, 0x8000, v121
        v_lshl_add_u32 v121, v121, 16, v121
        v_mov_b32 v92, 0
        v_mov_b32 v93, 0
        v_mov_b32 v94, 0
        v_mov_b32 v95, 0
        v_mov_b32 v100, 0
        v_mov_b32 v101, 0
        v_mov_b32 v102, 0
        v_mov_b32 v103, 0
        s_and_b32 {sT0}, {sW}, 1
        s_lshl_b32 {sT0}, {sT0}, 10
        s_lshr_b32 {sT1}, {sW}, 1
        s_lshl_b32 {sT1}, {sT1}, 12
        s_add_u32 {sT0}, {sT0}, {sT1}
        v_add_u32 v109, {sT0}, {vKVT}
        v_lshlrev_b32 v110, 7, {vLANE}
        v_min_u32 v124, {13 * 128}, v110
        v_min_u32 v125, {3 * 128}, v110
        s_lshl2_add_u32 {sT2}, {sI}, {sW}
        s_lshl_b32 {sT0}, {sG}, 7
        s_add_u32 {sT0}, {sT0}, {sT2}
        s_mul_i32 s77, {sT0}, 1792
        v_add_u32 {vTCH}, {sO_ST}, v110
        s_sub_u32 {sT1}, {sX_ST}, {16 * 128}
        v_add_u32 v111, {sT1}, v110
        v_cmp_lt_u32 vcc, 15, {vLANE}
        s_and_b32 {sT2}, {sST_ST}, 0xfffffe00
        s_sub_u32 {sT1}, {sT2}, {32 * 128}
        v_cndmask_b32 {vTCH}, {vTCH}, v111, vcc
        v_min_u32 v111, {35 * 128}, v110
        v_add_u32 v111, {sT1}, v111
        v_cmp_lt_u32 vcc, 31, {vLANE}
        v_lshrrev_b32 v110, 5, {vLANE}
        v_lshl_add_u32 {vUN0}, v110, 28, {vL16}
        v_cndmask_b32 {vTCH}, {vTCH}, v111, vcc
        """)
        self.ones(q, 88)
        if self.cfg.get("ts2"): self.ts("setup")
        tphi = Tok()
        q(f"s_mov_b32 m0, s76\ns_lshl_b32 {sD}, {sHP}, 10")
        q(f"buffer_load_dwordx4 {vL16}, {SPHI}, {sD} offen lds", tok=tphi)
        q(f"s_mov_b32 s45, {sT2}")
        self.zero_setup()
        DIST = int(self.cfg.get("dist", 2))
        for cp in range(1, DIST): q.extend(dma_xw(cp))
        res = Seq()
        res(f"""
        buffer_load_dwordx4 v[80:83], {vROW}, {SX}, {sOUTO} offen
        buffer_load_dwordx4 v[84:87], {vROW}, {SX}, {sOUTO} offen offset:32
        """)
        tz = Tok()
        zs = Seq()
        zs(f"""
        buffer_store_dwordx4 v[96:99], {vL16}, {SWS}, s46 offen sc1
        buffer_store_dwordx4 v[96:99], {vL16}, {SWS}, s46 offen offset:1024 sc1
        buffer_store_dwordx4 v[96:99], v106, {SWS}, s46 offen offset:2048 sc1
        """, tok=tz)
        ws0 = Seq()
        if self.cfg.get("wt0", "4") in ("1", "4"):
            ws0(f"""
            buffer_store_dwordx4 v[88:91], {vL16}, {SWS}, {sO_ST} offen sc1
            buffer_store_dwordx4 v[88:91], {vL16}, {SWS}, {sO_ST} offen offset:1024 sc1
            buffer_store_dwordx4 v[88:91], {vL16}, {SWS}, {sX_ST} offen sc1
            buffer_store_dwordx4 v[88:91], {vL16}, {SWS}, {sX_ST} offen offset:1024 sc1
            buffer_store_dwordx4 v[88:91], {vUN0}, {SWS}, s45 offen sc1
            """)
        tw = Seq()
        tw(f"""
        s_lshl2_add_u32 {sD}, {sI}, {sW}
        s_lshl3_add_u32 {sD}, {sD}, {sG}
        s_lshl_b32 {sD}, {sD}, 9
        buffer_load_dword v29, v125, {SWO}, {sD} offen
        s_lshr_b32 s44, s77, 1
        v_min_u32 v126, {6 * 128}, v124
        buffer_load_dword v127, v126, {SWG}, s44 offen
        buffer_load_dword v30, v126, {SWU}, s44 offen offset:1024
        """)
        tw2 = Seq()
        tw2(f"""
        s_add_u32 {sD}, s44, {1835008 // 2}
        buffer_load_dword v116, v126, {SWG}, {sD} offen
        buffer_load_dword v117, v126, {SWU}, {sD} offen offset:1024
        s_lshl_b32 {sD}, s44, 1
        buffer_load_dword v124, v124, {SWD}, {sD} offen
        s_cmp_ge_u32 {sI}, 28
        s_cselect_b32 s18, 0, s18
        s_cselect_b32 s22, 0, s22
        s_cselect_b32 s38, 0, s38
        """)
        if self.cfg.get("tb", "2") == "1":
            t2 = Seq()
            for i in tw2: t2(i.text.replace("v116", "v107").replace("v117", "v108"))
            tw.extend(t2); tw2 = Seq()
        self.tw2 = tw2
        tr, mm = self.k1_groups(L)
        self.ts("start")
        wq = [Tok() for _ in range(8)]
        self.wo_t = [Tok() for _ in range(4)]
        def xread(cp):
            g = Seq(); g.wait_tok(xt[cp])
            for e in range(4):
                g(f"ds_read_b128 {XF(16 * cp + 4 * e, 4)}, v{116 + e} offset:{slot(cp)}", wtag=("x", L, 4 * cp + e))
            return g
        def cstr(cp):
            g = Seq()
            for j in range(2): self.tr2(g, Reg("a", 8 * (cp & 1) + 4 * j), "v109", cp * 8192 + j * 2048, 256, ("cs", cp, j))
            return g
        q.extend(xread(0)); q.wait_tok(wt[0]); q("s_barrier")
        if self.cfg.get("ts2"): self.ts("c0")
        q.extend(tr(0)); q.extend(tr(1)); q.extend(cstr(0))
        ZC = int(self.cfg.get("zc", 0))
        for cp in range(8):
            d = []
            if cp + DIST < 8: d = [dma_xw(cp + DIST)]
            if cp == ZC: d.append(zs)
            if cp == 1: d.append(res)
            QC = max(4, 8 - DIST - 1)
            if cp in (QC, QC + 1):
                d += [self.dma_wq(4 * (cp - QC) + j, wq[4 * (cp - QC) + j]) for j in range(4)]
            if cp == int(self.cfg.get("tc", QC + 1)): d.append(tw)
            if cp == 7 and self.cfg.get("wt0", "4") == "4": d.append(ws0)
            for i in range(16):
                k = [92, 94, 100, 102][i % 4]
                q(f"v_dot2c_f32_bf16 v{k}, {XF(16 * cp + i)}, v88")
                q(f"v_dot2c_f32_bf16 v{k + 1}, {XF(16 * cp + i)}, {XF(16 * cp + i)}")
            c = Seq()
            for e in range(4):
                s_ = 4 * cp + e
                c.extend(mm(s_, 0))
                if e == 0 and cp < 7: c.extend(xread(cp + 1))
                c.extend(mm(s_, 1))
                if e == 2 and cp < 7:
                    c.wait_tok(wt[cp + 1], *([tz] if cp == ZC + 3 else [])); c("s_barrier")
                    if cp == ZC + 3: c(f"buffer_atomic_add v104, v105, {SDBG}, 0 offen")
                if s_ + 2 < 32: c.extend(tr(s_ + 2))
                if e < 2:
                    c(f"v_mfma_f32_32x32x16_bf16 a[16:31], v[88:91], {A(8 * (cp & 1) + 4 * e, 4)}, {'0' if s_ == 0 else 'a[16:31]'}", rtags={2: ("cs", cp, e)})
                if e == 3 and cp < 7: c.extend(cstr(cp + 1))
            q.extend(spread(c, singles(d)))
            if self.cfg.get("ts2") and cp in (0, 3): self.ts(f"e{cp}")
            if cp == 4:
                q.wait_tok(tphi)
                for hd in range(2):
                    pass
                for i in range(8):
                    q(f"v_lshlrev_b32 {XRES(2 * i)}, 16, v{80 + i}")
                    q(f"v_and_b32 {XRES(2 * i + 1)}, 0xffff0000, v{80 + i}")
                for hd in range(2):
                    q(f"ds_read_b64_tr_b16 v[{80 + 4 * hd}:{81 + 4 * hd}], v120 offset:{hd * 512}")
                    q(f"ds_read_b64_tr_b16 v[{82 + 4 * hd}:{83 + 4 * hd}], v120 offset:{hd * 512 + 128}")
            if cp == 5:
                for i in range(8):
                    q(f"v_xor_b32 v{80 + i}, v121, v{80 + i}")
                    q(f"v_accvgpr_write_b32 {WPHI(i)}, v{80 + i}")
        q(f"""
        s_lshl1_add_u32 {sT0}, {sG}, {sRB}
        s_lshl2_add_u32 {sT0}, {sT0}, {sW}
        s_lshl_b32 s3, {sT0}, 9
        s_sub_u32 {sT1}, s3, {sR4K}
        s_and_b32 {sT1}, {sT1}, 0x7fff
        s_lshl1_add_u32 {sT1}, {sT1}, {R0}
        v_add_u32 v114, {sT1}, {vL16}
        ds_read_b128 v[80:83], v114
        v_accvgpr_read_b32 v112, a16
        s_and_b32 {sT0}, {sW}, 1
        s_lshl_b32 {sT0}, {sT0}, 9
        s_lshr_b32 {sT1}, {sW}, 1
        s_lshl3_add_u32 {sT0}, {sT1}, {sT0}
        v_add_u32 v113, {sT0}, {vCS}
        """)
        self.cs_split(q, "v112", 84)
        q(f"""
        ds_write_b64 v113, v[84:85]
        s_sub_u32 {sT1}, {sWQP}, {sW2K}
        s_lshl1_add_u32 {sT0}, s3, {sT1}
        buffer_store_dwordx4 v[80:83], {vL16}, {SWS}, {sT0} offen sc1
        """)
        q("""
        v_pk_add_f32 v[92:93], v[92:93], v[94:95]
        v_pk_add_f32 v[100:101], v[100:101], v[102:103]
        v_pk_add_f32 v[92:93], v[92:93], v[100:101]
        """)
        self.stats_finish(q, 92, 94, 120, True)
        q(f"v_mul_f32 v94, {f32(LOG2E)}, v93")
        t = [Seq()]
        t[0](f"s_load_dword s46, s[40:41], {64 if self.cfg.get('dbgts') else 0}")
        self.epi_items = t
        self.wos = singles([self.dma_wo(r_, j, Tok()) for r_ in range(2) for j in range(4)])
        for _ in range(int(self.cfg.get("woE0", 4))): self.epi_items.append(self.wos.pop(0))
        self.ws0 = ws0
        self.wq_tok = wq

    def k1_second(self):
        q = self.q; L = 1; XF = self.XF
        self.k1_setup(1)
        q(f"""
        v_and_b32 v126, 15, {vLANE}
        v_lshlrev_b32 v126, 2, v126
        s_add_u32 {sQKVO}, {sW2K}, {sR4K}
        s_sub_u32 {sQO}, {sWQP}, {sW2K}
        s_add_u32 {sQO}, {sQO}, 65536
        s_add_u32 {sT1}, {sX_LD1}, {sR4K}
        ds_read_b128 v[112:115], {vCS}
        ds_read_b128 v[116:119], {vCS} offset:512
        """)
        self.poll("v126", SWS, sFX_PL1, 2 * 512)
        self.ts("fx2")
        def xl(s_):
            g = Seq()
            if s_ % 4 == 0 and s_:
                g(f"s_add_u32 {sT1}, {sR4K}, {s_ * 1024}\ns_and_b32 {sT1}, {sT1}, 0x7fff\ns_add_u32 {sT1}, {sT1}, {sX_LD1}")
            g(f"buffer_load_dwordx4 {XF(4 * s_, 4)}, {vL16}, {SWS}, {sT1} offen offset:{(s_ % 4) * 1024} sc1", wtag=("x", L, s_))
            return g
        PRE = int(self.cfg.get("k1pre", 6))
        for s_ in range(PRE): q.extend(xl(s_))
        q("s_barrier")
        if self.cfg.get("ts2"): self.ts("k1bar")
        tr, mm = self.k1_groups(L)
        q.extend(tr(0)); q.extend(tr(1))
        stw = Seq()
        self.stats_sum(stw, 92)
        self.stats_finish(stw, 92, 94, 120, True)
        stw(f"v_mul_f32 v94, {f32(LOG2E)}, v93")
        stw = list(stw)
        for s_ in range(32):
            q.extend(mm(s_, 0))
            if s_ + PRE < 32: q.extend(xl(s_ + PRE))
            if s_ == 2: ldS = self.precheck(q, "v127", "v126", SWS, sFX_PL1, 2 * 512 + 1536)
            if s_ == 10: self.confirm(q, "v127", ldS)
            if 10 <= s_ < 14:
                i = s_ - 10
                q(f"buffer_load_dwordx4 {V(92 + 4 * i, 4)}, {vL16}, {SWS}, {sST_LD1} offen offset:{i * 1024} sc1")
            if s_ >= 22:
                for _ in range(4):
                    if stw: q.append(stw.pop(0))
            q.extend(mm(s_, 1))
            if s_ + 2 < 32: q.extend(tr(s_ + 2))
            if s_ == 30:
                assert not stw
                for t in range(2): self.mfma32(q, 48 + 16 * t, V(112 + 4 * t, 4), "v[120:123]", False)
        wq = [Tok() for _ in range(4)]
        self.wo_t = [Tok() for _ in range(4)]
        self.epi_items = singles([self.dma_packed(8 + j, wq[j]) for j in range(4)])
        self.wos = singles([self.dma_wo(r_, j, Tok()) for r_ in range(2) for j in range(4)])
        for _ in range(int(self.cfg.get("woE", 4))): self.epi_items.append(self.wos.pop(0))
        self.wq_tok = wq

    def k1_rest(self, L):
        q = self.q; XF = self.XF
        self.gu_t = [Tok() for _ in range(16)]
        self.ts("k1main")
        if L == 0:
            self.barrier()
            q(f"ds_read_b128 v[112:115], {vCS}\nds_read_b128 v[116:119], {vCS} offset:512")
            for t in range(2): self.mfma32(q, 48 + 16 * t, V(112 + 4 * t, 4), "v[120:123]", False)
        e = Seq()
        self.pack16(e, 48, 80)
        self.mfma32(e, 48, WPHI(0, 4), V(80, 4), True)
        self.mfma32(e, 96, WPHI(4, 4), V(84, 4), True)
        for i in range(0, 16, 2):
            e(f"v_pk_mul_f32 {V(64 + i, 2)}, {V(64 + i, 2)}, v[92:93] op_sel:[0,1] op_sel_hi:[1,1]")
        self.pack16(e, 64, 112)
        e(f"ds_write_b128 {vPW16}, v[112:115]\nds_write_b128 {vPW16}, v[116:119] offset:32")
        self.softmax16(e, 48, 64, 80, 94)
        e(f"ds_write_b128 {vPW32}, v[64:67] offset:64\nds_write_b128 {vPW32}, v[68:71] offset:80")
        self.softmax16(e, 96, 72, 80, 94)
        e(f"ds_write_b128 {vPW32}, v[72:75] offset:128\nds_write_b128 {vPW32}, v[76:79] offset:144")
        q.extend(spread(e, self.epi_items, 0.3 if L == 0 else 0.0, 1.0))
        if L == 1: self.ones(q, 88)
        if self.cfg.get("ts2"): self.ts("softk")
        self.barrier()
        for st in range(4):
            self.tr2(q, Reg("v", 52 + 8 * st), vKB, st * 32 * PH_S, 4 * PH_S, None)
            self.tr2(q, Reg("v", 48 + 8 * st), vKA, st * 32 * PH_S, 4 * PH_S, None)
        wos = self.wos
        for _ in range(int(self.cfg.get("woK", 4))): q.extend(wos.pop(0))
        at = self.soff(q, sAT, KV_OFF + L * KV_L, sKVL)
        q("s_mov_b32 s76, 0x80008000\ns_mov_b32 s77, 0x80008000\ns_mov_b32 vcc_lo, 0x11111111\ns_mov_b32 vcc_hi, 0x11111111")
        for st in range(4):
            c0 = "0" if st == 0 else "v[80:83]"; c1 = "0" if st == 0 else "v[84:87]"
            q(f"v_mfma_f32_16x16x32_bf16 v[84:87], {V(52 + 8 * st, 4)}, v[88:91], {c1}")
            q(f"v_mfma_f32_16x16x32_bf16 v[80:83], {V(52 + 8 * st, 4)}, {V(48 + 8 * st, 4)}, {c0}")
        for b_ in range(1, 4):
            q(f"v_mov_b32_dpp v84, v{84 + b_} quad_perm:[0,1,2,3] row_mask:0xf bank_mask:{1 << b_}")
        for b_ in range(4):
            q(f"v_mov_b32_dpp v85, v{80 + b_} row_ror:{4 * b_ + 1} row_mask:0xf bank_mask:{1 << b_}")
        q("v_cndmask_b32 v84, v84, v85, vcc")
        q(f"s_mov_b64 exec, {sE0}")
        for r in range(5): q(f"v_mov_b32 v{80 + r}, 0x3e800000")
        q("s_mov_b64 exec, -1")
        if L == 0:
            D = uid("L_done")
            ld = f"buffer_load_dword v86, v87, {SDBG}, 0 offen offset:{64 if self.cfg.get('dbgts') else 0} sc1"
            q.raw(f"s_cmp_eq_u32 s46, 24\ns_cbranch_scc1 {D}\nv_mov_b32 v87, 0\n" + self._loop(ld, "v86", "24", D) + f"{D}:\n", writes={"s46"})
        for r in range(5):
            q(f"buffer_atomic_add_f32 v{80 + r}, {vL4}, {SWS}, {at} offen offset:{r * 256}")
        self.ts("atomics")
        if L == 0:
            q(f"""
            v_mov_b32 v85, {sADD}
            s_cmp_eq_u32 {sW}, 0
            s_cselect_b32 {sT0}, {sFLG}, {OOB}
            s_add_u32 {sT0}, {sT0}, {FREG}
            buffer_atomic_add v85, {vONE}, {SWS}, {sT0} offen
            s_lshl2_add_u32 {sD}, {sRQ}, {sW}
            s_lshl_b32 {sD}, {sD}, 9
            s_add_u32 {sD}, {sD}, {sFLG}
            buffer_load_dword v125, v125, {SWS}, {sD} offen sc1
            """)
            q.extend(self.tw2)
        q.wait_tok(*self.wq_tok)
        q("s_barrier")
        if L == 0:
            q(f"""
            s_sub_u32 {sT0}, s3, {sR4K}
            s_and_b32 {sT0}, {sT0}, 0x7fff
            s_add_u32 {sT0}, {sT0}, {R1}
            v_lshlrev_b32 v112, 3, {vLANE}
            v_add_u32 v113, {sT0}, v112
            ds_read_b64 v[114:115], v113
            s_sub_u32 {sT1}, {sWQP}, {sW2K}
            s_add_u32 {sT1}, {sT1}, s3
            s_add_u32 {sT1}, {sT1}, 65536
            """)
        def tr(s_):
            g = Seq(); self.tr2(g, Reg("a", WRING.lo + 4 * (s_ % 6)), vWQ, s_ * 1024, 256, ("Wq", L, s_)); return g
        def park(rnd, k):
            g = Seq(); j, nt = k >> 1, k & 1
            self.tr2(g, Reg("a", PARK.lo + 8 * (8 * rnd + j) + 4 * nt), [[vWO0, vWO1], [vUN1, vUN2]][rnd][nt], j * 2048, 512, ("wo", L, 8 * rnd + j, nt))
            return g
        for s_ in range(4): q.extend(tr(s_))
        if L == 0: q(f"buffer_store_dwordx2 v[114:115], v112, {SWS}, {sT1} offen sc1")
        NG1 = int(self.cfg.get("ng1_%d" % L, 2 if L == 0 else 1))
        m = Seq()
        if L == 1:
            self.cs_split(m, vDQ, 84)
            m("v_mov_b32 v86, 0\nv_mov_b32 v87, 0")
        for s_ in range(32):
            self.mfma32(m, 48, WRING(4 * (s_ % 6), 4), XF(4 * s_, 4), s_ == 0, rtags={1: ("Wq", L, s_), 2: ("x", L, s_)})
            if L == 0: self.mfma32(m, 64, "v[88:91]", WRING(4 * (s_ % 6), 4), s_ == 0, rtags={2: ("Wq", L, s_)})
            if s_ + 4 < 32: m.extend(tr(s_ + 4))
            if L == 1 and s_ == 30: self.mfma32(m, 48, "v[84:87]", "v[120:123]", False)
        tch = Seq(); tch(f"buffer_load_dword v118, {vTCH}, {SWS}, 0 offen sc1")
        assert NG1 <= 4
        gus = singles([self.dma_wgu(j) for j in range(NG1)])
        e = m
        if L == 0:
            e(f"v_mov_b32 {vDQ}, v64\nv_mov_b32 v82, 0\nv_mov_b32 v83, 0")
            self.cs_split(e, "v64", 80)
            self.mfma32(e, 48, "v[80:83]", "v[120:123]", False)
        self.pack16(e, 48, 80)
        self.mfma32(e, 48, WPHI(0, 4), V(80, 4), True)
        self.mfma32(e, 64, WPHI(4, 4), V(84, 4), True)
        self.softmax16(e, 48, 96, 80, 94)
        self.softmax16(e, 64, 104, 80, 94)
        if L == 0:
            g = Seq(); g(f"s_add_u32 {sT2}, {sFLG}, {FREG}\nv_mov_b32 v112, 0")
            reg_ld = self.precheck(g, "v113", "v112", SWS, sT2)
            mode = self.cfg.get("wt0", "4")
            if mode == "4": its = wos + gus + [tch, g]
            elif mode == "1": its = singles([self.ws0]) + wos + gus + [tch, g]
            elif mode == "0": its = [tch] + wos + gus + [g]
            else: its = wos + gus + [g]
        else:
            its = [tch] + wos + gus
        q.extend(spread(e, its, 0.0, float(self.cfg.get("qhi%d" % L, 0.8 if L == 0 else 0.7))))
        so = self.soff(q, sO_ST, self.o_base(L) - self.o_base(0), sT1)
        self.ts("qepi")
        Lp = uid("L_kv"); D = uid("L_done")
        q.raw(f"""
        s_mov_b32 s76, 0x88888888
        s_mov_b32 s77, 0x88888888
        {Lp}:
        buffer_load_dwordx4 v[48:51], {vL16}, {SWS}, {at} offen sc1
        buffer_load_dword v52, {vL4}, {SWS}, {at} offen offset:1024 sc1
        s_waitcnt vmcnt(0)
        v_cmp_neq_f32 vcc, 4.0, v52
        v_cmp_neq_f32 s[44:45], 4.0, v51
        s_and_b32 vcc_lo, vcc_lo, 0x80008000
        s_and_b32 vcc_hi, vcc_hi, 0x80008000
        s_or_b64 vcc, vcc, s[44:45]
        s_and_b64 vcc, vcc, {sE0}
        s_cbranch_scc0 {D}
        s_sub_u32 {sBUD}, {sBUD}, 1
        s_cbranch_scc0 {Lp}
        s_mov_b32 {sBUD}, 0
        {D}:
        """, drains_vm=True, writes={"v48", "v49", "v50", "v51", "v52", "v53"})
        self.ts("kvpoll")
        gi = NG1
        q(f"""
        v_cvt_pk_bf16_f32 v48, v48, v49
        v_cvt_pk_bf16_f32 v49, v50, v51
        v_cvt_pk_bf16_f32 v52, v52, v52
        ds_write_b64 {vKW1}, v[48:49]
        ds_write_b16 {vKW2}, v52 offset:30
        """)
        if L == 0:
            D = uid("L_done")
            q.raw(self._cmp("v113", "32") + f"s_nop 1\ns_cbranch_vccz {D}\n" + self._loop(reg_ld, "v113", "32", D) + f"{D}:\n", writes={"v113", "v29"})
            if not self.cfg["force_slow"]:
                q(f"""
                v_readfirstlane_b32 {sT0}, v113
                s_lshl_b32 {sT2}, {sADD}, 5
                s_cmp_eq_u32 {sT0}, {sT2}
                s_cselect_b32 {sMODE}, 0, 1
                """)
            q("v_mov_b32 v112, 1")
        self.barrier()
        if self.cfg.get("ts2"): self.ts("B3")
        for hd in range(2):
            for s_ in range(2):
                self.tr2(q, Reg("v", 80 + 8 * hd + 4 * s_), vKR, hd * 1280 + s_ * 320, 160, None)
        for hd in range(2):
            for s_ in range(2):
                self.mfma32(q, 48 + 16 * hd, V(80 + 8 * hd + 4 * s_, 4), V(96 + 8 * hd + 4 * s_, 4), s_ == 0)
        if self.cfg.get("gb3", "1") == "1":
            q.extend(self.dma_wgu(gi)); gi += 1
        to = Tok()
        for hd in range(2):
            b = 48 + 16 * hd
            q(f"v_add_f32 v{b + 8}, {f32(1e-6)}, v{b + 8}")
            q(f"v_rcp_f32 v{b + 8}, v{b + 8}")
            for i in range(0, 8, 2):
                q(f"v_pk_mul_f32 {V(b + i, 2)}, {V(b + i, 2)}, {V(b + 8, 2)} op_sel_hi:[1,0]")
            for i in range(0, 8, 2):
                q(f"v_cvt_pk_bf16_f32 v{b + 12 + i // 2}, v{b + i}, v{b + i + 1}")
        self.handoff(q, [f"buffer_store_dwordx4 v[60:63], {vL16}, {SWS}, {so} offen",
                         f"buffer_store_dwordx4 v[76:79], {vL16}, {SWS}, {so} offen offset:1024"], "o", to, L == 0 and self.cfg.get("wt0", "1") == "2")
        if self.cfg.get("ts2"): self.ts("ost")
        if L == 0:
            q(f"buffer_atomic_add v112, {vONE}, {SWS}, {sCNT} offen")
        q.extend(self.dma_wgu(gi)); gi += 1
        for k in range(16): q.extend(park(0, k))
        self.flag(q, sFO_ST, FO + L * 512, SWS, [to])
        for k in range(16): q.extend(park(1, k))
        self.gi = gi
        self.ts("o")

    def x_tail(self, t0, inst, final, extra=None):
        q = self.q
        for i in range(0, 16, 2):
            q(f"v_cvt_pk_bf16_f32 v{t0 + i // 2}, {XRES(i)}, {XRES(i + 1)}")
        if final:
            q(f"""
            buffer_store_dwordx4 {V(t0, 4)}, {vROW}, {SOUT}, {sOUTO} offen
            buffer_store_dwordx4 {V(t0 + 4, 4)}, {vROW}, {SOUT}, {sOUTO} offen offset:32
            """)
            return
        so = self.soff(q, sX_ST, self.x_base(inst) - self.x_base(0), sT1)
        tx = Tok()
        wt = inst == 0 and self.cfg.get("wt0", "1") == "2"
        self.handoff(q, [f"buffer_store_dwordx4 {V(t0, 4)}, {vL16}, {SWS}, {so} offen",
                         f"buffer_store_dwordx4 {V(t0 + 4, 4)}, {vL16}, {SWS}, {so} offen offset:1024"], "x", tx, wt)
        if self.cfg.get("ts2"): self.ts("xst")
        t = t0 + 8
        q(f"v_pk_add_f32 {V(t, 2)}, {XRES(0, 2)}, {XRES(2, 2)}")
        q(f"v_pk_mul_f32 {V(t + 2, 2)}, {XRES(0, 2)}, {XRES(0, 2)}")
        q(f"v_pk_fma_f32 {V(t + 2, 2)}, {XRES(2, 2)}, {XRES(2, 2)}, {V(t + 2, 2)}")
        for i in range(4, 16, 2):
            q(f"v_pk_add_f32 {V(t, 2)}, {V(t, 2)}, {XRES(i, 2)}")
            q(f"v_pk_fma_f32 {V(t + 2, 2)}, {XRES(i, 2)}, {XRES(i, 2)}, {V(t + 2, 2)}")
        q(f"""
        v_add_f32 v{t}, v{t}, v{t + 1}
        v_add_f32 v{t + 1}, v{t + 2}, v{t + 3}
        v_mov_b32 v{t + 2}, v{t}
        v_mov_b32 v{t + 3}, v{t + 1}
        v_lshrrev_b32 v{t + 4}, 5, {vLANE}
        v_lshl_add_u32 v{t + 4}, v{t + 4}, 28, {vL16}
        v_permlane32_swap_b32 v{t}, v{t + 2}
        v_permlane32_swap_b32 v{t + 1}, v{t + 3}
        v_pk_add_f32 {V(t, 2)}, {V(t, 2)}, {V(t + 2, 2)}
        """)
        so = self.soff(q, sST_ST, self.st_base(inst) - STAT_OFF, sT1)
        ts_ = Tok()
        self.handoff(q, [f"buffer_store_dwordx2 {V(t, 2)}, v{t + 4}, {SWS}, {so} offen"], "s", ts_, wt)
        self.flag(q, sFX_ST, inst * 512, SWS, [tx])
        if extra: q.extend(extra)
        self.flag(q, sFX_ST, inst * 512 + 1536, SWS, [ts_])

    def k2(self, L):
        q = self.q
        q(f"""
        v_and_b32 v14, 7, {vLANE}
        v_lshlrev_b32 v14, 2, v14
        s_lshl_b32 {sT0}, {sW}, 12
        s_add_u32 {sT0}, {sT0}, {R2}
        v_add_u32 v12, {sT0}, {vL16}
        v_xor_b32 v13, 0x2000, v12
        """)
        sb = self.soff(q, sO_LD, self.o_base(L) - self.o_base(0), sT2)
        self.poll("v14", SWS, sFO_PL, FO + L * 512)
        self.ts("fo")
        OF = Reg("v", 128)
        def ol(j):
            g = Seq()
            so = sb if j < 4 else sT1
            if j % 4 == 0 and j: g(f"s_add_u32 {sT1}, {sb}, {j * 1024}")
            g(f"buffer_load_dwordx4 {OF(4 * j, 4)}, {vL16}, {SWS}, {so} offen offset:{(j % 4) * 1024} sc1", wtag=("o", L, j))
            return g
        PRE = int(self.cfg.get("k2pre", 5))
        for j in range(PRE): q.extend(ol(j))
        gi = self.gi
        gs = []
        def mm(j, nt):
            self.mfma32(q, 48 + 16 * nt, PARK(8 * j + 4 * nt, 4), OF(4 * j, 4), j == 0,
                        rtags={1: ("wo", L, j, nt), 2: ("o", L, j)})
        TAIL = 3
        for j in range(16 - TAIL):
            mm(j, 1)
            if j + PRE < 16: q.extend(ol(j + PRE))
            elif gs: q.extend(gs.pop(0))
            mm(j, 0)
        for j in range(16 - TAIL, 16):
            mm(j, 1)
            if gs: q.extend(gs.pop(0))
        for j in range(16 - TAIL, 16): mm(j, 0)
        if self.cfg.get("ts2"): self.ts("k2main")
        for i in range(4):
            q(f"ds_write_b128 v12, {V(64 + 4 * i, 4)} offset:{i * 1024}")
        self.barrier()
        for i in range(4):
            q(f"ds_read_b128 {V(64 + 4 * i, 4)}, v13 offset:{i * 1024}")
        for i in range(0, 16, 2):
            q(f"v_pk_add_f32 {XRES(i, 2)}, {XRES(i, 2)}, {V(48 + i, 2)}")
        for i in range(0, 16, 2):
            q(f"v_pk_add_f32 {XRES(i, 2)}, {XRES(i, 2)}, {V(64 + i, 2)}")
        self.x_tail(48, L, False, extra=self.dma_wgu(gi)); gi += 1
        self.gi = gi
        self.ts("k2")

    def k3(self, L):
        q = self.q
        ACC = 48; XR = 176; NXR = 6
        acc = lambda mt, t: ACC + 64 * mt + 16 * t
        q(f"""
        v_and_b32 v12, 31, {vLANE}
        v_lshlrev_b32 v22, 3, v12
        v_lshlrev_b32 v12, 2, v12
        s_lshl_b32 {sT1}, {sW}, 5
        v_xor_b32 v13, {sT1}, {vTG}
        v_add_u32 v13, {R0}, v13
        v_xor_b32 v14, 32, v13
        v_xor_b32 v15, 64, v13
        v_xor_b32 v16, 96, v13
        v_add_u32 v18, {sW8K}, {vT128}
        v_xor_b32 v19, 64, v18
        v_add_u32 v20, {R2}, v18
        v_add_u32 v21, {R2}, v19
        s_lshl_b32 {sT1}, {sW}, 8
        s_add_u32 {sT1}, {sT1}, {CS3}
        v_add_u32 v22, {sT1}, v22
        s_lshl_b32 {sT1}, {sW}, 10
        v_add_u32 v24, {sT1}, {vL16}
        v_and_b32 v23, 7, {vLANE}
        v_min_u32 v23, 6, v23
        v_lshlrev_b32 v23, 2, v23
        """)
        if L == 0:
            q("v_mov_b32 v29, 0x3f803f80")
            for i in range(4): q(f"v_accvgpr_write_b32 a{204 + i}, v29")
        xb = self.soff(q, sX_LD3, self.x_base(L) - self.x_base(0), sT2)
        q(f"""
        v_lshrrev_b32 v29, 2, {vLANE}
        v_and_b32 v30, 0x30, {vL16}
        v_lshl_add_u32 v29, v29, 7, v30
        s_mul_i32 {sT0}, {sW}, {28 * 16384}
        s_lshl_b32 {sT1}, {sRQ}, 12
        s_add_u32 {sT0}, {sT0}, {sT1}
        s_cmp_ge_u32 {sI}, 28
        s_cselect_b64 vcc, -1, 0
        s_cselect_b32 {sT1}, {sT0}, {xb}
        s_cselect_b32 {sRG}, 16, 1
        s_cselect_b64 s[4:5], s[24:25], s[32:33]
        s_cselect_b32 s6, {'s26' if self.cfg.get('wdpf', '0') == '1' else '0'}, s34
        s_cselect_b32 {sT0}, 1, 16
        s_lshl_b32 {sRG}, {sRG}, 10
        s_lshl_b32 {sT0}, {sT0}, 11
        v_cndmask_b32 v25, {vL16}, v29, vcc
        v_add_u32 v17, {sT0}, v25
        v_lshrrev_b32 v29, 5, {vLANE}
        v_mul_u32_u24 v29, {HMT}, v29
        v_lshl_add_u32 v26, v12, 5, v29
        """)
        self.poll("v12", SWS, sFX_PL3, L * 512)
        self.ts("fx1")
        def xl(s_):
            g = Seq()
            if s_: g(f"s_add_u32 {sT1}, {sT1}, {sRG}")
            for mt in range(2):
                g(f"buffer_load_dwordx4 {V(XR + 8 * (s_ % NXR) + 4 * mt, 4)}, {'v25' if mt == 0 else 'v17'}, {SX}, {sT1} offen sc1",
                  wtag=("x1", L, s_, mt))
            return g
        for s_ in range(2): q.extend(xl(s_))
        q("s_barrier")
        if self.cfg.get("ts2"): self.ts("k3bar")
        def tr(f):
            s_, t = divmod(f, 4)
            g = Seq()
            if f == 32:
                for i in range(4): g(f"v_subrev_u32 v{13 + i}, {R0 - R1}, v{13 + i}")
            if f == 64:
                for i in range(4): g(f"v_add_u32 v{13 + i}, {R0 - R1}, v{13 + i}")
            c = s_ // 8
            off = (GU_BASE[c] - (R1 if c == 1 else R0)) + (s_ % 8) * 4096
            self.tr2(g, Reg("a", WRING.lo + 4 * (f % 6)), f"v{13 + t}", off, 512, ("Wgu", L, f))
            return g
        wd_t = [Tok() for _ in range(28)]
        NS = 7
        slot = lambda u: (R3 + (u % NS) * 2048) if u % NS < 4 else (R2 + (u % NS - 4) * 2048)
        park_tok = {}
        def wd_issue(u):
            g = Seq()
            if u >= NS: g.wait_tok(park_tok[u - NS])
            g.extend(self.dma_wd(u, slot(u), wd_t[u]))
            return g
        def wd_park(u):
            g = Seq()
            g.wait_tok(wd_t[u])
            lo = u % NS < 4
            if self.cfg.get("ab_park"):
                g = Seq(); g("s_nop 0"); park_tok[u] = Tok(); return g
            for nt in range(2):
                self.tr2(g, Reg("a", PARK.lo + 8 * u + 4 * nt), f"v{(18 if lo else 20) + nt}", slot(u) - (0 if lo else R2), 512, ("wd", L, u, nt))
            g[-1].tok = park_tok[u] = Tok()
            return g
        NMAIN = int(self.cfg.get("wd_main", 14))
        assert NMAIN <= 25
        gu_steps = {}
        rest = list(range(self.gi, 16))
        st = 1 if self.gi < 8 else 3
        assert self.gi >= 4
        for j in rest:
            if j >= 12: st = max(st, 9)
            assert st <= 8 * (j // 4) - 4, (j, st)
            gu_steps[st] = j
            st += 1 if j < 7 else 2
        free_steps = [s_ for s_ in range(3, 32) if s_ not in gu_steps and s_ not in (21, 22, 23, 24)]
        issue_at = {}
        for u in range(NMAIN): issue_at[free_steps[(u * len(free_steps)) // NMAIN]] = u
        LAG = int(self.cfg.get("wd_lag", 5))
        issued = 0; parked = 0
        for f in range(4): q.extend(tr(f))
        stw = Seq()
        C1 = -2.0 * math.sqrt(2.0 / math.pi) * LOG2E
        C2 = C1 * 0.044715
        for mt in range(2):
            b = 224 + 16 * mt
            self.stats_sum(stw, b)
            self.stats_finish(stw, b, b + 2, b + 8, False)
            stw(f"""
            v_mul_f32 v{b + 5}, v{b + 1}, v{b + 1}
            v_mul_f32 v{b + 4}, {f32(C1)}, v{b + 1}
            v_mul_f32 v{b + 5}, v{b + 5}, v{b + 1}
            v_mul_f32 v{b + 5}, {f32(C2)}, v{b + 5}
            """)
        stw = list(stw)
        xs = {0: [2, 3], 1: [4, 5], 2: [6, 7]}
        for s_ in range(3, 27): xs[s_] = [s_ + 5]
        for s_ in range(32):
            vm = []
            for k in xs.get(s_, []): vm += singles([xl(k)])
            if s_ in issue_at:
                vm += singles([wd_issue(issued)]); issued += 1
            if s_ in gu_steps: vm += singles([self.dma_wgu(gu_steps[s_])])
            if s_ == int(self.cfg.get("htch", 27)) and (L == 1 or self.cfg.get("h0wt", "1") != "1"):
                g = Seq(); g(f"buffer_load_dword v26, v26, {SWS3}, {sH_ST} offen sc1"); vm.append(g)
            if s_ == 14:
                g = Seq(); ldS = self.precheck(g, "v29", "v12", SWS, sFX_PL3, L * 512 + 1536); vm.append(g)
            if s_ in (21, 22, 23, 24):
                g = Seq(); k = s_ - 21
                if k == 0: self.confirm(g, "v29", ldS)
                so = self.soff(g, sST_LD3, self.st_base(L) - STAT_OFF + (k // 2) * 4096, sT0)
                for i in range(2):
                    g(f"buffer_load_dwordx4 {V(224 + 8 * k + 4 * i, 4)}, {vL16}, {SWS3}, {so} offen offset:{(2 * (k % 2) + i) * 1024} sc1")
                vm += singles([g])
            for t in range(4):
                f = 4 * s_ + t
                for mt in range(2):
                    self.mfma32(q, acc(mt, t), WRING(4 * (f % 6), 4), V(XR + 8 * (s_ % NXR) + 4 * mt, 4), s_ == 0,
                                rtags={1: ("Wgu", L, f), 2: ("x1", L, s_, mt)})
                    if mt == 0:
                        if vm: q.extend(vm.pop(0))
                        if t == 3:
                            while vm: q.extend(vm.pop(0))
                        if s_ >= 28:
                            for _ in range(4):
                                if stw: q.append(stw.pop(0))
                if L == 0 and t == 0:
                    q(f"v_mfma_f32_32x32x16_bf16 a[208:223], a[204:207], {WRING(4 * (f % 6), 4)}, {'0' if s_ == 0 else 'a[208:223]'}", rtags={2: ("Wgu", L, f)})
                if f + 4 == 32 and self.gi < 8:
                    q.wait_tok(*self.gu_t[4:8]); q("s_barrier")
                if f + 4 == 36 and not self.cfg.get("ab_bar"): q("s_barrier")
                if f + 4 == 64 and self.gi < 12 and not self.cfg.get("ab_bar"):
                    q.wait_tok(*self.gu_t[8:12]); q("s_barrier")
                if f + 4 == 96 and not self.cfg.get("ab_bar"):
                    q.wait_tok(*self.gu_t[12:16]); q("s_barrier")
                if f + 4 < 128: q.extend(tr(f + 4))
                if t == 1 and issued - parked > LAG:
                    q.extend(wd_park(parked)); parked += 1
                if self.cfg.get("ts2") and L == 1 and f in (3, 31, 63, 95): self.ts(f"k3f{f}")
                if self.cfg.get("ts3") and L == 1 and f % 16 == 15: self.ts(f"f{f}")
        q.extend(stw)
        self.ts("k3main")
        if L == 0:
            q("v_accvgpr_read_b32 v176, a208")
            self.cs_split(q, "v176", 178)
            q("ds_write_b64 v22, v[178:179]")
            self.barrier()
        q("v_xor_b32 v25, 1024, v24\nv_xor_b32 v12, 2048, v24\nv_xor_b32 v27, 3072, v24")
        for t in range(5):
            if t % 4: q(f"v_xor_b32 v29, {(t % 4) * 256}, v22")
            q(f"ds_read_b64 {V(176 + 2 * t, 2)}, {'v29' if t % 4 else 'v22'}")
        def corr(mt, t):
            g = Seq(); self.mfma32(g, acc(mt, t), V(176 + 2 * t, 4), V(224 + 16 * mt + 8, 4), False); return g
        def pump():
            nonlocal issued, parked
            g = []
            if issued < 28 and issued - parked >= NS - 1:
                g.append(wd_park(parked)); parked += 1
            if issued < 28:
                g += singles([wd_issue(issued)]); issued += 1
            return g
        hs = self.soff(q, sH_ST, self.h_base(L) - H_OFF, "s76")
        th = [Tok(), Tok()]
        q.extend(corr(0, 0)); q.extend(corr(0, 1))
        for g in pump() + pump(): q.extend(g)
        for n in range(8):
            mt, t = divmod(n, 4)
            b = 224 + 16 * mt
            if n == 4:
                q(f"s_add_u32 s76, {hs}, {HMT}"); hs = "s76"
            a = acc(mt, t); T = 208
            e = Seq()
            for i in range(0, 8, 2):
                e(f"v_pk_mul_f32 {V(T + i, 2)}, {V(a + i, 2)}, {V(a + i, 2)}")
            for i in range(0, 8, 2):
                e(f"v_pk_fma_f32 {V(T + i, 2)}, {V(T + i, 2)}, {V(b + 4, 2)}, {V(b + 4, 2)} op_sel:[0,1,0] op_sel_hi:[1,1,0]")
            for i in range(0, 8, 2):
                e(f"v_pk_mul_f32 {V(T + i, 2)}, {V(T + i, 2)}, {V(a + i, 2)}")
            if n + 2 < 8: e.extend(corr(*divmod(n + 2, 4)))
            for i in range(8):
                e(f"v_exp_f32 v{T + i}, v{T + i}")
            for i in range(0, 8, 2):
                e(f"v_pk_mul_f32 {V(a + i, 2)}, {V(a + i, 2)}, {V(a + 8 + i, 2)}")
            for i in range(0, 8, 2):
                e(f"v_pk_fma_f32 {V(T + i, 2)}, {V(T + i, 2)}, {V(b + 2, 2)}, {V(b + 2, 2)} op_sel_hi:[1,0,0]")
            for i in range(8):
                e(f"v_rcp_f32 v{T + i}, v{T + i}")
            for i in range(0, 8, 2):
                e(f"v_pk_mul_f32 {V(a + i, 2)}, {V(a + i, 2)}, {V(T + i, 2)}")
            for i in range(0, 8, 2):
                e(f"v_cvt_pk_bf16_f32 v{a + 8 + i // 2}, v{a + i}, v{a + i + 1}")
            its = pump()
            if n < 6 and issued < 28: its += pump()
            if n == 7:
                assert issued == 28
                g = Seq(); self.ldA = self.precheck(g, "v17", "v23", SWS, sFH_PL, L * 1024); its.append(g)
            q.extend(spread(e, its, 0.1, 0.9))
            stl = f"buffer_store_dwordx4 {V(a + 8, 4)}, v{[24, 25, 12, 27][t]}, {SWS3}, {hs} offen"
            if L == 0 and self.cfg.get("h0wt", "1") == "1": q(stl + " sc1", tok=th[mt])
            else: q.dual_store([stl], uid("h"), tok=th[mt])
            if n == int(self.cfg.get("fa0" if L == 0 else "fa1", 6 if L == 0 else 4)): self.flag(q, sFH_ST, L * 1024, SWS3, [th[0]])
        self.late_parks = [wd_park(u) for u in range(parked, 28)]
        self.th_b = th[1]
        self.ts("k3")

    def k4(self, L):
        q = self.q
        ACC = 48; HR = 112; NH = 36
        hb = self.soff(q, sH_LD, self.h_base(L) - H_OFF, sT2)
        q(f"v_add_u32 v22, {HMT}, {vL16}")
        self.confirm(q, "v17", self.ldA)
        self.ts("fh")
        order = [(mt, u) for mt in range(2) for u in range(28)]
        def hl(n):
            mt, u = order[n]
            g = Seq()
            if u % 4 == 0: g(f"s_add_u32 {sT1}, {hb}, {u * 1024}")
            g(f"buffer_load_dwordx4 {V(HR + 4 * (n % NH), 4)}, {vL16 if mt == 0 else 'v22'}, {SWS}, {sT1} offen offset:{(u % 4) * 1024} sc1", wtag=("h", L, n))
            return g
        PRE = int(self.cfg.get("k4pre", 8))
        for n in range(PRE): q.extend(hl(n))
        if self.cfg.get("ts4"): self.ts("pre")
        self.flag(q, sFH_ST, L * 1024 + 128, SWS3, [self.th_b])
        if self.cfg.get("ts4"): self.ts("flagB")
        su = Seq()
        su(f"""
        s_and_b32 {sT0}, {sW}, 2
        s_lshl_b32 {sT0}, {sT0}, 14
        s_and_b32 s76, {sW}, 1
        s_lshl_b32 s76, s76, 12
        s_add_u32 {sT0}, {sT0}, s76
        v_add_u32 v12, {sT0}, {vL16}
        v_xor_b32 v13, 0x5000, v12
        v_xor_b32 v14, 0xa000, v12
        v_xor_b32 v15, 0xf000, v12
        s_lshl_b32 {sT0}, {sW}, 14
        v_add_u32 v16, {sT0}, {vL16}
        """)
        su = list(su)
        wk = [Tok() for _ in range(8)]
        pk = singles([self.dma_packed(j, wk[j]) for j in range(8)]) if L == 0 else []
        def wr(bk): return [f"ds_write_b128 v{12 + bk}, {V(ACC + 16 * bk + 4 * i, 4)} offset:{i * 1024}" for i in range(4)]
        def ad(bk): return [f"v_pk_add_f32 {XRES(i, 2)}, {XRES(i, 2)}, {V(ACC + 16 * bk + i, 2)}" for i in range(0, 16, 2)]
        odd = f"s_bitcmp1_b32 {sW}, 0"
        TAIL = 3
        def mm(n, nt):
            mt, u = order[n]
            self.mfma32(q, ACC + 16 * (2 * nt + mt), PARK(8 * u + 4 * nt, 4), V(HR + 4 * (n % NH), 4), u == 0,
                        rtags=None if self.cfg.get("ab_park") else {1: ("wd", L, u, nt), 2: ("h", L, n)})
        for n in range(56 - TAIL):
            mm(n, 1)
            if n == 28 - PRE - 6: ldB = self.precheck(q, "v17", "v23", SWS, sFH_PL, L * 1024 + 128)
            if n + PRE == 28: self.confirm(q, "v17", ldB)
            if n + PRE < 56: q.extend(hl(n + PRE))
            elif pk: q.extend(pk.pop(0))
            mm(n, 0)
            if su: q.append(su.pop(0))
            if n >= 2 and self.late_parks: q.extend(self.late_parks.pop(0))
            if self.cfg.get("ts4") and n in (0, 7, 15, 19, 23, 27, 35, 43): self.ts(f"n{n}")
            if n == 24: self.barrier()
            if n == 26 and L == 0:
                q(f"s_add_u32 {sT0}, {sKV}, {KV_OFF + KV_CNT}\nv_mov_b32 v18, 0")
                cnt_ld = self.precheck(q, "v19", "v18", SWS, sT0)
            if n == 40 and L == 0:
                D = uid("L_done")
                q.raw(self._cmp("v19", "16") + f"s_nop 1\ns_cbranch_vccz {D}\n" + self._loop(cnt_ld, "v19", "16", D) + f"{D}:\n", writes={"v19", "v29"})
            if n == 30 and L == 0: q(f"buffer_load_dword {vP}, {vTCH}, {SWS}, 0 offen sc1")
            if n in (32, 33, 34, 35): q(wr(2)[n - 32])
            if n == 38: q.alt(odd, ad(0), wr(0) + ["s_nop 0"] * 4, uid("a"))
        for n in range(56 - TAIL, 56):
            mm(n, 1)
            if pk: q.extend(pk.pop(0))
        for n in range(56 - TAIL, 56): mm(n, 0)
        self.ts("k4main")
        for l in wr(3): q(l)
        q.alt(odd, wr(1) + ["s_nop 0"] * 4, ad(1), uid("a"))
        for _ in range(4):
            if pk: q.extend(pk.pop(0))
        q("s_waitcnt lgkmcnt(0)")
        q("s_barrier")
        for d in range(1, 4):
            for i in range(4):
                q(f"ds_read_b128 {V(48 + 16 * d + 4 * i, 4)}, v16 offset:{d * 4096 + i * 1024}")
        for d in range(1, 4):
            for l in ad(d): q(l)
        ex = Seq()
        for g in pk: ex.extend(g)
        self.x_tail(48, 2, L == 1, extra=ex)
        self.ts("k4")

    def build(self):
        q = self.q
        self.prologue()
        self.k1_first(); self.k1_rest(0); self.k2(0); self.k3(0); self.k4(0)
        self.k1_second(); self.k1_rest(1); self.k2(1); self.k3(1); self.k4(1)
        if self.cfg["ts"]:
            q.wait_vm0()
            q(f"""
            s_memrealtime s[76:77]
            s_lshl3_add_u32 {sT0}, {sI}, {sG}
            s_lshl2_add_u32 {sT0}, {sT0}, {sW}
            s_lshl_b32 {sT0}, {sT0}, 8
            s_add_u32 {sT0}, {sT0}, {TS_OFF}
            v_writelane_b32 {vTS}, {sMODE}, 62
            v_writelane_b32 {vTS}, {sBUD}, 63
            v_writelane_b32 {vTS}, s76, 61
            v_lshlrev_b32 v12, 2, {vLANE}
            buffer_store_dword {vTS}, v12, {SWS}, {sT0} offen
            """)
        if self.cfg.get("dbgts"):
            idx = [int(x) for x in self.cfg["dbgts"].split("-")]
            q(f"v_readlane_b32 {sT1}, {vTS}, 0")
            for j, k in enumerate(idx):
                q(f"v_readlane_b32 {sT2}, {vTS}, {k}\ns_sub_u32 {sT2}, {sT2}, {sT1}\nv_writelane_b32 v13, {sT2}, {j}")
            q(f"""
            s_lshl3_add_u32 {sT0}, {sI}, {sG}
            s_lshl2_add_u32 {sT0}, {sT0}, {sW}
            s_cmp_eq_u32 {sT0}, {int(self.cfg.get("dbgw", 0))}
            s_cselect_b32 {sT0}, 0, 0x10000
            v_lshrrev_b32 v14, 4, {vLANE}
            v_lshl_add_u32 v12, v14, 20, v12
            v_add_u32 v12, {sT0}, v12
            buffer_store_dword v13, v12, {SDBG}, 0 offen
            """)
        (main, ool), seq = finalize(q, sMODE)
        hdr = open("interleave_layers__linear_kernel_hedgehog__geglu_ffn__prompt.s.ref").read().split("; Override")[0]
        out = [hdr.rstrip(), f"; @launch grid=(256,1,1) block=(256,1,1) lds={LDS_BYTES}",
               '.amdgcn_target "amdgcn-amd-amdhsa--gfx950"', ".text", f".globl {KNAME}", ".p2align 8",
               f".type {KNAME},@function", f"{KNAME}:", main, "L_end:", "    s_endpgm", ool, "L_last:", "    s_endpgm",
               '.section .rodata,"a"', ".p2align 6", f".amdhsa_kernel {KNAME}",
               "  .amdhsa_next_free_vgpr 512", "  .amdhsa_next_free_sgpr 102", "  .amdhsa_accum_offset 256",
               "  .amdhsa_group_segment_fixed_size 0", "  .amdhsa_kernarg_size 88", "  .amdhsa_user_sgpr_count 2",
               "  .amdhsa_user_sgpr_kernarg_segment_ptr 1", "  .amdhsa_system_sgpr_workgroup_id_x 1",
               "  .amdhsa_float_denorm_mode_32 3", "  .amdhsa_float_denorm_mode_16_64 3",
               ".end_amdhsa_kernel", ""]
        return "\n".join(out)


if __name__ == "__main__":
    cfg = dict(CFG)
    out = sys.argv[1]
    for a in sys.argv[2:]:
        k, v = a.split("=")
        cfg[k] = {"0": False, "1": True}.get(v, v) if k in CFG else v
    g = Gen(cfg)
    txt = g.build()
    open(out, "w").write(txt)
    if cfg["ts"]:
        open(out + ".tsnames", "w").write("\n".join(g.tsnames))
```

```python
import re

TRANS = ("v_exp_f32", "v_log_f32", "v_rcp_f32", "v_rsq_f32", "v_sqrt_f32", "v_sin_f32", "v_cos_f32")
_reg1 = re.compile(r"^-?(?:abs\()?([vas])(\d+)\)?$")
_regN = re.compile(r"^-?([vas])\[(\d+):(\d+)\]$")


def regs_of(tok):
    tok = tok.strip()
    m = _reg1.match(tok)
    if m:
        return [m.group(1) + m.group(2)]
    m = _regN.match(tok)
    if m:
        return [m.group(1) + str(i) for i in range(int(m.group(2)), int(m.group(3)) + 1)]
    if tok in ("vcc", "vcc_lo", "vcc_hi"):
        return ["vcc"]
    if tok == "exec":
        return ["exec"]
    if tok == "m0":
        return ["m0"]
    return []


def R(kind, lo, n=1):
    return f"{kind}{lo}" if n == 1 else f"{kind}[{lo}:{lo + n - 1}]"


def V(lo, n=1): return R("v", lo, n)
def A(lo, n=1): return R("a", lo, n)
def S(lo, n=1): return R("s", lo, n)


class Reg:
    def __init__(self, f, lo):
        self.f = f; self.lo = lo
    def __call__(self, off=0, n=1):
        return R(self.f, self.lo + off, n)


class Inst:
    __slots__ = ("text", "kind", "reads", "writes", "ops", "mn", "wtag", "rtags", "tok", "passes", "states", "slow")

    def __init__(self, text, kind, reads=(), writes=(), ops=(), mn=""):
        self.text = text; self.kind = kind
        self.reads = set(reads); self.writes = set(writes)
        self.ops = ops; self.mn = mn
        self.wtag = None; self.rtags = None; self.tok = None
        self.passes = 0; self.states = 1; self.slow = None


class Tok:
    def __init__(self, name=""):
        self.name = name


def parse(text):
    t = text.split(";")[0].strip()
    parts = t.split(None, 1)
    mn = parts[0]
    rest = parts[1] if len(parts) > 1 else ""
    ops = [o.strip() for o in rest.split(",")] if rest else []
    mods = []
    if ops:
        last = ops[-1].split()
        ops[-1] = last[0] if last else ""
        mods = last[1:]
    clean = []
    for o in ops:
        w = o.split()
        clean.append(w[0] if w else "")
        if len(w) > 1:
            mods += w[1:]
    ops = clean
    rd, wr = set(), set()
    allr = lambda xs: set(r for x in xs for r in regs_of(x))
    if mn.startswith("v_mfma"):
        i = Inst(text, "mfma", allr(ops[1:4]), allr(ops[:1]), ops, mn)
        i.passes = 8 if "32x32x16" in mn else 4
        assert "32x32x16" in mn or "16x16x32" in mn, mn
        return i
    if mn.startswith("v_cmp"):
        return Inst(text, "valu", allr(ops[1:]) | {"exec"}, allr(ops[:1]), ops, mn)
    if mn.startswith("v_readfirstlane") or mn.startswith("v_readlane"):
        return Inst(text, "valu", allr(ops[1:]), allr(ops[:1]), ops, mn)
    if mn.startswith("v_permlane"):
        return Inst(text, "valu", allr(ops[:2]), allr(ops[:2]), ops, mn)
    if mn.startswith("v_"):
        rd = allr(ops[1:])
        if mn.startswith(("v_fmac", "v_dot2c", "v_pk_fmac")):
            rd |= allr(ops[:1])
        return Inst(text, "trans" if mn.replace("_e32", "").replace("_e64", "") in TRANS else "valu", rd, allr(ops[:1]), ops, mn)
    if mn.startswith("s_load") or mn in ("s_memtime", "s_memrealtime"):
        return Inst(text, "smem", allr(ops[1:]), allr(ops[:1]), ops, mn)
    if mn == "s_nop":
        i = Inst(text, "nop", ops=ops, mn=mn); i.states = int(ops[0]) + 1
        return i
    if mn == "s_waitcnt":
        return Inst(text, "wait", ops=ops, mn=mn)
    if mn in ("s_barrier", "s_sleep", "s_setprio", "s_endpgm"):
        return Inst(text, "misc", ops=ops, mn=mn)
    if mn.startswith("s_cbranch") or mn == "s_branch":
        rd = {"vcc"} if "vcc" in mn else ({"exec"} if "exec" in mn else ({"scc"} if "scc" in mn else set()))
        return Inst(text, "branch", rd, (), ops, mn)
    if mn.startswith("s_cmp") or mn.startswith("s_bitcmp"):
        return Inst(text, "salu", allr(ops), {"scc"}, ops, mn)
    if mn.startswith("s_"):
        rd = allr(ops[1:]); wr = allr(ops[:1])
        if "saveexec" in mn:
            rd |= {"exec"}; wr |= {"exec"}
        if mn.startswith(("s_addk", "s_mulk")):
            rd |= wr
        if not mn.startswith(("s_mov", "s_getreg", "s_getpc", "s_cselect", "s_mul_i32", "s_mul_hi", "s_movk")):
            wr = wr | {"scc"}
        if mn.startswith(("s_cselect", "s_addc", "s_subb")):
            rd |= {"scc"}
        return Inst(text, "salu", rd, wr, ops, mn)
    if mn.startswith("buffer_load") or mn.startswith("global_load"):
        if "lds" in mods:
            return Inst(text, "dma", allr(ops) | {"m0"}, (), ops, mn)
        return Inst(text, "vload", allr(ops[1:]), allr(ops[:1]), ops, mn)
    if mn.startswith("buffer_store") or mn.startswith("buffer_atomic") or mn.startswith("global_store"):
        return Inst(text, "vstore", allr(ops), (), ops, mn)
    if mn.startswith("ds_read") or mn.startswith("ds_bpermute"):
        return Inst(text, "dsread", allr(ops[1:]), allr(ops[:1]), ops, mn)
    if mn.startswith("ds_write") or mn.startswith("ds_add"):
        return Inst(text, "dswrite", allr(ops), (), ops, mn)
    raise ValueError("cannot classify: " + text)


class Seq(list):
    def __call__(self, text, wtag=None, rtags=None, tok=None):
        for line in text.strip().split("\n"):
            line = line.strip()
            if not line or line.startswith(";"):
                continue
            i = parse(line)
            i.wtag = wtag; i.rtags = rtags; i.tok = tok
            self.append(i)
        return self[-1]

    def label(self, name):
        i = Inst(name + ":", "label"); i.states = 0
        self.append(i)

    def comment(self, text):
        i = Inst("; " + text, "comment"); i.states = 0
        self.append(i)

    def wait_tok(self, *toks):
        i = Inst("", "waittok"); i.tok = list(toks); i.states = 0
        self.append(i)

    def wait_vm0(self):
        i = Inst("", "waitvm0"); i.states = 0
        self.append(i)

    def wait_lgkm0(self):
        i = Inst("", "waitlgkm0"); i.states = 0
        self.append(i)

    def raw(self, lines, drains_vm=False, drains_lgkm=False, writes=()):
        i = Inst(lines, "raw", (), writes)
        i.ops = (drains_vm, drains_lgkm)
        self.append(i)

    def alt(self, cond, lines_a, lines_b, name):
        i = Inst("", "dualbegin"); i.mn = name; i.states = 2; i.text = cond
        self.append(i)
        for la, lb in zip(lines_a, lines_b):
            a = self(la)
            if lb is None:
                a.slow = "; -"; continue
            b = parse(lb)
            assert a.kind == b.kind or "nop" in (a.kind, b.kind) or {a.kind, b.kind} <= {"valu", "dswrite"}, (la, lb)
            a.reads |= b.reads; a.writes |= b.writes; a.slow = lb
        j = Inst("", "dualend"); j.mn = name; j.states = 0
        self.append(j)

    def dual_store(self, fast_lines, name, tok=None):
        i = Inst("", "dualbegin"); i.mn = name; i.states = 2
        self.append(i)
        out = []
        for l in fast_lines:
            out.append(self(l, tok=tok))
            out[-1].slow = l + " sc1"
        j = Inst("", "dualend"); j.mn = name; j.states = 0
        self.append(j)
        return out


def cost(i):
    if i.kind in ("label", "comment", "waittok", "waitvm0", "waitlgkm0", "dualend"): return 0
    if i.kind == "mfma": return 4 * i.passes
    if i.kind == "trans" or i.mn.startswith("v_permlane"): return 8
    return 4


def spread(base, items, lo=0.0, hi=1.0):
    items = [g for g in items if len(g)]
    tot = sum(cost(i) for i in base)
    out = Seq(); t = 0; k = 0; n = len(items); inside = False
    for i in base:
        while not inside and k < n and t >= tot * (lo + (hi - lo) * (k / n if n > 1 else 0)):
            out.extend(items[k]); k += 1
        if i.kind == "dualbegin": inside = True
        if i.kind == "dualend": inside = False
        out.append(i); t += cost(i)
    while k < n:
        out.extend(items[k]); k += 1
    return out


def singles(groups):
    out = []
    for g in groups:
        cur = Seq()
        for i in g:
            cur.append(i)
            if i.kind in ("dma", "vload", "vstore"):
                out.append(cur); cur = Seq()
        if len(cur):
            if out: out[-1].extend(cur)
            else: out.append(cur)
    return out


def weave(main, fillers, every=None):
    out = Seq()
    n = len(main); m = len(fillers)
    k = 0
    for i, g in enumerate(main):
        out.extend(g)
        tgt = (m * (i + 1)) // n
        while k < tgt:
            out.extend(fillers[k]); k += 1
    return out


def insert_waits(seq):
    out = Seq()
    vm = []
    lg = []

    def need(q, pred):
        for idx in range(len(q) - 1, -1, -1):
            if pred(q[idx]):
                return len(q) - 1 - idx
        return None

    def emit_wait(nv, nl):
        nonlocal vm, lg
        parts = []
        if nv is not None:
            n = min(nv, 62)
            parts.append(f"vmcnt({n})")
            vm = vm[len(vm) - n:] if n else []
        if nl is not None:
            if any(e[2] for e in lg):
                nl = 0
            n = min(nl, 14)
            parts.append(f"lgkmcnt({n})")
            lg = lg[len(lg) - n:] if n else []
        if parts:
            out("s_waitcnt " + " ".join(parts))

    for i in seq:
        if i.kind == "waittok":
            toks = i.tok
            nv = need(vm, lambda e: e[1] in toks); nl = need(lg, lambda e: e[1] in toks)
            emit_wait(nv, nl); continue
        if i.kind == "waitvm0":
            if vm: emit_wait(0, None)
            continue
        if i.kind == "waitlgkm0":
            if lg: emit_wait(None, 0)
            continue
        if i.kind == "raw":
            touched = i.writes
            nv = need(vm, lambda e: e[0] & touched); nl = need(lg, lambda e: e[0] & touched)
            emit_wait(nv, nl)
            out.append(i)
            if i.ops[0]: vm = []
            if i.ops[1]: lg = []
            continue
        if i.kind == "wait":
            m = re.search(r"vmcnt\((\d+)\)", i.text)
            if m:
                n = int(m.group(1)); vm = vm[max(0, len(vm) - n):] if n else []
            m = re.search(r"lgkmcnt\((\d+)\)", i.text)
            if m:
                n = int(m.group(1)); lg = lg[max(0, len(lg) - n):] if n else []
            out.append(i); continue
        touched = i.reads | i.writes
        nv = need(vm, lambda e: e[0] & touched); nl = need(lg, lambda e: e[0] & touched)
        emit_wait(nv, nl)
        out.append(i)
        if i.kind in ("vload", "dma", "vstore"):
            vm.append((set(i.writes), i.tok))
            if len(vm) > 63: vm = vm[-63:] if False else vm
        elif i.kind in ("dsread", "dswrite"):
            lg.append((set(i.writes), i.tok, False))
        elif i.kind == "smem":
            lg.append((set(i.writes), i.tok, True))
    return out


def _is_valu(i): return i.kind in ("valu", "trans")
def _is_mem(i): return i.kind in ("vload", "dma", "vstore", "dsread", "dswrite")
def _vregs(s): return set(r for r in s if r[0] in "va" and r != "vcc")
def _sregs(s): return set(r for r in s if r[0] == "s" and r != "scc") | (s & {"vcc"})


def required_gap(p, c):
    g = 0
    if p.kind == "mfma":
        D = p.writes
        big = p.passes == 8
        if c.kind == "mfma":
            ca = set(regs_of(c.ops[1])) | set(regs_of(c.ops[2])); cc = set(regs_of(c.ops[3]))
            if D & ca: g = max(g, 12 if big else 8)
            if D & cc and not (cc == D and c.passes == p.passes): g = max(g, 10 if big else 6)
            if D & c.writes and not (D & cc): g = max(g, 12 if big else 8)
        elif _is_valu(c) or _is_mem(c):
            if D & (c.reads | c.writes): g = max(g, 12 if big else 8)
        if _is_valu(c) or c.kind in ("vload", "dsread"):
            pc = set(regs_of(p.ops[3]))
            if pc & c.writes: g = max(g, 7 if big else 3)
        return g
    if _is_valu(p):
        vw = _vregs(p.writes); sw = _sregs(p.writes)
        if c.kind == "mfma" and vw & c.reads: g = max(g, 2)
        if c.kind == "mfma" and "exec" in p.writes: g = max(g, 4)
        if _is_valu(c):
            if c.mn.startswith("v_permlane") and vw & c.reads: g = max(g, 2)
            if c.mn.startswith(("v_readfirstlane", "v_readlane")) and vw & c.reads: g = max(g, 1)
            if "dpp" in c.text or "row_" in c.text or "quad_perm" in c.text:
                if vw & c.reads: g = max(g, 2)
            if p.kind == "trans" and c.kind != "trans" and vw & c.reads: g = max(g, 1)
            if p.kind == "trans" and c.kind == "trans" and vw & c.reads: g = max(g, 1)
            if sw & c.reads: g = max(g, 2)
            if p.mn.startswith("v_dot2") and vw & (c.reads | c.writes):
                same = c.mn == p.mn and not (vw & set(r for o in c.ops[1:3] for r in regs_of(o)))
                if not same: g = max(g, 3)
            if "op_sel" in p.text and not p.mn.startswith("v_pk_") and vw & (c.reads | c.writes): g = max(g, 1)
        if p.mn.startswith("v_dot2") and not _is_valu(c) and vw & (c.reads | c.writes): g = max(g, 3)
        if c.kind in ("vload", "dma", "vstore") and sw & c.reads: g = max(g, 5)
        if c.kind in ("salu", "branch") and sw & c.reads: g = max(g, 1)
        if p.kind == "trans" and _is_mem(c) and vw & c.reads: g = max(g, 1)
        return g
    if p.kind == "salu":
        if "m0" in p.writes and c.kind == "dma": g = max(g, 1)
        if "exec" in p.writes and (c.kind == "mfma"): g = max(g, 1)
        return g
    if p.kind == "vstore" and ("x4" in p.mn or "x3" in p.mn):
        data = set(regs_of(p.ops[0]))
        if data & c.writes: g = max(g, 2)
        return g
    return g


def insert_nops(seq):
    out = Seq()
    for c in seq:
        if c.kind in ("label", "comment", "dualend"):
            out.append(c); continue
        if c.kind in ("raw", "dualbegin"):
            out.append(c); continue
        dist = 0; need = 0
        after_mfma = None
        for p in reversed(out):
            if dist >= 20: break
            if p.kind in ("label", "raw", "dualbegin", "dualend", "branch"): after_mfma = None
            if p.kind == "mfma":
                if after_mfma is not None: dist = max(dist, after_mfma + p.passes)
                after_mfma = dist
            if p.kind not in ("label", "comment", "nop", "wait", "misc", "branch", "raw", "dualbegin", "dualend"):
                g = required_gap(p, c)
                if g - dist > need: need = g - dist
            dist += p.states
        while need > 0:
            k = min(need, 16)
            out(f"s_nop {k - 1}"); need -= k
        out.append(c)
    return out


def check_tags(seq):
    tags = {}
    for i in seq:
        if i.rtags:
            for opi, tag in i.rtags.items():
                for k, r in enumerate(regs_of(i.ops[opi])):
                    got = tags.get(r)
                    if got != tag:
                        raise AssertionError(f"tag mismatch at '{i.text}': {r} holds {got}, expected {tag}")
        for r in i.writes:
            tags[r] = i.wtag


def render(seq, s_mode):
    main = []; ool = []
    cur = None
    for i in seq:
        if i.kind == "dualbegin":
            main.append("    " + (i.text or f"s_cmp_lg_u32 {s_mode}, 0"))
            main.append(f"    s_cbranch_scc1 L_slow_{i.mn}")
            inline = bool(i.text)
            side = [] if inline else ool
            side.append(f"L_slow_{i.mn}:")
            cur = i.mn
            continue
        if i.kind == "dualend":
            if inline:
                main.append(f"    s_branch L_ret_{i.mn}")
                main.extend(side)
                main.append(f"L_ret_{i.mn}:")
            else:
                main.append(f"L_ret_{i.mn}:")
                ool.append("    s_nop 1")
                ool.append(f"    s_branch L_ret_{i.mn}")
            cur = None
            continue
        if i.kind == "label":
            main.append(i.text); continue
        if i.kind == "raw":
            main.extend("    " + l.strip() if not l.strip().endswith(":") else l.strip() for l in i.text.strip().split("\n"))
            continue
        main.append("    " + i.text)
        if cur is not None:
            side.append("    " + (i.slow or i.text))
    return "\n".join(main), "\n".join(ool)


def finalize(seq, s_mode):
    check_tags(seq)
    seq = insert_waits(seq)
    seq = insert_nops(seq)
    return render(seq, s_mode), seq


import subprocess, tempfile, os
_PROMOTE = ("v_exp_f32", "v_rcp_f32", "v_rsq_f32", "v_mul_f32", "v_add_f32", "v_sub_f32", "v_max_f32", "v_mov_b32",
            "v_and_b32", "v_xor_b32", "v_or_b32", "v_lshlrev_b32", "v_lshrrev_b32", "v_add_u32", "v_min_u32")

def align_runs(text, minrun=4, nop_run=7):
    lines = text.split("\n")
    with tempfile.TemporaryDirectory() as d:
        open(d + "/a.s", "w").write(text)
        subprocess.run(["clang", "-x", "assembler", "-target", "amdgcn-amd-amdhsa", "-mcpu=gfx950", "-c", d + "/a.s", "-o", d + "/a.o"], check=True)
        dis = subprocess.run(["llvm-objdump", "-d", "--mcpu=gfx950", d + "/a.o"], capture_output=True, text=True).stdout
    sizes = [4 * len(l.split("//")[1].split(":")[1].split("<")[0].split()) for l in dis.split("\n") if "//" in l and l.startswith("\t")]
    idx = [k for k, l in enumerate(lines) if l.startswith("    ") and l.strip() and not l.strip().startswith((";", "."))]
    assert len(idx) == len(sizes), (len(idx), len(sizes))
    off = 0; nprom = nnop = 0
    slow = lambda k: lines[idx[k]].split()[0].startswith(("v_mfma", "buffer_", "ds_write"))
    for k in range(len(idx)):
        if sizes[k] == 8 and off % 8 == 4 and k and (sizes[k - 1] == 4 or slow(k - 1)) and not slow(k):
            run = 0
            while k + run < len(idx) and sizes[k + run] == 8 and not slow(k + run): run += 1
            j = k - 1
            while j > 0 and sizes[j] == 8 and k - j < 4: j -= 1
            cand = None
            while j > 0 and sizes[j] == 4 and k - j < 8:
                if lines[idx[j]].split()[0] in _PROMOTE: cand = j; break
                j -= 1
            if run >= minrun and cand is not None:
                prev = lines[idx[cand]]; mn = prev.split()[0]
                lines[idx[cand]] = prev.replace(mn, mn + "_e64", 1); sizes[cand] = 8; off += 4; nprom += 1
            elif run >= nop_run:
                lines[idx[k]] = "    s_nop 0\n" + lines[idx[k]]; off += 4; nnop += 1
        off += sizes[k]
    return "\n".join(lines), nprom, nnop
```

```python
import sys, struct, math
from dsl import *

KNAME = "interleave_layers__linear_kernel_hedgehog__geglu_ffn__prompt_kernel"
CFG = dict(ts=False, force_slow=False, reuse=True)

KV_OFF = 0; KV_HP = 12288
KV_L = 5120; KV_CNT = 10240; KV_CS = 11264
FLG_OFF = 0x30000; FLG_G = 8192
FO, FX, FH, FREG = 0, 1024, 4096, 7680
STAT_OFF = 0x40000
O_OFF = 0x100000; X1_OFF = 0x500000; X2_OFF = 0x900000; H_OFF = 0xB00000; H_L = 0x700000
HMT = 112 * 1024
TS_OFF = 0x1900000
WQP_OFF = 0x1A00000
FST_OFF = 0x1B80000
FF = 6144
WS_SIZE = 0x1C00000
OOB = 0x7000000

R3, R1, R0, R2 = 0, 32768, 65536, 131072
CS1 = 163840 - 2048
CS3 = 163840 - 1024
PH_S = 208
KVB = R2 + 27648
LDS_BYTES = 163840
GU_BASE = [R0, R1, R0 + 32768, R0]

SX, SQKV, SWO, SWG, SWU, SWD, SOUT, SWS, SWS3, SDBG, SPHI = [S(4 + 4 * i, 4) for i in range(11)]
(sW, sG, sI, sHP, sRB, sCT, sRQ, sMODE, sBUD, sT0, sT1, sT2, sMT1, sMT2, sFLG, sKV, sADD,
 sQKVO, sGUO, sWDO, sWOO, sW2K, sW8K, sR4K, sPART, sQO, sWQP) = [S(48 + i) for i in range(27)]
sOUTO = S(75)
sE0 = S(76, 2)
(sO_ST, sFO_ST, sFO_PL, sO_LD, sX_ST, sST_ST, sFX_ST, sFX_PL3, sFX_PL1, sX_LD3, sX_LD1, sST_LD3,
 sST_LD1, sH_ST, sFH_ST, sFH_PL, sH_LD, sAT) = [S(78 + i) for i in range(18)]
sTS = S(96, 2)
sCNT, sKVL = S(98), S(99)
sFB = sCT
sCSG = S(47)
sD, sRH, sRW = S(0), S(1), S(2)

vL16, vT64, vT128, vTG, vDQ, vD128, vDG, vROW, vLANE = [V(1 + i) for i in range(9)]
vD128b, vDU = V(10), V(11)
vONE = V(28)
vP = V(30); vTS = V(31)
vTCH = V(0)
XRES = Reg("v", 32)
WRING = Reg("a", 224)
WPHI = Reg("a", 248)
PARK = Reg("a", 0)
(vKVT, vCS, vPW16, vPW32, vKA, vKB, vL4, vUN0, vWQ, vWO0, vWO1, vUN1, vUN2, vKW1, vKW2, vKR) = [V(12 + i) for i in range(16)]

LOG2E = 1.4426950408889634
def f32(x): return "0x%08x" % struct.unpack("<I", struct.pack("<f", x))[0]

_uid = [0]
def uid(p):
    _uid[0] += 1
    return f"{p}{_uid[0]}"


class Gen:
    def __init__(self, cfg):
        self.cfg = cfg
        self.q = Seq()
        self.nts = 0
        self.tsnames = []
        self.side = []
        self.tail_text = []
        r = cfg["reuse"]
        self.o_base = (lambda L: H_OFF) if r else (lambda L: O_OFF + L * 0x200000)
        self.o_mt = HMT if r else 32768
        self.x_base = (lambda inst: X1_OFF) if r else (lambda inst: [X1_OFF, X1_OFF + 0x200000, X2_OFF][inst])
        self.h_base = (lambda L: H_OFF) if r else (lambda L: H_OFF + L * H_L)
        self.st_base = (lambda inst: STAT_OFF) if r else (lambda inst: STAT_OFF + inst * 64 * 4096)

    def ts(self, name):
        if not self.cfg["ts"]:
            return
        k = self.nts; self.nts += 1; self.tsnames.append(name)
        assert k < 60
        self.q.raw(f"{'s_memrealtime' if self.cfg.get('rt') else 's_memtime'} {sTS}\ns_waitcnt lgkmcnt(0)\nv_writelane_b32 {vTS}, s96, {k}", drains_lgkm=True)

    def soff(self, s, reg, const, tmp):
        if const == 0: return reg
        s(f"s_add_u32 {tmp}, {reg}, {const}")
        return tmp

    def _cmp(self, reg, target):
        if target is None: return f"v_cmp_eq_u32 vcc, 0, {reg}\n"
        if target == "24": return f"v_cmp_gt_u32 vcc, 24, {reg}\n"
        return f"v_and_b32 v29, 63, {reg}\nv_cmp_ne_u32 vcc, {target}, v29\n"

    def _loop(self, ld, reg, target, D):
        L = uid("L_poll")
        return (f"{L}:\n{ld}\ns_waitcnt vmcnt(0)\n" + self._cmp(reg, target) +
                f"s_nop 1\ns_cbranch_vccz {D}\ns_sub_u32 {sBUD}, {sBUD}, 1\ns_cbranch_scc0 {L}\ns_mov_b32 {sBUD}, 0\n")

    def poll(self, voff, srd, soff, off=0, target=None):
        L = uid("L_poll")
        ld = f"buffer_load_dword {vP}, {voff}, {srd}, {soff} offen offset:{off} sc1"
        self.q.raw(f"{L}:\n{ld}\ns_sub_u32 {sBUD}, {sBUD}, 1\ns_cselect_b64 {sE0}, 0, -1\ns_max_i32 {sBUD}, {sBUD}, 0\ns_waitcnt vmcnt(0)\n" +
                   self._cmp(vP, target) + f"s_and_b64 vcc, vcc, {sE0}\ns_cbranch_scc1 {L}\n", drains_vm=True, writes={"v29", "v30"})

    def precheck(self, s, reg, voff, srd, soff, off=0):
        ld = f"buffer_load_dword {reg}, {voff}, {srd}, {soff} offen offset:{off} sc1"
        s(ld)
        return ld

    def confirm(self, s, reg, ld, target=None):
        D = uid("L_done"); R_ = uid("L_redo")
        s.raw(self._cmp(reg, target) + f"s_nop 0\ns_cbranch_vccnz {R_}\n{D}:\n", writes={reg, "v29"} if target else {reg})
        self.tail_text.append(f"{R_}:\n" + self._loop(ld, reg, target, D) + f"s_branch {D}\n")

    def flag(self, s, soff_reg, off, srd, toks):
        s(f"v_mov_b32 {vP}, 1")
        s.wait_tok(*toks)
        s.dual_store([f"buffer_store_dword {vP}, {vONE}, {srd}, {soff_reg} offen offset:{off}"], uid("f"))

    def code_touch(self, label):
        if self.cfg.get("ctouch", "1") != "1": return
        self.q(f"s_add_u32 s10, s4, {label}-{KNAME}\ns_addc_u32 s11, s5, 0\ns_load_dword s6, s[10:11], 0\ns_load_dword s7, s[10:11], 64")

    def handoff(self, s, lines, name, tok, wt=False):
        if wt:
            for l in lines: s(l + " sc1", tok=tok)
        else:
            s.dual_store(lines, uid(name), tok=tok)

    def barrier(self):
        self.q.wait_lgkm0()
        self.q("s_barrier")

    def dma_wq(self, j, tok):
        s = Seq()
        if j % 4 == 0:
            s(f"""
            s_lshl_b32 {sQO}, {sW}, 13
            s_add_u32 {sQO}, {sQO}, {sR4K}
            s_add_u32 {sQO}, {sQO}, {(j // 4) * 4096}
            s_and_b32 {sQO}, {sQO}, 0x7000
            s_mul_i32 {sQO}, {sQO}, 48
            s_lshl_b32 {sD}, {sHP}, 6
            s_add_u32 {sQO}, {sQO}, {sD}
            """)
        s(f"s_add_u32 m0, {sW8K}, {R1 + j * 1024}")
        s(f"s_add_u32 {sD}, {sQO}, {(j % 4) * 49152}")
        s(f"buffer_load_dwordx4 {vDQ}, {SQKV}, {sD} offen lds", tok=tok)
        return s

    def dma_packed(self, j, tok):
        s = Seq()
        if self.cfg.get("ab_pk"): return s
        if j < 8:
            s(f"s_add_u32 {sD}, {sR4K}, {j * 4096}")
            s(f"s_and_b32 {sD}, {sD}, 0x7000")
            s(f"s_add_u32 m0, {sW2K}, {R0 + j * 8192}")
            s(f"s_lshl1_add_u32 {sD}, {sD}, {sWQP}")
        else:
            s(f"s_add_u32 {sD}, {sQKVO}, {(j - 8) * 8192}")
            s(f"s_and_b32 {sD}, {sD}, 0x7fff")
            s(f"s_add_u32 m0, {sW2K}, {R1 + (j - 8) * 8192}")
            s(f"s_add_u32 {sD}, {sD}, {sQO}")
        s(f"buffer_load_dwordx4 {vL16}, {SWS}, {sD} offen sc1 lds")
        s(f"buffer_load_dwordx4 {vL16}, {SWS}, {sD} offen offset:1024 sc1 lds", tok=tok)
        return s

    def dma_wo(self, rnd, jj, tok):
        s = Seq()
        if self.cfg.get("ab_wo"):
            s("s_nop 0"); return s
        s(f"s_add_u32 m0, {sW8K}, {(R0 + 32768 if rnd else R3) + jj * 2048}")
        s(f"s_add_u32 {sD}, {sWOO}, {(8 * rnd + jj) * 16384}")
        s(f"buffer_load_dwordx4 {vD128}, {SWO}, {sD} offen lds")
        s(f"buffer_load_dwordx4 {vD128b}, {SWO}, {sD} offen offset:1024 lds", tok=tok)
        return s

    def dma_wgu(self, j):
        s = Seq()
        if self.cfg.get("ab_gu") == "all" or (self.cfg.get("ab_gu") == "c3" and j >= 10): return s
        s(f"s_add_u32 m0, {sW2K}, {GU_BASE[j // 4] + (j % 4) * 8192}")
        s(f"s_add_u32 {sD}, {sGUO}, {(j % 2 if self.cfg.get('hit_gu') else j) * 4 * 28672}")
        s(f"buffer_load_dwordx4 {vDG}, {SWG}, {sD} offen lds")
        s(f"buffer_load_dwordx4 {vDU}, {SWU}, {sD} offen offset:1024 lds", tok=self.gu_t[j])
        return s

    def c3_touch(self, first, per, dst):
        if self.cfg.get("c3", "0") != "1": return []
        a_ = Seq(); b_ = Seq()
        a_(f"""
        v_min_u32 {dst[0]}, {per - 1}, {vLANE}
        s_lshl2_add_u32 {sT0}, {sI}, {sW}
        s_mul_i32 {sT0}, {sT0}, {per * 1024}
        v_lshlrev_b32 {dst[0]}, 10, {dst[0]}
        s_add_u32 {sT0}, {sT0}, {first * 1024}
        buffer_load_dword {dst[1]}, {dst[0]}, {SWG}, {sT0} offen offset:384
        """)
        b_(f"buffer_load_dword {dst[0]}, {dst[0]}, {SWU}, {sT0} offen offset:{1024 + 384}")
        return [a_, b_]

    def dma_wd(self, u, slot, tok):
        s = Seq()
        if self.cfg.get("ab_wd"): return s
        s(f"s_add_u32 m0, {sW8K}, {slot}")
        s(f"s_add_u32 {sD}, {sWDO}, {(u % 6 if self.cfg.get('hit_wd') else u) * 16384}")
        s(f"buffer_load_dwordx4 {vD128}, {SWD}, {sD} offen lds")
        s(f"buffer_load_dwordx4 {vD128b}, {SWD}, {sD} offen offset:1024 lds", tok=tok)
        return s

    def stats_finish(self, s, s1, tmp, bfrag, dup):
        a, b = V(s1), V(s1 + 1); t0, t1 = V(tmp), V(tmp + 1)
        s(f"v_mov_b32 {t0}, {a}")
        s(f"v_mov_b32 {t1}, {b}")
        s(f"v_permlane32_swap_b32 {a}, {t0}")
        s(f"v_permlane32_swap_b32 {b}, {t1}")
        s(f"v_add_f32 {a}, {a}, {t0}")
        s(f"v_add_f32 {b}, {b}, {t1}")
        s(f"v_mul_f32 {t1}, {f32(1.0 / 512)}, {a}")
        s(f"v_mul_f32 {b}, {f32(1.0 / 512)}, {b}")
        s(f"v_mul_f32 {a}, {f32(-1.0 / 1024)}, {a}")
        s(f"v_fma_f32 {t0}, -{t1}, {t1}, {b}")
        s(f"v_cvt_pk_bf16_f32 {t1}, {a}, {a}")
        s(f"v_max_f32 {t0}, 0, {t0}")
        s(f"v_and_b32 {t1}, 0xffff0000, {t1}")
        s(f"v_add_f32 {t0}, {f32(1e-5)}, {t0}")
        s(f"v_sub_f32 {t1}, {a}, {t1}")
        s(f"v_rsq_f32 {b}, {t0}")
        s(f"v_cvt_pk_bf16_f32 v{bfrag}, {a}, {t1}")
        s(f"v_mov_b32 v{bfrag + 1}, v{bfrag}")
        for i in (2, 3): s(f"v_mov_b32 v{bfrag + i}, {'v%d' % bfrag if dup else '0'}")

    def cs_split(self, s, c, out):
        s(f"v_cvt_pk_bf16_f32 v{out}, {c}, {c}")
        s(f"v_and_b32 v{out + 1}, 0xffff0000, v{out}")
        s(f"v_sub_f32 v{out + 1}, {c}, v{out + 1}")
        s(f"v_cvt_pk_bf16_f32 v{out + 1}, v{out + 1}, v{out + 1}")

    def pack16(self, s, acc, out):
        for i in range(0, 16, 2):
            s(f"v_cvt_pk_bf16_f32 {V(out + i // 2)}, {V(acc + i)}, {V(acc + i + 1)}")

    def stats_sum(self, s, base, plain=False):
        for st in (8, 4, 2):
            if plain:
                for i in range(st): s(f"v_add_f32 v{base + i}, v{base + i}, v{base + i + st}")
                continue
            for i in range(0, st, 2):
                s(f"v_pk_add_f32 {V(base + i, 2)}, {V(base + i, 2)}, {V(base + i + st, 2)}")

    def softmax16(self, s, p, out, tmp, c):
        t = V(tmp); u = V(tmp + 1); c2 = V(c, 2)
        s(f"v_max3_f32 {t}, {V(p)}, {V(p + 1)}, {V(p + 2)}")
        s(f"v_max3_f32 {u}, {V(p + 3)}, {V(p + 4)}, {V(p + 5)}")
        s(f"v_max3_f32 {t}, {t}, {V(p + 6)}, {V(p + 7)}")
        s(f"v_max3_f32 {u}, {u}, {V(p + 8)}, {V(p + 9)}")
        s(f"v_max3_f32 {t}, {t}, {V(p + 10)}, {V(p + 11)}")
        s(f"v_max3_f32 {u}, {u}, {V(p + 12)}, {V(p + 13)}")
        s(f"v_max3_f32 {t}, {t}, {V(p + 14)}, {V(p + 15)}")
        s(f"v_max_f32 {t}, {t}, {u}")
        s(f"v_mul_f32 {V(c + 1)}, {V(c)}, {t}")
        for i in range(0, 16, 2):
            s(f"v_pk_fma_f32 {V(p + i, 2)}, {V(p + i, 2)}, {c2}, {c2} op_sel:[0,0,1] op_sel_hi:[1,0,1] neg_lo:[0,0,1] neg_hi:[0,0,1]")
        for i in range(16):
            s(f"v_exp_f32 {V(p + i)}, {V(p + i)}")
        for i in range(0, 8, 2):
            s(f"v_pk_add_f32 {V(tmp + i, 2)}, {V(p + i, 2)}, {V(p + 8 + i, 2)}")
        s(f"v_pk_add_f32 {V(tmp, 2)}, {V(tmp, 2)}, {V(tmp + 4, 2)}")
        s(f"v_pk_add_f32 {V(tmp + 2, 2)}, {V(tmp + 2, 2)}, {V(tmp + 6, 2)}")
        s(f"v_pk_add_f32 {V(tmp, 2)}, {V(tmp, 2)}, {V(tmp + 2, 2)}")
        s(f"v_add_f32 {t}, {t}, {u}")
        s(f"v_rcp_f32 {t}, {t}")
        for i in range(0, 16, 2):
            s(f"v_pk_mul_f32 {V(p + i, 2)}, {V(p + i, 2)}, {V(tmp, 2)} op_sel_hi:[1,0]")
        self.pack16(s, p, out)

    def mfma32(self, s, d, a, b, first, rtags=None):
        c = "0" if first else V(d, 16)
        s(f"v_mfma_f32_32x32x16_bf16 {V(d, 16)}, {a}, {b}, {c}", rtags=rtags)

    def tr2(self, s, dst, addr, off, dq, tag):
        assert off + dq < 65536
        s(f"ds_read_b64_tr_b16 {dst(0, 2)}, {addr} offset:{off}", wtag=tag)
        s(f"ds_read_b64_tr_b16 {dst(2, 2)}, {addr} offset:{off + dq}", wtag=tag)

    def ones(self, s, r):
        for i in range(4): s(f"v_mov_b32 v{r + i}, 0x3f803f80")

    def prologue(self):
        q = self.q
        q("s_cmp_ge_u32 s2, 256\ns_cbranch_scc1 L_end")
        if self.cfg["ts"]: q("s_memtime s[76:77]\ns_memrealtime s[78:79]")
        q(f"""
        s_load_dwordx16 s[80:95], s[0:1], 0
        s_load_dwordx4 s[96:99], s[0:1], 64
        s_load_dwordx2 s[100:101], s[0:1], 80
        v_lshrrev_b32 v100, 6, v0
        v_and_b32 {vLANE}, 63, v0
        v_readfirstlane_b32 {sW}, v100
        s_and_b32 {sG}, s2, 7
        s_lshr_b32 {sI}, s2, 3
        """)
        q.raw(f"""
        s_getpc_b64 s[44:45]
        L_pc:
        s_sub_u32 s44, s44, L_pc-{KNAME}
        s_subb_u32 s45, s45, 0
        s_cmp_lg_u32 {sW}, 3
        s_cbranch_scc1 L_nopf
        s_and_b32 s46, {sI}, 7
        s_lshl_b32 s46, s46, 13
        v_lshl_add_u32 v101, {vLANE}, 7, s46
        v_min_u32 v101, L_last-{KNAME}, v101
        global_load_dword v127, v101, s[44:45]
        L_nopf:
        """, writes={"v101"})
        q(f"""
        s_and_b32 {sRB}, {sI}, 1
        s_lshr_b32 {sHP}, {sI}, 1
        s_and_b32 {sRQ}, {sI}, 3
        s_lshr_b32 {sCT}, {sI}, 2
        s_xor_b32 {sCT}, {sCT}, 4
        s_lshl_b32 {sW2K}, {sW}, 11
        s_lshl_b32 {sW8K}, {sW}, 13
        v_lshlrev_b32 {vL16}, 4, {vLANE}
        """)
        q(f"""
        v_and_b32 v104, 3, {vLANE}
        v_lshrrev_b32 v106, 3, {vLANE}
        v_and_b32 v107, 7, {vLANE}
        v_lshrrev_b32 v108, 4, {vLANE}
        v_lshrrev_b32 v110, 2, {vLANE}
        v_mul_u32_u24 v110, 3072, v110
        v_lshl_add_u32 {vDQ}, v104, 4, v110
        v_xor_b32 v110, v107, v108
        v_lshlrev_b32 v110, 4, v110
        v_lshl_add_u32 v112, v106, 10, v110
        v_xor_b32 v113, 64, v112
        v_add_u32 v113, 7168, v113
        v_add_u32 v114, {2 * 7168}, v112
        v_add_u32 v115, {2 * 7168}, v113
        s_lshl_b32 {sT0}, {sHP}, 6
        s_mul_i32 {sT1}, {sW}, 49152
        s_add_u32 {sQKVO}, {sT0}, {sT1}
        s_add_u32 {sQKVO}, {sQKVO}, 1024
        s_add_u32 {sR4K}, {sCT}, {sG}
        s_and_b32 {sR4K}, {sR4K}, 7
        s_lshl_b32 {sR4K}, {sR4K}, 12
        s_lshl_b32 {sMT1}, {sG}, 3
        s_lshl_b32 {sT0}, {sRB}, 2
        s_add_u32 {sMT1}, {sMT1}, {sT0}
        s_add_u32 {sMT1}, {sMT1}, {sW}
        """)
        q.wait_lgkm0()
        if self.cfg["ts"]:
            q(f"v_writelane_b32 {vTS}, {'s78' if self.cfg.get('rt') else 's76'}, 0\nv_writelane_b32 {vTS}, s78, 60")
            self.nts = 1; self.tsnames.append("entry")
        def srd(d, p, size, sub=0):
            b = int(d[2:].split(":")[0])
            if sub:
                q(f"s_sub_u32 s{b}, s{p}, {sub}\ns_subb_u32 s{b + 1}, s{p + 1}, 0")
            else:
                q(f"s_mov_b64 s[{b}:{b + 1}], s[{p}:{p + 1}]")
            q(f"s_mov_b32 s{b + 2}, {size + sub}\ns_mov_b32 s{b + 3}, 0x20000")
        srd(SX, 80, 2097152); srd(SQKV, 82, 1572864); srd(SWS, 100, WS_SIZE); srd(SDBG, 98, 256)
        if self.cfg.get('ts2'): srd(SOUT, 96, 2097152)
        self.srd = srd

    def prologue2(self):
        q = self.q; srd = self.srd
        srd(SPHI, 84, 16384); srd(SWO, 86, 524288); srd(SWG, 90, 1835008); srd(SWU, 92, 1835008, sub=1024)
        srd(SWD, 94, 1835008); srd(SWS3, 100, WS_SIZE)
        if not self.cfg.get('ts2'): srd(SOUT, 96, 2097152)
        T3 = "s76"; MT2G = "s77"
        q(f"""
        s_mov_b32 {sBUD}, 200000
        s_mov_b32 {sMODE}, 1
        s_mul_i32 {sFLG}, {sG}, {FLG_G}
        s_add_u32 {sFLG}, {sFLG}, {FLG_OFF}
        s_mul_i32 {sKV}, {sHP}, {KV_HP}
        s_and_b32 {sT0}, {sW}, 1
        s_lshl_b32 {sMT2}, {sRQ}, 1
        s_add_u32 {sMT2}, {sMT2}, {sT0}
        s_lshr_b32 {sT1}, {sW}, 1
        s_lshl_b32 {sPART}, {sCT}, 1
        s_add_u32 {sPART}, {sPART}, {sT1}
        s_lshl_b32 {sWOO}, {sT1}, 2
        s_add_u32 {sWOO}, {sWOO}, {sT0}
        s_lshl_b32 {sWOO}, {sWOO}, 16
        s_lshl_b32 {T3}, {sCT}, 7
        s_add_u32 {sWOO}, {sWOO}, {T3}
        s_mul_i32 {sAT}, {sW}, 1280
        s_add_u32 {sAT}, {sAT}, {sKV}
        s_lshl_b32 {MT2G}, {sG}, 3
        s_add_u32 {MT2G}, {MT2G}, {sMT2}
        s_mul_i32 {sO_LD}, {MT2G}, {self.o_mt}
        s_lshl_b32 {sT0}, {sT1}, 14
        s_add_u32 {sO_LD}, {sO_LD}, {sT0}
        s_add_u32 {sO_LD}, {sO_LD}, {self.o_base(0)}
        s_lshl_b32 {sFO_PL}, {sMT2}, 6
        s_lshl_b32 {sT0}, {sT1}, 5
        s_add_u32 {sFO_PL}, {sFO_PL}, {sT0}
        s_add_u32 {sFO_PL}, {sFO_PL}, {sFLG}
        s_mul_i32 {sT1}, {sW}, {28 * 16384}
        s_add_u32 {sWDO}, {T3}, {sT1}
        s_lshl2_add_u32 {sT0}, {sG}, {sRQ}
        s_cmp_ge_u32 {sI}, 28
        s_cselect_b32 {sFB}, {sT0}, {sI}
        s_lshl_b32 {sT0}, {sFB}, 7
        s_mul_i32 {sT1}, {sW}, 28672
        s_add_u32 {sGUO}, {sT0}, {sT1}
        s_mul_i32 {sWQP}, {sHP}, 98304
        s_add_u32 {sWQP}, {sWQP}, {sW2K}
        s_add_u32 {sWQP}, {sWQP}, {WQP_OFF}
        s_mul_i32 {sO_ST}, {sMT1}, {self.o_mt}
        s_lshl_b32 {sT0}, {sHP}, 11
        s_add_u32 {sO_ST}, {sO_ST}, {sT0}
        s_add_u32 {sO_ST}, {sO_ST}, {self.o_base(0)}
        s_and_b32 {sT0}, {sMT1}, 7
        s_lshl_b32 {sT0}, {sT0}, 6
        s_add_u32 {sT0}, {sT0}, {sFLG}
        s_add_u32 {sFX_PL1}, {sT0}, {FX}
        s_lshl_b32 {sT1}, {sHP}, 2
        s_add_u32 {sFO_ST}, {sT0}, {sT1}
        s_lshl_b32 {sT0}, {MT2G}, 15
        s_lshl_b32 {sT1}, {sPART}, 6
        s_add_u32 {sOUTO}, {sT0}, {sT1}
        s_lshl_b32 {sT1}, {sPART}, 11
        s_add_u32 {sX_ST}, {sT0}, {sT1}
        s_add_u32 {sX_ST}, {sX_ST}, {self.x_base(0)}
        s_lshl_b32 {sST_ST}, {MT2G}, 12
        s_bfe_u32 {sT1}, {sPART}, 0x20001
        s_lshl_b32 {sT1}, {sT1}, 10
        s_add_u32 {sST_ST}, {sST_ST}, {sT1}
        s_lshr_b32 {sT1}, {sPART}, 3
        s_lshl_b32 {sT1}, {sT1}, 9
        s_add_u32 {sST_ST}, {sST_ST}, {sT1}
        s_and_b32 {sT1}, {sPART}, 1
        s_lshl_b32 {sT1}, {sT1}, 3
        s_add_u32 {sST_ST}, {sST_ST}, {sT1}
        s_add_u32 {sST_ST}, {sST_ST}, {STAT_OFF}
        s_lshl_b32 {sFX_ST}, {sMT2}, 6
        s_lshl_b32 {sT1}, {sPART}, 2
        s_add_u32 {sFX_ST}, {sFX_ST}, {sT1}
        s_add_u32 {sFX_ST}, {sFX_ST}, {sFLG}
        s_add_u32 {sFX_ST}, {sFX_ST}, {FX}
        ; K1 loads
        s_lshl_b32 {sX_LD1}, {sMT1}, 15
        s_add_u32 {sX_LD1}, {sX_LD1}, {self.x_base(2)}
        s_lshl_b32 {sST_LD1}, {sMT1}, 12
        s_add_u32 {sST_LD1}, {sST_LD1}, {self.st_base(2)}
        ; K3: m-tiles 8g+2w, +1
        s_lshl_b32 {sT0}, {sW}, 7
        s_add_u32 {sFX_PL3}, {sT0}, {sFLG}
        s_add_u32 {sFX_PL3}, {sFX_PL3}, {FX}
        s_lshl_b32 {sT0}, {sW}, 8
        s_lshl_b32 {sT1}, {sI}, 2
        s_add_u32 {sFH_ST}, {sT0}, {sT1}
        s_add_u32 {sFH_ST}, {sFH_ST}, {sFLG}
        s_add_u32 {sFH_ST}, {sFH_ST}, {FH}
        s_lshl_b32 {sT0}, {sG}, 2
        s_add_u32 {sT0}, {sT0}, {sW}
        s_lshl_b32 {sX_LD3}, {sT0}, 16
        s_add_u32 {sX_LD3}, {sX_LD3}, {self.x_base(0)}
        s_lshl_b32 {sST_LD3}, {sT0}, 13
        s_add_u32 {sST_LD3}, {sST_LD3}, {STAT_OFF}
        s_mul_i32 {sH_ST}, {sT0}, {2 * HMT}
        s_lshl_b32 {sT1}, {sI}, 12
        s_add_u32 {sH_ST}, {sH_ST}, {sT1}
        s_add_u32 {sH_ST}, {sH_ST}, {H_OFF}
        ; K4
        s_lshl_b32 {sT0}, {sRQ}, 8
        s_mul_i32 {sT1}, {sW}, 28
        s_add_u32 {sFH_PL}, {sT0}, {sT1}
        s_add_u32 {sFH_PL}, {sFH_PL}, {sFLG}
        s_add_u32 {sFH_PL}, {sFH_PL}, {FH}
        s_lshl_b32 {sT0}, {sG}, 2
        s_add_u32 {sT0}, {sT0}, {sRQ}
        s_mul_i32 {sH_LD}, {sT0}, {2 * HMT}
        s_lshl_b32 {sT1}, {sT1}, 10
        s_add_u32 {sH_LD}, {sH_LD}, {sT1}
        s_add_u32 {sH_LD}, {sH_LD}, {H_OFF}
        s_cmp_eq_u32 {sW}, 0
        s_cselect_b32 {sCNT}, {sKV}, {OOB}
        s_add_u32 {sCNT}, {sCNT}, {KV_OFF + KV_CNT}
        s_getreg_b32 {sT0}, hwreg(HW_REG_XCC_ID)
        s_and_b32 {sT0}, {sT0}, 15
        s_mul_i32 {sT1}, {sT0}, {sT0}
        s_lshl_b32 {sT1}, {sT1}, 15
        s_lshl_b32 {sT0}, {sT0}, 6
        s_add_u32 {sADD}, {sT0}, {sT1}
        s_add_u32 {sADD}, {sADD}, 1
        """)
        q(f"""
        v_lshrrev_b32 v100, 5, {vLANE}
        v_and_b32 v101, 31, {vLANE}
        v_bfe_u32 v102, {vLANE}, 4, 1
        v_bfe_u32 v103, {vLANE}, 2, 2
        v_lshrrev_b32 v105, 1, v104
        v_and_b32 v110, 1, v104
        v_lshl_add_u32 v105, v110, 1, v105
        v_lshl_add_u32 v110, v100, 3, v103
        v_lshl_add_u32 v111, v102, 2, v105
        v_lshlrev_b32 v111, 3, v111
        v_lshl_add_u32 {vT64}, v110, 6, v111
        v_lshrrev_b32 v109, 1, v103
        v_lshl_add_u32 v111, v109, 6, v111
        v_lshl_add_u32 {vT128}, v110, 7, v111
        s_lshr_b32 {sT0}, {sW}, 1
        s_lshl_b32 {sT0}, {sT0}, 6
        v_xor_b32 {vT128}, {sT0}, {vT128}
        ; vTG = h*2048 + grp*1024 + r4*128 + ((r4>>1)+2grp)*32 + sig*8
        v_lshlrev_b32 v110, 11, v100
        v_lshl_add_u32 v110, v102, 10, v110
        v_lshl_add_u32 v110, v103, 7, v110
        v_lshl_add_u32 v111, v102, 1, v109
        v_lshl_add_u32 v110, v111, 5, v110
        v_lshl_add_u32 {vTG}, v105, 3, v110
        ; vD128 = (l>>3)*1024 + ((l&7) ^ (grp<<2))*16 ; vDG = (l>>3)*3584 + ((l&7) ^ (grp<<1))*16
        v_lshlrev_b32 v110, 2, v102
        v_xor_b32 v110, v107, v110
        v_lshlrev_b32 v110, 4, v110
        v_lshl_add_u32 {vD128}, v106, 10, v110
        v_add_u32 {vD128b}, 7168, {vD128}
        v_lshlrev_b32 v110, 1, v102
        v_xor_b32 v110, v107, v110
        v_lshlrev_b32 v110, 4, v110
        v_mul_u32_u24 v111, 3584, v106
        v_add_u32 {vDG}, v110, v111
        v_xor_b32 {vDU}, 64, {vDG}
        v_lshlrev_b32 v110, 4, v100
        v_lshl_add_u32 {vROW}, v101, 10, v110
        v_min_u32 v110, 1, {vLANE}
        v_lshlrev_b32 {vONE}, 30, v110
        """)

    def k1_setup(self, L):
        q = self.q
        q(f"""
        v_add_u32 {vKVT}, {R0}, {vT64}
        v_add_u32 {vWQ}, {R1}, {vT64}
        v_lshrrev_b32 v29, 5, {vLANE}
        v_and_b32 v30, 31, {vLANE}
        v_lshlrev_b32 {vCS}, 4, v30
        v_add_u32 {vCS}, {CS1}, {vCS}
        s_lshl_b32 {sT0}, {sW}, 5
        v_add_u32 v30, {sT0}, v30
        v_mul_u32_u24 v30, {PH_S}, v30
        v_add_u32 v30, {R2}, v30
        v_lshl_add_u32 {vPW32}, v29, 5, v30
        v_lshl_add_u32 {vPW16}, v29, 4, v30
        v_bfe_u32 v30, {vLANE}, 2, 2
        v_lshl_add_u32 v30, v29, 4, v30
        v_mul_u32_u24 {vKR}, 40, v30
        v_and_b32 v30, 0x38, {vT64}
        v_min_u32 v30, 32, v30
        v_add_u32 {vKR}, {vKR}, v30
        v_add_u32 {vKR}, {KVB}, {vKR}
        v_bfe_u32 v30, {vLANE}, 2, 2
        v_lshrrev_b32 v29, 4, {vLANE}
        v_lshl_add_u32 {vKW1}, v30, 2, v29
        v_lshl_add_u32 {vKW2}, v29, 2, v30
        v_mul_u32_u24 {vKW1}, 40, {vKW1}
        v_mul_u32_u24 {vKW2}, 40, {vKW2}
        v_and_b32 v30, 3, {vLANE}
        v_lshl_add_u32 {vKW1}, v30, 3, {vKW1}
        v_lshl_add_u32 {vKW2}, v30, 1, {vKW2}
        s_mul_i32 {sT1}, {sW}, 640
        s_add_u32 {sT1}, {sT1}, {KVB}
        v_add_u32 {vKW1}, {sT1}, {vKW1}
        v_add_u32 {vKW2}, {sT1}, {vKW2}
        v_lshrrev_b32 v29, 4, {vLANE}
        v_bfe_u32 v30, {vLANE}, 2, 2
        v_lshl_add_u32 v30, v29, 3, v30
        v_mul_u32_u24 v30, {PH_S}, v30
        v_and_b32 {vKA}, 3, {vLANE}
        v_lshl_add_u32 v30, {vKA}, 3, v30
        s_lshr_b32 {sT1}, {sW}, 1
        s_lshl_b32 {sT2}, {sT1}, 5
        s_add_u32 {sT2}, {sT2}, {R2}
        v_add_u32 {vKA}, {sT2}, v30
        s_add_u32 {sT0}, {sT0}, {R2 + 64}
        v_add_u32 {vKB}, {sT0}, v30
        v_lshlrev_b32 {vL4}, 2, {vLANE}
        s_lshl_b32 {sT1}, {sT1}, 14
        v_add_u32 {vWO0}, {sT1}, {vT128}
        v_xor_b32 {vWO1}, 64, {vWO0}
        v_add_u32 {vUN1}, {R0 + 32768}, {vWO0}
        v_add_u32 {vUN2}, {R0 + 32768}, {vWO1}
        """)

    def zero_setup(self):
        self.q(f"""
        s_mul_i32 {sT0}, {sW}, 3072
        s_add_u32 s46, {sKV}, {sT0}
        s_mov_b32 s47, 0
        s_lshl_b32 {sT0}, {sW}, 11
        s_add_u32 {sT0}, {sFLG}, {sT0}
        s_mov_b32 {sT1}, 0
        s_cmp_lt_u32 {sHP}, 8
        s_cselect_b32 {sT0}, {sT0}, {OOB}
        s_cselect_b32 {sT1}, {sT1}, {OOB}
        s_cmp_eq_u32 {sRB}, 0
        s_cselect_b32 s46, s46, {sT0}
        s_cselect_b32 s47, s47, {sT1}
        s_cselect_b32 {sT2}, 0, 4
        s_and_b32 {sT0}, {sHP}, 7
        s_cmp_eq_u32 {sT0}, {sG}
        s_cselect_b32 s46, s46, {OOB}
        s_cselect_b32 s47, s47, {OOB}
        s_cmp_eq_u32 {sW}, 0
        s_cselect_b32 s47, s47, {OOB}
        s_add_u32 s47, s47, {64 if self.cfg.get("dbgts") else 0}
        v_add_u32 v105, s47, {vONE}
        v_add_u32 v106, {sT2}, v108
        v_lshrrev_b32 v106, 2, v106
        v_lshl_add_u32 v106, v106, 28, {vL16}
        v_mov_b32 v104, 1
        v_mov_b32 v96, 0
        v_mov_b32 v97, 0
        v_mov_b32 v98, 0
        v_mov_b32 v99, 0
        """)

    XF = Reg("v", 128)
    def k1_groups(self, L):
        def tr(s_):
            g = Seq()
            for t in range(2):
                slot = (2 * s_ + t) % 6
                self.tr2(g, Reg("a", WRING.lo + 4 * slot), vKVT, s_ * 2048 + t * 1024, 256, ("Wkv", L, s_, t))
            return g
        def mm(s_, t):
            g = Seq()
            slot = (2 * s_ + t) % 6
            self.mfma32(g, 48 + 16 * t, WRING(4 * slot, 4), self.XF(4 * s_, 4), s_ == 0,
                        rtags={1: ("Wkv", L, s_, t), 2: ("x", L, s_)})
            return g
        return tr, mm

    def k1_first(self):
        q = self.q; L = 0
        XF = self.XF
        XS = "s3"
        q(f"s_lshl_b32 {XS}, {sMT1}, 15")
        xt = [Tok() for _ in range(8)]; wt = [Tok() for _ in range(8)]
        slot = lambda cp: (R1 if (cp & 3) < 2 else R3) + (cp & 1) * 4096
        def dma_xw(cp):
            s = Seq()
            s(f"""
            s_add_u32 {sT0}, {sR4K}, {cp * 4096}
            s_and_b32 {sT0}, {sT0}, 0x7000
            s_lshr_b32 {sD}, {sT0}, 5
            s_add_u32 m0, {sW8K}, {slot(cp)}
            s_add_u32 {sD}, {sD}, {XS}
            """)
            for j in range(4):
                s(f"buffer_load_dwordx4 v{112 + j}, {SX}, {sD} offen offset:{j * 1024} lds", tok=xt[cp] if j == 3 else None)
            s(f"""
            s_mul_i32 {sD}, {sT0}, 48
            s_add_u32 m0, {sW2K}, {R0 + cp * 8192}
            s_add_u32 {sD}, {sD}, {sQKVO}
            buffer_load_dwordx4 {vDQ}, {SQKV}, {sD} offen lds
            """)
            s(f"buffer_load_dwordx4 {vDQ}, {SQKV}, {sD} offen offset:1024 lds", tok=wt[cp])
            return s
        q.extend(dma_xw(0))
        if self.cfg.get("coop", "1") == "1":
            q(f"""
            v_min_u32 v110, 11, {vLANE}
            v_lshlrev_b32 v110, 10, v110
            s_lshl2_add_u32 {sD}, {sI}, {sW}
            s_mul_i32 {sD}, {sD}, 12288
            buffer_load_dword v126, v110, {SQKV}, {sD} offen offset:384
            """)
        if self.cfg.get("ts2"): self.ts("dma0")
        self.prologue2()
        self.k1_setup(0)
        q(f"""
        v_bfe_u32 v116, v101, 1, 3
        v_xor_b32 v116, v100, v116
        v_lshlrev_b32 v116, 4, v116
        v_lshl_add_u32 v116, v101, 7, v116
        v_add_u32 v116, {sW8K}, v116
        v_xor_b32 v117, 32, v116
        v_xor_b32 v118, 64, v116
        v_xor_b32 v119, 96, v116
        ; w_phi address v120: w*1024 + R2 + (8h+r4)*32 + (2grp + (c>>1))*8 ; sign mask v121
        v_lshl_add_u32 v110, v100, 3, v103
        v_lshrrev_b32 v120, 1, v104
        v_lshl_add_u32 v120, v102, 1, v120
        v_lshlrev_b32 v120, 3, v120
        v_lshl_add_u32 v120, v110, 5, v120
        s_lshl_b32 {sT1}, {sW}, 10
        s_add_u32 s76, {sT1}, {R2}
        v_add_u32 v120, s76, v120
        v_bfe_u32 v121, {vLANE}, 2, 1
        v_mul_u32_u24 v121, 0x8000, v121
        v_lshl_add_u32 v121, v121, 16, v121
        v_mov_b32 v92, 0
        v_mov_b32 v93, 0
        v_mov_b32 v94, 0
        v_mov_b32 v95, 0
        v_mov_b32 v100, 0
        v_mov_b32 v101, 0
        v_mov_b32 v102, 0
        v_mov_b32 v103, 0
        s_and_b32 {sT0}, {sW}, 1
        s_lshl_b32 {sT0}, {sT0}, 10
        s_lshr_b32 {sT1}, {sW}, 1
        s_lshl_b32 {sT1}, {sT1}, 12
        s_add_u32 {sT0}, {sT0}, {sT1}
        v_add_u32 v109, {sT0}, {vKVT}
        ; touch offsets: v124 wd (14 lines), v125 wo / flags (4 lines), vTCH own destination lines
        v_lshlrev_b32 v110, 7, {vLANE}
        v_min_u32 v124, {6 * 128}, v110
        v_min_u32 v125, {3 * 128}, v110
        s_lshl2_add_u32 {sT2}, {sI}, {sW}
        s_lshl_b32 {sT0}, {sG}, 7
        s_add_u32 {sT0}, {sT0}, {sT2}
        s_mul_i32 s77, {sT0}, 896
        v_add_u32 {vTCH}, {sO_ST}, v110
        s_sub_u32 {sT1}, {sX_ST}, {16 * 128}
        v_add_u32 v111, {sT1}, v110
        v_cmp_lt_u32 vcc, 15, {vLANE}
        s_and_b32 {sT2}, {sST_ST}, 0xfffffe00
        s_sub_u32 {sT1}, {sT2}, {32 * 128}
        v_cndmask_b32 {vTCH}, {vTCH}, v111, vcc
        v_min_u32 v111, {35 * 128}, v110
        v_add_u32 v111, {sT1}, v111
        v_cmp_lt_u32 vcc, 31, {vLANE}
        v_lshrrev_b32 v110, 5, {vLANE}
        v_lshl_add_u32 {vUN0}, v110, 28, {vL16}
        v_cndmask_b32 {vTCH}, {vTCH}, v111, vcc
        """)
        self.ones(q, 88)
        if self.cfg.get("ts2"): self.ts("setup")
        tphi = Tok()
        q(f"s_mov_b32 m0, s76\ns_lshl_b32 {sD}, {sHP}, 10")
        q(f"buffer_load_dwordx4 {vL16}, {SPHI}, {sD} offen lds", tok=tphi)
        q(f"s_mov_b32 s45, {sT2}")
        self.zero_setup()
        DIST = int(self.cfg.get("dist", 3))
        for cp in range(1, DIST):
            q.extend(dma_xw(cp))
            if cp == 1 and self.cfg.get("coop2", "0") == "1":
                q(f"""
                v_and_b32 v110, 15, {vLANE}
                v_lshlrev_b32 v110, 7, v110
                v_mul_u32_u24 v111, 3072, v108
                v_add_u32 v110, v110, v111
                s_lshl2_add_u32 {sD}, {sI}, {sW}
                s_mul_i32 {sD}, {sD}, {4 * 3072}
                buffer_load_dword a47, v110, {SQKV}, {sD} offen offset:1024
                """)
        res = Seq()
        res(f"""
        buffer_load_dwordx4 v[80:83], {vROW}, {SX}, {sOUTO} offen
        buffer_load_dwordx4 v[84:87], {vROW}, {SX}, {sOUTO} offen offset:32
        """)
        tz = Tok()
        zs = Seq()
        zs(f"""
        buffer_store_dwordx4 v[96:99], {vL16}, {SWS}, s46 offen sc1
        buffer_store_dwordx4 v[96:99], {vL16}, {SWS}, s46 offen offset:1024 sc1
        buffer_store_dwordx4 v[96:99], v106, {SWS}, s46 offen offset:2048 sc1
        """, tok=tz)
        ws0 = Seq()
        if self.cfg.get("wt0", "4") in ("1", "4"):
            ws0(f"""
            buffer_store_dwordx4 v[88:91], {vL16}, {SWS}, {sO_ST} offen sc1
            buffer_store_dwordx4 v[88:91], {vL16}, {SWS}, {sO_ST} offen offset:1024 sc1
            buffer_store_dwordx4 v[88:91], {vL16}, {SWS}, {sX_ST} offen sc1
            buffer_store_dwordx4 v[88:91], {vL16}, {SWS}, {sX_ST} offen offset:1024 sc1
            buffer_store_dwordx4 v[88:91], {vUN0}, {SWS}, s45 offen sc1
            """)
        tw = [Seq() for _ in range(7)]
        tw[0](f"""
        s_lshl2_add_u32 {sD}, {sI}, {sW}
        s_lshl3_add_u32 {sD}, {sD}, {sG}
        s_lshl_b32 {sD}, {sD}, 9
        buffer_load_dword a40, v125, {SWO}, {sD} offen
        s_add_u32 s44, s77, {1835008 // 2}
        """)
        tw[1](f"buffer_load_dword a41, v124, {SWG}, s77 offen")
        tw[2](f"buffer_load_dword a42, v124, {SWU}, s77 offen offset:1024")
        tw[3](f"buffer_load_dword a43, v124, {SWG}, s44 offen")
        tw[4](f"""
        buffer_load_dword a44, v124, {SWU}, s44 offen offset:1024
        s_cmp_ge_u32 {sI}, 28
        s_cselect_b32 s38, 0, s38
        s_cmp_ge_u32 {sFB}, 28
        s_cselect_b32 s18, 0, s18
        s_cselect_b32 s22, 0, s22
        """)
        tw[5](f"buffer_load_dword a45, v124, {SWD}, s77 offen")
        tw[6](f"buffer_load_dword a46, v124, {SWD}, s44 offen")
        tplan = [int(c) for c in self.cfg.get("tplan", "5558888")]
        self.tw2 = Seq()
        for k in range(7):
            if tplan[k] == 8: self.tw2.extend(tw[k])
        tr, mm = self.k1_groups(L)
        self.ts("start")
        wq = [Tok() for _ in range(8)]
        self.wo_t = [Tok() for _ in range(4)]
        def xread(cp):
            g = Seq(); g.wait_tok(xt[cp])
            for e in range(4):
                g(f"ds_read_b128 {XF(16 * cp + 4 * e, 4)}, v{116 + e} offset:{slot(cp)}", wtag=("x", L, 4 * cp + e))
            return g
        def cstr(cp):
            g = Seq()
            for j in range(2): self.tr2(g, Reg("a", 8 * (cp & 1) + 4 * j), "v109", cp * 8192 + j * 2048, 256, ("cs", cp, j))
            return g
        q.extend(xread(0)); q.wait_tok(wt[0]); q("s_barrier")
        if self.cfg.get("ts2"): self.ts("c0")
        q.extend(tr(0)); q.extend(tr(1)); q.extend(cstr(0))
        ZC = int(self.cfg.get("zc", 0))
        for cp in range(8):
            d = []
            if cp + DIST < 8: d = [dma_xw(cp + DIST)]
            if cp == ZC: d.append(zs)
            if cp == 1: d.append(res)
            QC = max(4, 8 - DIST - 1)
            if cp in (QC, QC + 1):
                d += [self.dma_wq(4 * (cp - QC) + j, wq[4 * (cp - QC) + j]) for j in range(4)]
            d += [tw[k] for k in range(7) if tplan[k] == cp]
            if cp == 7 and self.cfg.get("wt0", "4") == "4": d.append(ws0)
            for i in range(16):
                k = [92, 94, 100, 102][i % 4]
                q(f"v_dot2c_f32_bf16 v{k}, {XF(16 * cp + i)}, v88")
                q(f"v_dot2c_f32_bf16 v{k + 1}, {XF(16 * cp + i)}, {XF(16 * cp + i)}")
            c = Seq()
            for e in range(4):
                s_ = 4 * cp + e
                c.extend(mm(s_, 0))
                if e == 0 and cp < 7: c.extend(xread(cp + 1))
                c.extend(mm(s_, 1))
                if e == 2 and cp < 7:
                    c.wait_tok(wt[cp + 1], *([tz] if cp == ZC + 3 else [])); c("s_barrier")
                    if cp == ZC + 3: c(f"buffer_atomic_add v104, v105, {SDBG}, 0 offen")
                if s_ + 2 < 32: c.extend(tr(s_ + 2))
                if e < 2:
                    c(f"v_mfma_f32_32x32x16_bf16 a[16:31], v[88:91], {A(8 * (cp & 1) + 4 * e, 4)}, {'0' if s_ == 0 else 'a[16:31]'}", rtags={2: ("cs", cp, e)})
                if e == 3 and cp < 7: c.extend(cstr(cp + 1))
            q.extend(spread(c, singles(d)))
            if self.cfg.get("ts2") and cp in (0, 3): self.ts(f"e{cp}")
            if cp == 4:
                q.wait_tok(tphi)
                for hd in range(2):
                    pass
                for i in range(8):
                    q(f"v_lshlrev_b32 {XRES(2 * i)}, 16, v{80 + i}")
                    q(f"v_and_b32 {XRES(2 * i + 1)}, 0xffff0000, v{80 + i}")
                for hd in range(2):
                    q(f"ds_read_b64_tr_b16 v[{80 + 4 * hd}:{81 + 4 * hd}], v120 offset:{hd * 512}")
                    q(f"ds_read_b64_tr_b16 v[{82 + 4 * hd}:{83 + 4 * hd}], v120 offset:{hd * 512 + 128}")
            if cp == 5:
                for i in range(8):
                    q(f"v_xor_b32 v{80 + i}, v121, v{80 + i}")
                    q(f"v_accvgpr_write_b32 {WPHI(i)}, v{80 + i}")
        q(f"""
        s_lshl1_add_u32 {sT0}, {sG}, {sRB}
        s_lshl2_add_u32 {sT0}, {sT0}, {sW}
        s_lshl_b32 s3, {sT0}, 9
        s_sub_u32 {sT1}, s3, {sR4K}
        s_and_b32 {sT1}, {sT1}, 0x7fff
        s_lshl1_add_u32 {sT1}, {sT1}, {R0}
        v_add_u32 v114, {sT1}, {vL16}
        ds_read_b128 v[80:83], v114
        v_accvgpr_read_b32 v112, a16
        s_and_b32 {sT0}, {sW}, 1
        s_lshl_b32 {sT0}, {sT0}, 9
        s_lshr_b32 {sT1}, {sW}, 1
        s_lshl3_add_u32 {sT0}, {sT1}, {sT0}
        v_add_u32 v113, {sT0}, {vCS}
        """)
        self.cs_split(q, "v112", 84)
        q(f"""
        ds_write_b64 v113, v[84:85]
        s_sub_u32 {sT1}, {sWQP}, {sW2K}
        s_lshl1_add_u32 {sT0}, s3, {sT1}
        buffer_store_dwordx4 v[80:83], {vL16}, {SWS}, {sT0} offen sc1
        """)
        q("""
        v_pk_add_f32 v[92:93], v[92:93], v[94:95]
        v_pk_add_f32 v[100:101], v[100:101], v[102:103]
        v_pk_add_f32 v[92:93], v[92:93], v[100:101]
        """)
        self.stats_finish(q, 92, 94, 120, True)
        q(f"v_mul_f32 v94, {f32(LOG2E)}, v93")
        t = [Seq()]
        t[0](f"s_load_dword s46, s[40:41], {64 if self.cfg.get('dbgts') else 0}")
        self.epi_items = t
        self.wos = singles([self.dma_wo(r_, j, Tok()) for r_ in range(2) for j in range(4)])
        for _ in range(int(self.cfg.get("woE0", 4))): self.wos and self.epi_items.append(self.wos.pop(0))
        self.ws0 = ws0
        self.wq_tok = wq

    def k1_second(self):
        q = self.q; L = 1; XF = self.XF
        self.k1_setup(1)
        q(f"""
        v_and_b32 v126, 15, {vLANE}
        v_lshlrev_b32 v126, 2, v126
        s_add_u32 {sQKVO}, {sW2K}, {sR4K}
        s_sub_u32 {sQO}, {sWQP}, {sW2K}
        s_add_u32 {sQO}, {sQO}, 65536
        s_add_u32 {sT1}, {sX_LD1}, {sR4K}
        ds_read_b128 v[112:115], {vCS}
        ds_read_b128 v[116:119], {vCS} offset:512
        """)
        q.label("L_k1_1")
        self.code_touch("L_k1_1")
        self.poll("v126", SWS, sFX_PL1, 2 * 512)
        self.ts("fx2")
        def xl(s_):
            g = Seq()
            if s_ % 4 == 0 and s_:
                g(f"s_add_u32 {sT1}, {sR4K}, {s_ * 1024}\ns_and_b32 {sT1}, {sT1}, 0x7fff\ns_add_u32 {sT1}, {sT1}, {sX_LD1}")
            g(f"buffer_load_dwordx4 {XF(4 * s_, 4)}, {vL16}, {SWS}, {sT1} offen offset:{(s_ % 4) * 1024} sc1", wtag=("x", L, s_))
            return g
        PRE = int(self.cfg.get("k1pre", 8))
        for s_ in range(PRE): q.extend(xl(s_))
        q("s_barrier")
        if self.cfg.get("ts2"): self.ts("k1bar")
        tr, mm = self.k1_groups(L)
        q.extend(tr(0)); q.extend(tr(1))
        stw = Seq()
        self.stats_sum(stw, 92, True)
        self.stats_finish(stw, 92, 94, 120, True)
        stw(f"v_mul_f32 v94, {f32(LOG2E)}, v93")
        stw = list(stw)
        for s_ in range(32):
            q.extend(mm(s_, 0))
            if s_ + PRE < 32: q.extend(xl(s_ + PRE))
            if s_ == 2: ldS = self.precheck(q, "v127", "v126", SWS, sFX_PL1, 2 * 512 + 1536)
            if s_ == 10: self.confirm(q, "v127", ldS)
            if 10 <= s_ < 14:
                i = s_ - 10
                q(f"buffer_load_dwordx4 {V(92 + 4 * i, 4)}, {vL16}, {SWS}, {sST_LD1} offen offset:{i * 1024} sc1")
            if s_ >= 21:
                for _ in range(4):
                    if stw: q.append(stw.pop(0))
            q.extend(mm(s_, 1))
            if s_ + 2 < 32: q.extend(tr(s_ + 2))
            if s_ == 30:
                assert not stw
                for t in range(2): self.mfma32(q, 48 + 16 * t, V(112 + 4 * t, 4), "v[120:123]", False)
        wq = [Tok() for _ in range(4)]
        self.wo_t = [Tok() for _ in range(4)]
        self.epi_items = singles([self.dma_packed(8 + j, wq[j]) for j in range(4)])
        self.wos = singles([self.dma_wo(r_, j, Tok()) for r_ in range(2) for j in range(4)])
        for _ in range(int(self.cfg.get("woE", 4))): self.wos and self.epi_items.append(self.wos.pop(0))
        self.wq_tok = wq

    def k1_rest(self, L):
        q = self.q; XF = self.XF
        self.gu_t = [Tok() for _ in range(16)]
        self.ts("k1main")
        if L == 0:
            self.barrier()
            q(f"ds_read_b128 v[112:115], {vCS}\nds_read_b128 v[116:119], {vCS} offset:512")
            for t in range(2): self.mfma32(q, 48 + 16 * t, V(112 + 4 * t, 4), "v[120:123]", False)
        e = Seq()
        self.pack16(e, 48, 80)
        self.mfma32(e, 48, WPHI(0, 4), V(80, 4), True)
        self.mfma32(e, 96, WPHI(4, 4), V(84, 4), True)
        e.pop()
        for i in range(6): e(f"v_mul_f32 v{64 + i}, v{64 + i}, v93")
        self.mfma32(e, 96, WPHI(4, 4), V(84, 4), True)
        for i in range(6, 16): e(f"v_mul_f32 v{64 + i}, v{64 + i}, v93")
        self.pack16(e, 64, 112)
        e(f"ds_write_b128 {vPW16}, v[112:115]\nds_write_b128 {vPW16}, v[116:119] offset:32")
        self.softmax16(e, 48, 64, 80, 94)
        e(f"ds_write_b128 {vPW32}, v[64:67] offset:64\nds_write_b128 {vPW32}, v[68:71] offset:80")
        self.softmax16(e, 96, 72, 80, 94)
        e(f"ds_write_b128 {vPW32}, v[72:75] offset:128\nds_write_b128 {vPW32}, v[76:79] offset:144")
        q.extend(spread(e, self.epi_items, 0.3 if L == 0 else 0.0, 1.0))
        if L == 1: self.ones(q, 88)
        if self.cfg.get("ts2"): self.ts("softk")
        self.barrier()
        for st in range(4):
            self.tr2(q, Reg("v", 52 + 8 * st), vKB, st * 32 * PH_S, 4 * PH_S, None)
            self.tr2(q, Reg("v", 48 + 8 * st), vKA, st * 32 * PH_S, 4 * PH_S, None)
        wos = self.wos
        for g in self.c3_touch(0, 7, ("v118", "v119")): q.extend(g)
        for _ in range(int(self.cfg.get("woK", 4))): wos and q.extend(wos.pop(0))
        at = self.soff(q, sAT, KV_OFF + L * KV_L, sKVL)
        q("s_mov_b32 s100, 0x80008000\ns_mov_b32 s101, 0x80008000\ns_mov_b32 vcc_lo, 0x11111111\ns_mov_b32 vcc_hi, 0x11111111")
        for st in range(4):
            c0 = "0" if st == 0 else "v[80:83]"; c1 = "0" if st == 0 else "v[84:87]"
            q(f"v_mfma_f32_16x16x32_bf16 v[84:87], {V(52 + 8 * st, 4)}, v[88:91], {c1}")
            q(f"v_mfma_f32_16x16x32_bf16 v[80:83], {V(52 + 8 * st, 4)}, {V(48 + 8 * st, 4)}, {c0}")
        for b_ in range(1, 4):
            q(f"v_mov_b32_dpp v84, v{84 + b_} quad_perm:[0,1,2,3] row_mask:0xf bank_mask:{1 << b_}")
        for b_ in range(4):
            q(f"v_mov_b32_dpp v85, v{80 + b_} row_ror:{4 * b_ + 1} row_mask:0xf bank_mask:{1 << b_}")
        q("v_cndmask_b32 v84, v84, v85, vcc")
        q(f"s_mov_b64 exec, s[100:101]")
        for r in range(5): q(f"v_mov_b32 v{80 + r}, 0x3e800000")
        q("s_mov_b64 exec, -1")
        if L == 0:
            D = uid("L_done")
            ld = f"buffer_load_dword v86, v87, {SDBG}, 0 offen offset:{64 if self.cfg.get('dbgts') else 0} sc1"
            q.raw(f"s_cmp_ge_u32 s46, 24\ns_cbranch_scc1 {D}\nv_mov_b32 v87, 0\n" + self._loop(ld, "v86", "24", D) + f"{D}:\n", writes={"s46"})
        for r in range(5):
            q(f"buffer_atomic_add_f32 v{80 + r}, {vL4}, {SWS}, {at} offen offset:{r * 256}")
        self.ts("atomics")
        if L == 0:
            q(f"""
            v_mov_b32 v85, {sADD}
            s_cmp_eq_u32 {sW}, 0
            s_cselect_b32 {sT0}, {sFLG}, {OOB}
            s_add_u32 {sT0}, {sT0}, {FREG}
            buffer_atomic_add v85, {vONE}, {SWS}, {sT0} offen
            s_lshl2_add_u32 {sD}, {sRQ}, {sW}
            s_min_u32 {sD}, {sD}, 12
            s_lshl_b32 {sD}, {sD}, 9
            s_add_u32 {sD}, {sD}, {sFLG}
            buffer_load_dword v125, v125, {SWS}, {sD} offen sc1
            """)
            q.extend(self.tw2)
        q.wait_tok(*self.wq_tok)
        q("s_barrier")
        if L == 0:
            q(f"""
            s_sub_u32 {sT0}, s3, {sR4K}
            s_and_b32 {sT0}, {sT0}, 0x7fff
            s_add_u32 {sT0}, {sT0}, {R1}
            v_lshlrev_b32 v112, 3, {vLANE}
            v_add_u32 v113, {sT0}, v112
            ds_read_b64 v[114:115], v113
            s_sub_u32 {sT1}, {sWQP}, {sW2K}
            s_add_u32 {sT1}, {sT1}, s3
            s_add_u32 {sT1}, {sT1}, 65536
            """)
        def tr(s_):
            g = Seq(); self.tr2(g, Reg("a", WRING.lo + 4 * (s_ % 6)), vWQ, s_ * 1024, 256, ("Wq", L, s_)); return g
        def park(rnd, k):
            g = Seq(); j, nt = k >> 1, k & 1
            self.tr2(g, Reg("a", PARK.lo + 8 * (8 * rnd + j) + 4 * nt), [[vWO0, vWO1], [vUN1, vUN2]][rnd][nt], j * 2048, 512, ("wo", L, 8 * rnd + j, nt))
            return g
        for s_ in range(4): q.extend(tr(s_))
        if L == 0: q(f"buffer_store_dwordx2 v[114:115], v112, {SWS}, {sT1} offen sc1")
        NG1 = int(self.cfg.get("ng1_%d" % L, 3))
        m = Seq()
        if L == 1:
            self.cs_split(m, vDQ, 84)
            m("v_mov_b32 v86, 0\nv_mov_b32 v87, 0")
        for s_ in range(32):
            self.mfma32(m, 48, WRING(4 * (s_ % 6), 4), XF(4 * s_, 4), s_ == 0, rtags={1: ("Wq", L, s_), 2: ("x", L, s_)})
            if L == 0: self.mfma32(m, 64, "v[88:91]", WRING(4 * (s_ % 6), 4), s_ == 0, rtags={2: ("Wq", L, s_)})
            if s_ + 4 < 32: m.extend(tr(s_ + 4))
            if L == 1 and s_ == 30: self.mfma32(m, 48, "v[84:87]", "v[120:123]", False)
        tch = Seq(); tch(f"buffer_load_dword v117, {vTCH}, {SWS}, 0 offen sc1")
        assert NG1 <= 4
        gus = singles([self.dma_wgu(j) for j in range(NG1)])
        e = m
        if L == 0:
            e(f"v_mov_b32 {vDQ}, v64\nv_mov_b32 v82, 0\nv_mov_b32 v83, 0")
            self.cs_split(e, "v64", 80)
            self.mfma32(e, 48, "v[80:83]", "v[120:123]", False)
        self.pack16(e, 48, 80)
        self.mfma32(e, 48, WPHI(0, 4), V(80, 4), True)
        self.mfma32(e, 64, WPHI(4, 4), V(84, 4), True)
        self.softmax16(e, 48, 96, 80, 94)
        self.softmax16(e, 64, 104, 80, 94)
        if L == 0:
            g = Seq(); g(f"s_add_u32 {sT2}, {sFLG}, {FREG}\nv_mov_b32 v112, 0")
            reg_ld = self.precheck(g, "v113", "v112", SWS, sT2)
            mode = self.cfg.get("wt0", "4")
            if mode == "4": its = wos + gus + [tch, g]
            elif mode == "1": its = singles([self.ws0]) + wos + gus + [tch, g]
            elif mode == "0": its = [tch] + wos + gus + [g]
            else: its = wos + gus + [g]
        else:
            its = [tch] + wos + gus
        q.extend(spread(e, its, 0.0, float(self.cfg.get("qhi%d" % L, 0.8 if L == 0 else 0.7))))
        so = self.soff(q, sO_ST, self.o_base(L) - self.o_base(0), sT1)
        self.ts("qepi")
        Lp = uid("L_kv"); D = uid("L_done"); sl = int(self.cfg.get("kvsleep", 0))
        q.raw(f"""
        {('s_branch ' + D) if sl else ''}
        {Lp}:
        {('s_sleep %d' % sl) if sl else ''}
        {D}:
        buffer_load_dwordx4 v[48:51], {vL16}, {SWS}, {at} offen sc1
        buffer_load_dword v52, {vL4}, {SWS}, {at} offen offset:1024 sc1
        s_sub_u32 {sBUD}, {sBUD}, 1
        s_cselect_b32 s76, 0, 0x88888888
        s_mov_b32 s77, s76
        s_max_i32 {sBUD}, {sBUD}, 0
        s_waitcnt vmcnt(0)
        v_cmp_neq_f32 vcc, 4.0, v52
        v_cmp_neq_f32 s[44:45], 4.0, v51
        s_and_b64 vcc, vcc, s[100:101]
        s_or_b64 vcc, vcc, s[44:45]
        s_and_b64 vcc, vcc, {sE0}
        s_cbranch_scc1 {Lp}
        """, drains_vm=True, writes={"v48", "v49", "v50", "v51", "v52", "v53"})
        self.ts("kvpoll")
        gi = NG1
        q(f"""
        v_cvt_pk_bf16_f32 v48, v48, v49
        v_cvt_pk_bf16_f32 v49, v50, v51
        v_cvt_pk_bf16_f32 v52, v52, v52
        ds_write_b64 {vKW1}, v[48:49]
        ds_write_b16 {vKW2}, v52 offset:30
        """)
        if L == 0:
            self.confirm(q, "v113", reg_ld, "32")
            if not self.cfg["force_slow"]:
                q(f"""
                v_readfirstlane_b32 {sT0}, v113
                s_lshl_b32 {sT2}, {sADD}, 5
                s_cmp_eq_u32 {sT0}, {sT2}
                s_cselect_b32 {sMODE}, 0, 1
                """)
            q("v_mov_b32 v112, 1")
        self.barrier()
        if self.cfg.get("ts2"): self.ts("B3")
        for hd in range(2):
            for s_ in range(2):
                self.tr2(q, Reg("v", 80 + 8 * hd + 4 * s_), vKR, hd * 1280 + s_ * 320, 160, None)
        for hd in range(2):
            for s_ in range(2):
                self.mfma32(q, 48 + 16 * hd, V(80 + 8 * hd + 4 * s_, 4), V(96 + 8 * hd + 4 * s_, 4), s_ == 0)
        if self.cfg.get("gb3", "0") == "1":
            q.extend(self.dma_wgu(gi)); gi += 1
        to = Tok()
        for hd in range(2):
            b = 48 + 16 * hd
            q(f"v_add_f32 v{b + 8}, {f32(1e-6)}, v{b + 8}")
            q(f"v_rcp_f32 v{b + 8}, v{b + 8}")
            for i in range(0, 8, 2):
                q(f"v_pk_mul_f32 {V(b + i, 2)}, {V(b + i, 2)}, {V(b + 8, 2)} op_sel_hi:[1,0]")
            for i in range(0, 8, 2):
                q(f"v_cvt_pk_bf16_f32 v{b + 12 + i // 2}, v{b + i}, v{b + i + 1}")
        self.handoff(q, [f"buffer_store_dwordx4 v[60:63], {vL16}, {SWS}, {so} offen",
                         f"buffer_store_dwordx4 v[76:79], {vL16}, {SWS}, {so} offen offset:1024"], "o", to, L == 0 and self.cfg.get("wt0", "1") == "2")
        if self.cfg.get("ts2"): self.ts("ost")
        if L == 0:
            q(f"buffer_atomic_add v112, {vONE}, {SWS}, {sCNT} offen")
        if self.cfg.get("gpo", "1") == "1":
            q.extend(self.dma_wgu(gi)); gi += 1
        for k in range(16): q.extend(park(0, k))
        self.flag(q, sFO_ST, FO + L * 512, SWS, [to])
        for k in range(16): q.extend(park(1, k))
        self.gi = gi
        self.ts("o")

    def x_tail(self, t0, inst, final, early=(), extra=()):
        q = self.q
        for i in range(0, 16, 2):
            q(f"v_cvt_pk_bf16_f32 v{t0 + i // 2}, {XRES(i)}, {XRES(i + 1)}")
        if final:
            q(f"""
            buffer_store_dwordx4 {V(t0, 4)}, {vROW}, {SOUT}, {sOUTO} offen
            buffer_store_dwordx4 {V(t0 + 4, 4)}, {vROW}, {SOUT}, {sOUTO} offen offset:32
            """)
            return
        so = self.soff(q, sX_ST, self.x_base(inst) - self.x_base(0), sT1)
        tx = Tok()
        wt = inst == 0 and self.cfg.get("wt0", "1") == "2"
        self.handoff(q, [f"buffer_store_dwordx4 {V(t0, 4)}, {vL16}, {SWS}, {so} offen",
                         f"buffer_store_dwordx4 {V(t0 + 4, 4)}, {vL16}, {SWS}, {so} offen offset:1024"], "x", tx, wt)
        if self.cfg.get("ts2"): self.ts("xst")
        for g in early: q.extend(g)
        t = t0 + 8
        q(f"v_pk_add_f32 {V(t, 2)}, {XRES(0, 2)}, {XRES(2, 2)}")
        q(f"v_pk_mul_f32 {V(t + 2, 2)}, {XRES(0, 2)}, {XRES(0, 2)}")
        q(f"v_pk_fma_f32 {V(t + 2, 2)}, {XRES(2, 2)}, {XRES(2, 2)}, {V(t + 2, 2)}")
        for i in range(4, 16, 2):
            q(f"v_pk_add_f32 {V(t, 2)}, {V(t, 2)}, {XRES(i, 2)}")
            q(f"v_pk_fma_f32 {V(t + 2, 2)}, {XRES(i, 2)}, {XRES(i, 2)}, {V(t + 2, 2)}")
        q(f"""
        v_add_f32 v{t}, v{t}, v{t + 1}
        v_add_f32 v{t + 1}, v{t + 2}, v{t + 3}
        v_mov_b32 v{t + 2}, v{t}
        v_mov_b32 v{t + 3}, v{t + 1}
        v_lshrrev_b32 v{t + 4}, 5, {vLANE}
        v_lshl_add_u32 v{t + 4}, v{t + 4}, 28, {vL16}
        v_permlane32_swap_b32 v{t}, v{t + 2}
        v_permlane32_swap_b32 v{t + 1}, v{t + 3}
        v_pk_add_f32 {V(t, 2)}, {V(t, 2)}, {V(t + 2, 2)}
        """)
        so = self.soff(q, sST_ST, self.st_base(inst) - STAT_OFF, sT1)
        ts_ = Tok()
        self.handoff(q, [f"buffer_store_dwordx2 {V(t, 2)}, v{t + 4}, {SWS}, {so} offen"], "s", ts_, wt)
        self.flag(q, sFX_ST, inst * 512, SWS, [tx])
        for g in extra: q.extend(g)
        self.flag(q, sFX_ST, inst * 512 + 1536, SWS, [ts_])

    def k2(self, L):
        q = self.q
        q(f"""
        v_and_b32 v14, 7, {vLANE}
        v_lshlrev_b32 v14, 2, v14
        s_lshl_b32 {sT0}, {sW}, 12
        s_add_u32 {sT0}, {sT0}, {R2}
        v_add_u32 v12, {sT0}, {vL16}
        v_xor_b32 v13, 0x2000, v12
        """)
        sb = self.soff(q, sO_LD, self.o_base(L) - self.o_base(0), sT2)
        if L == 0:
            q.raw(f"""
            s_getpc_b64 s[8:9]
            L_pc2:
            s_sub_u32 s8, s8, L_pc2-{KNAME}
            s_subb_u32 s9, s9, 0
            s_lshl2_add_u32 {sT0}, {sI}, {sW}
            s_lshl_b32 {sT0}, {sT0}, 7
            s_add_u32 s4, s8, {sT0}
            s_addc_u32 s5, s9, 0
            """)
        self.code_touch(f"L_k3_{L}")
        self.poll("v14", SWS, sFO_PL, FO + L * 512)
        self.ts("fo")
        OF = Reg("v", 128)
        def ol(j):
            g = Seq()
            so = sb if j < 4 else sT1
            if j % 4 == 0 and j: g(f"s_add_u32 {sT1}, {sb}, {j * 1024}")
            g(f"buffer_load_dwordx4 {OF(4 * j, 4)}, {vL16}, {SWS}, {so} offen offset:{(j % 4) * 1024} sc1", wtag=("o", L, j))
            return g
        PRE = int(self.cfg.get("k2pre", 8))
        for j in range(PRE): q.extend(ol(j))
        def mm(j, nt):
            self.mfma32(q, 64 if nt else XRES.lo, PARK(8 * j + 4 * nt, 4), OF(4 * j, 4), j == 0 and nt == 1,
                        rtags={1: ("wo", L, j, nt), 2: ("o", L, j)})
        TAIL = int(self.cfg.get("k2tail", 5)); BJ = int(self.cfg.get("k2bar", 3))
        self.wd_init(L)
        self.npre = int(self.cfg.get("wd_pre", 2))
        NGK = int(self.cfg.get("ngk", 2))
        ex = singles([self.dma_wgu(self.gi + k) for k in range(NGK)] + [self.wd_issue(u) for u in range(self.npre)]); self.gi += NGK
        ex = self.c3_touch(784, 9, ("v80", "v81")) + ex
        for j in range(16 - TAIL):
            mm(j, 1)
            if j + PRE < 16: q.extend(ol(j + PRE))
            elif ex: q.extend(ex.pop(0))
            if j == BJ: self.barrier()
            mm(j, 0)
        for j in range(16 - TAIL, 16):
            mm(j, 1)
            if ex: q.extend(ex.pop(0))
        mm(16 - TAIL, 0); mm(17 - TAIL, 0)
        for i in range(4):
            q(f"ds_write_b128 v12, {V(64 + 4 * i, 4)} offset:{i * 1024}")
            if 18 - TAIL + i < 16: mm(18 - TAIL + i, 0)
        for g in ex: q.extend(g)
        if self.cfg.get("ts2"): self.ts("k2main")
        self.barrier()
        for i in range(4):
            q(f"ds_read_b128 {V(64 + 4 * i, 4)}, v13 offset:{i * 1024}")
        for i in range(0, 16, 2):
            q(f"v_pk_add_f32 {XRES(i, 2)}, {XRES(i, 2)}, {V(64 + i, 2)}")
        NGX = int(self.cfg.get("ngx", 0))
        ex = singles([self.dma_wgu(self.gi + k) for k in range(NGX)]); self.gi += NGX
        self.x_tail(48, L, False, early=ex)
        self.ts("k2")

    WD_A = [R3 + k * 2048 for k in range(4)] + [R2 + k * 2048 for k in range(3)]
    WD_SLOT = WD_A + WD_A + [R1 + k * 2048 for k in range(4)] + [R0 + 32768 + k * 2048 for k in range(4)] + \
              [R0 + k * 2048 for k in range(4)] + WD_A[:2]
    WD_PREV = {**{u: u - 7 for u in range(7, 14)}, 26: 7, 27: 8}
    def wd_init(self, L):
        self.wdL = L
        self.wd_t = [Tok() for _ in range(28)]
        self.park_tok = {}
    def wd_issue(self, u):
        g = Seq()
        if u in self.WD_PREV: g.wait_tok(self.park_tok[self.WD_PREV[u]])
        g.extend(self.dma_wd(u, self.WD_SLOT[u], self.wd_t[u]))
        return g
    def wd_park(self, u):
        g = Seq()
        g.wait_tok(self.wd_t[u])
        sl = self.WD_SLOT[u]
        reg, base = (18, 0) if sl < R0 else ((24, R0) if sl < R2 else (20, R2))
        for nt in range(2):
            self.tr2(g, Reg("a", PARK.lo + 8 * u + 4 * nt), f"v{reg + nt}", sl - base, 512, ("wd", self.wdL, u, nt))
        g[-1].tok = self.park_tok[u] = Tok()
        return g

    H_RING = list(range(48, 112, 4)) + list(range(176, 256, 4))
    def hl(self, L, n):
        mt, u = divmod(n, 28)
        g = Seq()
        if u % 4 == 0: g(f"s_add_u32 {sT1}, {sH_LD}, {self.h_base(L) - H_OFF + mt * HMT + u * 1024}")
        g(f"buffer_load_dwordx4 {V(self.H_RING[n % 36], 4)}, {vL16}, {SWS}, {sT1} offen offset:{(u % 4) * 1024} sc1", wtag=("h", L, n))
        return g

    GELU1 = -2.0 * math.sqrt(2.0 / math.pi) * LOG2E
    def k3_idle(self, L, nparked):
        keep = self.q; q = self.q = Seq()
        kt, kp = self.wd_t, self.park_tok
        self.wd_t = [Tok() for _ in range(28)]; self.park_tok = {}
        q.label(f"L_idle{L}")
        self.poll("v12", SWS, sFX_PL3, L * 512 + 1536)
        q("s_waitcnt lgkmcnt(0)\ns_barrier")
        for mt in range(2):
            so = self.soff(q, sST_LD3, self.st_base(L) - STAT_OFF + mt * 4096, sT0)
            for i in range(4):
                q(f"buffer_load_dwordx4 {V(48 + 16 * mt + 4 * i, 4)}, {vL16}, {SWS}, {so} offen offset:{i * 1024} sc1")
        for u in range(self.npre, 7): q.extend(self.wd_issue(u))
        q(f"""
        s_cmp_eq_u32 {sI}, 28
        s_cselect_b32 {sT1}, 0, {OOB}
        s_add_u32 {sT0}, {sT1}, {sRH}
        s_add_u32 {sT1}, {sT1}, {sRW}
        """)
        tf = Tok()
        for mt in range(2):
            b = 48 + 16 * mt
            self.stats_sum(q, b)
            self.stats_finish(q, b, b + 2, b + 8, False)
            q(f"""
            v_mul_f32 v{b + 5}, v{b + 1}, v{b + 1}
            v_mul_f32 v{b + 4}, {f32(self.GELU1)}, v{b + 1}
            v_mul_f32 v{b + 5}, v{b + 5}, v{b + 1}
            v_mov_b32 v{b + 6}, v{b + 2}
            v_mov_b32 v{b + 7}, v{b + 8}
            v_mul_f32 v{b + 5}, {f32(self.GELU1 * 0.044715)}, v{b + 5}
            """)
            q(f"buffer_store_dwordx4 {V(b + 4, 4)}, {vL16}, {SWS}, {sT0} offen offset:{mt * 1024} sc1", tok=tf)
        self.flag(q, sT1, L * 16, SWS, [tf])
        if L == 0:
            kg = self.gu_t; self.gu_t = [Tok() for _ in range(16)]
            q(f"""
            s_lshl_b32 {sT1}, {sW}, 5
            v_xor_b32 v14, {sT1}, {vTG}
            v_add_u32 v13, {R0}, v14
            """)
            self.ones(q, 80)
            def cs_steps(lo, hi):
                def tr(s_):
                    c = s_ // 8
                    self.tr2(q, Reg("v", 96 + 4 * (s_ % 8)), "v14" if c == 1 else "v13",
                             GU_BASE[c] - (0 if c == 1 else R0) + (s_ % 8) * 4096, 512, ("csW", s_))
                for s_ in range(lo, min(hi, lo + 4)): tr(s_)
                for s_ in range(lo, hi):
                    self.mfma32(q, 48, "v[80:83]", V(96 + 4 * (s_ % 8), 4), s_ == 0, rtags={2: ("csW", s_)})
                    if s_ + 4 < hi: tr(s_ + 4)
            for j in range(self.gi, 12): q.extend(self.dma_wgu(j))
            cs_steps(0, 8)
            q("s_barrier")
            for j in range(12, 16): q.extend(self.dma_wgu(j))
            q.wait_vm0(); q("s_barrier")
            cs_steps(8, 32)
            q(f"""
            s_barrier
            s_cmp_lt_u32 {sFB}, 28
            s_cselect_b32 {sT1}, {sCSG}, {OOB}
            s_lshl2_add_u32 {sT1}, {sW}, {sT1}
            v_lshrrev_b32 v29, 5, {vLANE}
            v_lshl_add_u32 v29, v29, 28, {vL16}
            s_mov_b32 s18, 0
            s_mov_b32 s22, 0
            v_or_b32 v48, 1, v48
            buffer_store_dword v48, v29, {SWS}, {sT1} offen sc1
            """)
            self.gu_t = kg
        for u in range(14, 26): q.extend(self.wd_issue(u))
        if self.cfg.get("ctouch", "1") == "1":
            q(f"""
            v_lshlrev_b32 v29, 7, {vLANE}
            v_add_u32 v29, {sW8K}, v29
            v_add_u32 v29, L_tail_{L}-{KNAME}, v29
            v_min_u32 v29, L_last-{KNAME}, v29
            global_load_dword v60, v29, s[8:9]
            """)
        for u in range(7):
            q.extend(self.wd_park(u)); q.extend(self.wd_issue(u + 7))
        if self.cfg.get("sweep%d" % L, str(L)) == "1":
            q(f"""
            v_lshlrev_b32 v29, 7, {vLANE}
            s_lshl2_add_u32 {sT0}, {sRQ}, {sW}
            s_mul_i32 {sT0}, {sT0}, 57344
            s_mul_i32 {sT1}, {sG}, {8 * HMT}
            s_add_u32 {sT0}, {sT0}, {sT1}
            s_add_u32 {sT0}, {sT0}, {self.h_base(L)}
            """)
        for u in range(7, nparked):
            q.extend(self.wd_park(u))
            if u in (7, 8): q.extend(self.wd_issue(u + 19))
        if self.cfg.get("sweep%d" % L, str(L)) == "1":
            for k in range(7):
                q(f"buffer_load_dword v{48 + k}, v29, {SWS}, {sT0} offen sc1 {self.cfg.get('swf%d' % L, '')}\ns_add_u32 {sT0}, {sT0}, 8192")
        self.poll("v23", SWS, sFH_PL, L * 1024)
        for n in range(self.nearly): q.extend(self.hl(L, n))
        q(f"s_waitcnt vmcnt(0) lgkmcnt(0)\ns_branch L_k4_{L}")
        self.side.append(q)
        self.q = keep; self.wd_t, self.park_tok = kt, kp

    def k3(self, L):
        q = self.q
        ACC = 48; XR = 176; NXR = 8
        acc = lambda mt, t: ACC + 64 * mt + 16 * t
        q.label(f"L_k3_{L}")
        q(f"""
        v_and_b32 v12, 31, {vLANE}
        v_lshlrev_b32 v22, 3, v12
        v_lshlrev_b32 v12, 2, v12
        v_add_u32 v18, {sW8K}, {vT128}
        v_xor_b32 v19, 64, v18
        v_add_u32 v20, {R2}, v18
        v_add_u32 v21, {R2}, v19
        v_and_b32 v23, 7, {vLANE}
        v_min_u32 v23, 6, v23
        v_lshlrev_b32 v23, 2, v23
        s_lshl2_add_u32 {sRH}, {sG}, {sW}
        s_lshl_b32 {sRH}, {sRH}, 11
        s_add_u32 {sRH}, {sRH}, {FST_OFF + L * 65536}
        s_lshl2_add_u32 {sRW}, {sW}, {sFLG}
        s_add_u32 {sRW}, {sRW}, {FF}
        s_lshr_b32 {sT0}, {sFB}, 1
        s_mul_i32 {sCSG}, {sT0}, {KV_HP}
        s_and_b32 {sT0}, {sFB}, 1
        s_lshl_b32 {sT0}, {sT0}, 9
        s_add_u32 {sCSG}, {sCSG}, {sT0}
        s_add_u32 {sCSG}, {sCSG}, {KV_OFF + KV_CS}
        s_cmp_ge_u32 {sI}, 28
        s_cbranch_scc1 L_idle{L}
        v_add_u32 v13, {R0}, {vTG}
        v_xor_b32 v14, 32, v13
        v_xor_b32 v15, 64, v13
        v_xor_b32 v16, 96, v13
        v_add_u32 v22, {CS3}, v22
        v_add_u32 v17, 0x8000, {vL16}
        v_mov_b32 v246, 0
        v_mov_b32 v247, 0
        v_mov_b32 v254, 0
        v_mov_b32 v255, 0
        """)
        xb = self.soff(q, sX_LD3, self.x_base(L) - self.x_base(0), sT2)
        self.poll("v12", SWS, sFX_PL3, L * 512)
        self.ts("fx1")
        def xl(s_):
            g = Seq()
            so = xb if s_ < 4 else sT1
            if s_ % 4 == 0 and s_: g(f"s_add_u32 {sT1}, {xb}, {s_ * 1024}")
            for mt in range(2):
                g(f"buffer_load_dwordx4 {V(XR + 8 * (s_ % NXR) + 4 * mt, 4)}, {vL16 if mt == 0 else 'v17'}, {SWS}, {so} offen offset:{(s_ % 4) * 1024} sc1",
                  wtag=("x1", L, s_, mt))
            return g
        for s_ in range(2): q.extend(xl(s_))
        q("s_barrier")
        if self.cfg.get("ts2"): self.ts("k3bar")
        def tr(f):
            s_, t = divmod(f, 4)
            g = Seq()
            if f == 32:
                for i in range(4): g(f"v_subrev_u32 v{13 + i}, {R0 - R1}, v{13 + i}")
            if f == 64:
                for i in range(4): g(f"v_add_u32 v{13 + i}, {R0 - R1}, v{13 + i}")
            c = s_ // 8
            off = (GU_BASE[c] - (R1 if c == 1 else R0)) + (s_ % 8) * 4096
            self.tr2(g, Reg("a", wreg(f)), f"v{13 + t}", off, 512, ("Wgu", L, f))
            return g
        SM = 26
        wreg = lambda f: WRING.lo + 4 * (f % 6) if f < 4 * SM else 128 + 4 * (f - 4 * SM)
        XD = int(self.cfg.get("xd", 6))
        xs = {}; k = 2
        for s_ in range(32):
            n = 2 if k < s_ + XD else 1
            xs[s_] = [x for x in range(k, min(32, k + n)) if x <= s_ + XD]; k += len(xs[s_])
        gi = self.gi
        assert gi >= 4
        gu_steps = {}
        st = float(self.cfg.get("gu0", 2)); GS = float(self.cfg.get("gus", 2))
        for j in range(gi, 16):
            if j >= 12: st = max(st, 10)
            gu_steps[int(st)] = j; st += GS
        at_step = {j: s_ for s_, j in gu_steps.items()}
        LEAD = int(self.cfg.get("gulead", 4))
        bars = {40: [], 104: []}
        nxt = gi
        for f_ in range(8, 128, 8):
            if (nxt < 16 and 8 * nxt == f_) or f_ in bars:
                js = [j for j in range(nxt, 16) if at_step[j] <= f_ // 4 - 1 - LEAD]
                if nxt < 16 and 8 * nxt == f_ and not js: js = [nxt]
                bars[f_] = js; nxt += len(js)
        assert nxt == 16
        fb = min(f_ for f_ in bars if f_ >= 72)
        order = list(range(self.npre, 14)) + [14, 15, 26, 16, 17, 27]
        NMAIN = int(self.cfg.get("wd_main", 11)); order = order[:NMAIN]
        slots = [s_ for s_ in range(XD - 1, SM) if s_ not in gu_steps]
        slots = [slots[(k * len(slots)) // len(order)] for k in range(len(order))]
        issue_at = {}
        for u, s_ in zip(order, slots):
            assert u < 14 or u > 25 or (u < 18 and s_ >= fb // 4), (u, s_, fb)
            issue_at.setdefault(s_, []).append(u)
        NPARK = int(self.cfg.get("wd_park", 12)); assert NPARK <= 12
        LAG = int(self.cfg.get("wd_lag", 4))
        istep = {u: -99 for u in range(self.npre)}; istep.update({u: s_ for u, s_ in zip(order, slots)})
        parked = 0
        if self.cfg.get("show"): print("gu", gu_steps, "bars", bars, "wd", issue_at, "xs", xs, file=sys.stderr)
        def mm(s, s_, t, mt):
            f = 4 * s_ + t
            self.mfma32(s, acc(mt, t), A(wreg(f), 4), V(XR + 8 * (s_ % NXR) + 4 * mt, 4), s_ == 0,
                        rtags={1: ("Wgu", L, f), 2: ("x1", L, s_, mt)})
        for f in range(4): q.extend(tr(f))
        tail_f = [4 * s_ + t for t in range(4) for s_ in range(SM, 32)]
        carry = []
        def halves(g):
            a_, b_ = singles([g])
            if self.cfg.get("smooth", "1") != "1": return [a_, b_], []
            c_ = Seq()
            for i in a_:
                if i.kind == "salu": c_(i.text)
            c_.extend(b_)
            return [a_], [c_]
        for s_ in range(SM):
            vm = []
            xv = []
            for k in xs.get(s_, []): xv += singles([xl(k)])
            wv = carry; carry = []
            for g in [self.wd_issue(u) for u in issue_at.get(s_, [])] + ([self.dma_wgu(gu_steps[s_])] if s_ in gu_steps else []):
                if not any(i.kind == "dma" for i in g): continue
                now, later = halves(g) if s_ < SM - 1 else (singles([g]), [])
                wv = wv + now; carry += later
            while xv or wv:
                if xv: vm.append(xv.pop(0))
                if wv: vm.append(wv.pop(0))
            if s_ == 16:
                g = Seq(); ldS = self.precheck(g, "v29", "v246", SWS, sRW, L * 16); vm.append(g)
            if s_ == 21:
                g = Seq(); self.confirm(g, "v29", ldS)
                for mt in range(2):
                    g(f"buffer_load_dwordx4 {V(240 + 8 * mt, 4)}, {vL16}, {SWS}, {sRH} offen offset:{mt * 1024} sc1")
                vm += singles([g])
            if L == 0 and s_ == 23:
                g = Seq(); g(f"v_lshlrev_b32 v12, 2, v12")
                ldC = f"buffer_load_dwordx4 a[100:103], v12, {SWS}, {sCSG} offen sc1"; g(ldC); vm.append(g)
            for t in range(4):
                f = 4 * s_ + t
                for mt in range(2):
                    mm(q, s_, t, mt)
                    if mt == 0:
                        if vm: q.extend(vm.pop(0))
                        if t == 3:
                            while vm: q.extend(vm.pop(0))
                if f + 4 in bars:
                    q.wait_tok(*[self.gu_t[j] for j in bars[f + 4]]); q("s_barrier")
                q.extend(tr(f + 4) if f + 4 < 4 * SM else tr(tail_f.pop(0)))
                if t == 1 and parked < NPARK and istep.get(parked, 99) + LAG <= s_:
                    q.extend(self.wd_park(parked)); parked += 1
                if s_ == SM - 1 and t >= 1 and L == 1:
                    for tt in ([0, 1], [2, 3], [4])[t - 1]:
                        q(f"ds_read_b64 {A(96 + 2 * tt, 2)}, v22 offset:{(tt % 4) * 256}")
                if self.cfg.get("ts2") and L == 1 and f in (3, 31, 63, 95): self.ts(f"k3f{f}")
        assert max(bars) <= 4 * SM and parked >= 9, parked
        self.ts("k3main")
        q.label(f"L_tail_{L}")
        hs = self.soff(q, sH_ST, self.h_base(L) - H_OFF, "s76")
        th = [Tok(), Tok()]
        EARLY = self.nearly = int(self.cfg.get("early%d" % L, 8 if L == 1 else 4))
        rest1 = singles([self.wd_issue(u) for u in range(28) if u not in istep and not 22 <= u < 26])
        rest2 = singles([self.wd_issue(u) for u in range(22, 26)])
        T = 176
        FAST = int(self.cfg.get("tfast", 2)); BT = 1 if FAST == 2 else 3
        def tile_mfma(n):
            mt, t = divmod(n, 4); gs = []
            for s_ in range(SM, 32):
                g = Seq(); mm(g, s_, t, mt)
                for _ in range(FAST):
                    if tail_f: g.extend(tr(tail_f.pop(0)))
                gs.append(g)
            g = Seq(); self.mfma32(g, acc(mt, t), A(96 + 2 * t, 4), V(244 + 8 * mt, 4), False); gs.append(g)
            return gs
        def epi(n, ms):
            mt, t = divmod(n, 4); a = acc(mt, t); b = 240 + 8 * mt
            e = Seq()
            for i in range(0, 8, 2):
                e(f"v_pk_mul_f32 {V(T + i, 2)}, {V(a + i, 2)}, {V(a + i, 2)}")
            for i in range(0, 8, 2):
                e(f"v_pk_fma_f32 {V(T + i, 2)}, {V(T + i, 2)}, {V(b, 2)}, {V(b, 2)} op_sel:[0,1,0] op_sel_hi:[1,1,0]")
            for i in range(0, 8, 2):
                e(f"v_pk_mul_f32 {V(T + i, 2)}, {V(T + i, 2)}, {V(a + i, 2)}")
            for i in range(0, 8, 2):
                e(f"v_pk_mul_f32 {V(a + i, 2)}, {V(a + i, 2)}, {V(a + 8 + i, 2)}")
            u = Seq()
            for i in range(8): u(f"v_exp_f32 v{T + i}, v{T + i}")
            if ms:
                for i in range(8): u(f"v_fma_f32 v{T + i}, v{T + i}, v{b + 2}, v{b + 2}")
            else:
                for i in range(0, 8, 2): u(f"v_pk_fma_f32 {V(T + i, 2)}, {V(T + i, 2)}, {V(b + 2, 2)}, {V(b + 2, 2)} op_sel_hi:[1,0,0]")
            for i in range(8): u(f"v_rcp_f32 v{T + i}, v{T + i}")
            if ms:
                for i in range(8): u(f"v_mul_f32 v{a + i}, v{a + i}, v{T + i}")
            else:
                for i in range(0, 8, 2): u(f"v_pk_mul_f32 {V(a + i, 2)}, {V(a + i, 2)}, {V(T + i, 2)}")
            for i in range(0, 8, 2): u(f"v_cvt_pk_bf16_f32 v{a + 8 + i // 2}, v{a + i}, v{a + i + 1}")
            e.extend(spread(u, ms, 0.0, float(self.cfg.get("mhi", 0.95))) if ms else u)
            return e
        first = Seq()
        for k, g in enumerate(tile_mfma(0)):
            if k == 5 and L == 0:
                rd = "".join(f"v_accvgpr_read_b32 v{184 + i}, a{100 + i}\n" for i in range(4)) + "v_min3_u32 v29, v184, v185, v186\nv_min_u32 v29, v29, v187\n"
                D = uid("L_done"); R_ = uid("L_redo")
                first.raw(rd + f"v_cmp_eq_u32 vcc, 0, v29\ns_nop 0\ns_cbranch_vccnz {R_}\n{D}:\n", writes={"a100", "a101", "a102", "a103", "v184", "v185", "v186", "v187", "v29"})
                self.tail_text.append(f"{R_}:\n" + self._loop(ldC + "\ns_waitcnt vmcnt(0)\n" + rd.strip(), "v29", None, D) + f"s_branch {D}\n")
                for tt in range(4):
                    self.cs_split(first, f"v{184 + tt}", 176 + 2 * tt)
                    first(f"v_accvgpr_write_b32 a{96 + 2 * tt}, v{176 + 2 * tt}\nv_accvgpr_write_b32 a{97 + 2 * tt}, v{177 + 2 * tt}")
                    first(f"ds_write_b64 v22, {V(176 + 2 * tt, 2)} offset:{tt * 256}")
                first("v_accvgpr_write_b32 a104, 0\nv_accvgpr_write_b32 a105, 0")
            if k == 4:
                for mt in range(2): first(f"v_mov_b32 v{244 + 8 * mt}, v{243 + 8 * mt}\nv_mov_b32 v{245 + 8 * mt}, v{243 + 8 * mt}")
            first.extend(g)
        NE = int(self.cfg.get('wd_epi', 3))
        per = -(-len(rest1) // (NE + 1))
        q.extend(spread(first, rest1[:per])); rest1 = rest1[per:]
        if self.cfg.get("ts5"): self.ts("tf")
        FA = int(self.cfg.get("fa%d" % L, 5 if L == 0 else 4))
        PA = int(self.cfg.get("pa%d" % L, 6 if L == 0 else 5))
        nh = 0
        for n in range(8):
            mt, t = divmod(n, 4)
            if n == 4:
                q(f"s_add_u32 s76, {hs}, {HMT}"); hs = "s76"
            if n == BT:
                assert not tail_f
                self.barrier()
            e = epi(n, tile_mfma(n + 1) if n < 7 else [])
            its = rest1[:per]; rest1 = rest1[per:]
            if n in (BT, BT + 1): its += rest2[4 * (n - BT):4 * (n - BT + 1)]
            lo, hi = 0.05, 0.95
            if n == PA:
                g = Seq(); ldA = self.precheck(g, "v17", "v23", SWS, sFH_PL, L * 1024); its.append(g); lo = 0.5
            if n > PA and EARLY:
                k = -(-(EARLY - nh) // (8 - n))
                its = [self.hl(L, x) for x in range(nh, nh + k)]; nh += k
                if n == PA + 1:
                    g = Seq(); self.confirm(g, "v17", ldA); g.extend(its[0]); its[0] = g; lo = 0.4
            q.extend(spread(e, its, lo, hi))
            a = acc(mt, t)
            stl = f"buffer_store_dwordx4 {V(a + 8, 4)}, {vL16}, {SWS}, {hs} offen offset:{t * 1024}"
            self.handoff(q, [stl], "h", th[mt], L == 0 and self.cfg.get("h0wt", "1") == "1")
            if self.cfg.get("ts5"): self.ts(f"t{n}")
            if n == FA: self.flag(q, sFH_ST, L * 1024, SWS, [th[0]])
        assert not rest1 and not tail_f and nh == EARLY
        self.late_parks = [self.wd_park(u) for u in range(parked, 28)]
        self.th_b = th[1]
        self.ts("k3")
        if not EARLY: self.confirm(q, "v17", ldA)
        self.k3_idle(L, parked)
        q.label(f"L_k4_{L}")

    def k4(self, L):
        q = self.q
        ACC = 112
        self.ts("fh")
        order = [(mt, u) for mt in range(2) for u in range(28)]
        hl = lambda n: self.hl(L, n)
        PRE = max(int(self.cfg.get("k4pre%d" % L, 12 if L == 0 else 8)), self.nearly)
        for n in range(self.nearly, PRE): q.extend(hl(n))
        q(f"v_add_u32 v24, {R0}, v18\nv_add_u32 v25, {R0}, v19")
        if self.cfg.get("ts4"): self.ts("pre")
        FB = int(self.cfg.get("fb", 2 if self.nearly else -1))
        if FB < 0: self.flag(q, sFH_ST, L * 1024 + 128, SWS3, [self.th_b])
        if self.cfg.get("ts4"): self.ts("flagB")
        su = Seq()
        su(f"""
        s_and_b32 {sT0}, {sW}, 2
        s_lshl_b32 {sT0}, {sT0}, 14
        s_and_b32 s76, {sW}, 1
        s_lshl_b32 s76, s76, 12
        s_add_u32 {sT0}, {sT0}, s76
        v_add_u32 v12, {sT0}, {vL16}
        v_xor_b32 v13, 0x5000, v12
        v_xor_b32 v14, 0xa000, v12
        v_xor_b32 v15, 0xf000, v12
        s_lshl_b32 {sT0}, {sW}, 14
        v_add_u32 v16, {sT0}, {vL16}
        """)
        su = list(su)
        wk = [Tok() for _ in range(8)]
        pk = singles([self.dma_packed(j, wk[j]) for j in range(8)]) if L == 0 else []
        def wr(bk): return [f"ds_write_b128 v{12 + bk}, {V(ACC + 16 * bk + 4 * i, 4)} offset:{i * 1024}" for i in range(4)]
        def ad(bk): return [f"v_pk_add_f32 {XRES(i, 2)}, {XRES(i, 2)}, {V(ACC + 16 * bk + i, 2)}" for i in range(0, 16, 2)]
        odd = f"s_bitcmp1_b32 {sW}, 0"
        TAIL = int(self.cfg.get("k4tail", 5))
        def mm(n, nt):
            mt, u = order[n]
            self.mfma32(q, ACC + 16 * (2 * nt + mt), PARK(8 * u + 4 * nt, 4), V(self.H_RING[n % 36], 4), u == 0,
                        rtags={1: ("wd", L, u, nt), 2: ("h", L, n)})
        for n in range(56 - TAIL):
            mm(n, 1)
            if n == 28 - PRE - 6: ldB = self.precheck(q, "v17", "v23", SWS, sFH_PL, L * 1024 + 128)
            if n + PRE == 28: self.confirm(q, "v17", ldB)
            if n + PRE < 56: q.extend(hl(n + PRE))
            elif pk: q.extend(pk.pop(0))
            mm(n, 0)
            if n == FB: self.flag(q, sFH_ST, L * 1024 + 128, SWS3, [self.th_b])
            if su: q.append(su.pop(0))
            if n >= 1 and self.late_parks: q.extend(self.late_parks.pop(0))
            if self.cfg.get("ts4") and n in (0, 7, 15, 19, 23, 27, 35, 43): self.ts(f"n{n}")
            if n == 24: self.barrier()
            if n == 26 and L == 0:
                q(f"s_add_u32 {sT0}, {sKV}, {KV_OFF + KV_CNT}\nv_mov_b32 v18, 0")
                cnt_ld = self.precheck(q, "v19", "v18", SWS, sT0)
            if n == 40 and L == 0:
                self.confirm(q, "v19", cnt_ld, "16")
            if n == 30 and L == 0: q(f"buffer_load_dword {vP}, {vTCH}, {SWS}, 0 offen sc1")
            if n in (32, 33, 34, 35): q(wr(2)[n - 32])
            if n in (36, 37, 38, 39):
                k = n - 36
                q.alt(odd, [f"v_add_f32 {XRES(4 * k + i)}, {XRES(4 * k + i)}, v{ACC + 4 * k + i}" for i in range(4)], [wr(0)[k]] + [None] * 3, uid("a"))
        for n in range(56 - TAIL, 56):
            mm(n, 1)
            if pk: q.extend(pk.pop(0))
        mm(56 - TAIL, 0); mm(57 - TAIL, 0)
        for i, l in enumerate(wr(3)):
            q(l)
            if 58 - TAIL + i < 56: mm(58 - TAIL + i, 0)
        self.ts("k4main")
        q.alt("s_bitcmp0_b32 %s, 0" % sW, ad(1), wr(1) + [None] * 4, uid("a"))
        for _ in range(4):
            if pk: q.extend(pk.pop(0))
        q("s_waitcnt lgkmcnt(0)")
        q("s_barrier")
        for d in range(1, 4):
            for i in range(4):
                q(f"ds_read_b128 {V(ACC + 16 * d + 4 * i, 4)}, v16 offset:{d * 4096 + i * 1024}")
        for d in range(1, 4):
            for l in ad(d): q(l)
        self.x_tail(48, 2, L == 1, extra=pk)
        self.ts("k4")

    def build(self):
        q = self.q
        self.prologue()
        self.k1_first(); self.k1_rest(0); self.k2(0); self.k3(0); self.k4(0)
        self.k1_second(); self.k1_rest(1); self.k2(1); self.k3(1); self.k4(1)
        if self.cfg["ts"]:
            q.wait_vm0()
            q(f"""
            s_memrealtime s[76:77]
            s_lshl3_add_u32 {sT0}, {sI}, {sG}
            s_lshl2_add_u32 {sT0}, {sT0}, {sW}
            s_lshl_b32 {sT0}, {sT0}, 8
            s_add_u32 {sT0}, {sT0}, {TS_OFF}
            v_writelane_b32 {vTS}, {sMODE}, 62
            v_writelane_b32 {vTS}, {sBUD}, 63
            v_writelane_b32 {vTS}, s76, 61
            v_lshlrev_b32 v12, 2, {vLANE}
            buffer_store_dword {vTS}, v12, {SWS}, {sT0} offen
            """)
        if self.cfg.get("dbgts"):
            idx = [int(x) for x in self.cfg["dbgts"].split("-")]
            q(f"v_readlane_b32 {sT1}, {vTS}, 0")
            for j, k in enumerate(idx):
                q(f"v_readlane_b32 {sT2}, {vTS}, {k}\ns_sub_u32 {sT2}, {sT2}, {sT1}\nv_writelane_b32 v13, {sT2}, {j}")
            q(f"""
            s_lshl3_add_u32 {sT0}, {sI}, {sG}
            s_lshl2_add_u32 {sT0}, {sT0}, {sW}
            s_cmp_eq_u32 {sT0}, {int(self.cfg.get("dbgw", 0))}
            s_cselect_b32 {sT0}, 0, 0x10000
            v_lshrrev_b32 v14, 4, {vLANE}
            v_lshl_add_u32 v12, v14, 20, v12
            v_add_u32 v12, {sT0}, v12
            buffer_store_dword v13, v12, {SDBG}, 0 offen
            """)
        (main, ool), seq = finalize(q, sMODE)
        for sd in self.side:
            (m2, o2), _ = finalize(sd, sMODE)
            ool = m2 + "\n" + ool + "\n" + o2
        ool = "\n".join(l if l.endswith(":") else "    " + l for t in self.tail_text for l in t.strip().split("\n")) + "\n" + ool
        hdr = open("interleave_layers__linear_kernel_hedgehog__geglu_ffn__prompt.s.ref").read().split("; Override")[0]
        out = [hdr.rstrip(), f"; @launch grid=(256,1,1) block=(256,1,1) lds={LDS_BYTES}",
               '.amdgcn_target "amdgcn-amd-amdhsa--gfx950"', ".text", f".globl {KNAME}", ".p2align 8",
               f".type {KNAME},@function", f"{KNAME}:", main, "L_end:", "    s_endpgm", ool, "L_last:", "    s_endpgm",
               '.section .rodata,"a"', ".p2align 6", f".amdhsa_kernel {KNAME}",
               "  .amdhsa_next_free_vgpr 512", "  .amdhsa_next_free_sgpr 102", "  .amdhsa_accum_offset 256",
               "  .amdhsa_group_segment_fixed_size 0", "  .amdhsa_kernarg_size 88", "  .amdhsa_user_sgpr_count 2",
               "  .amdhsa_user_sgpr_kernarg_segment_ptr 1", "  .amdhsa_system_sgpr_workgroup_id_x 1",
               "  .amdhsa_float_denorm_mode_32 3", "  .amdhsa_float_denorm_mode_16_64 3",
               ".end_amdhsa_kernel", ""]
        txt = "\n".join(out)
        if self.cfg.get("align", "1") == "1":
            txt, a_, b_ = align_runs(txt)
            if self.cfg.get("show"): print("aligned", a_, b_, file=sys.stderr)
        return txt


if __name__ == "__main__":
    cfg = dict(CFG)
    out = sys.argv[1]
    for a in sys.argv[2:]:
        k, v = a.split("=")
        cfg[k] = {"0": False, "1": True}.get(v, v) if k in CFG else v
    g = Gen(cfg)
    txt = g.build()
    open(out, "w").write(txt)
    if cfg["ts"]:
        open(out + ".tsnames", "w").write("\n".join(g.tsnames))
```
